```python
import torch

def _softmax(x, axis=-1):
    return torch.softmax(x, dim=axis)
def _gelu(x):
    return torch.nn.functional.gelu(x, approximate="tanh")
def _silu(x):
    return torch.nn.functional.silu(x)
def _sigmoid(x):
    return torch.sigmoid(x)
def _layernorm(x, axis=-1, eps=1e-5):
    m = x.mean(dim=axis, keepdim=True)
    v = x.var(dim=axis, keepdim=True, unbiased=False)
    return (x - m) / torch.sqrt(v + eps)
def _scatter_add(tgt, idx, src, axis=0):
    return tgt.clone().index_add_(axis, idx, src)
def _segment_sum(src, seg, n):
    out = torch.zeros((n,) + src.shape[1:], dtype=src.dtype)
    return out.index_add_(0, seg, src)
def _pad(x, pw):
    flat = tuple(v for pair in reversed(pw) for v in pair)
    return torch.nn.functional.pad(x, flat)

kernel_name = 'gated_mix__mha_block__glu_gated_glu__prompt'

def setup_inputs():

    _w = (lambda a: (lambda t: t.to(torch.bfloat16) if t.is_floating_point() else t)(torch.as_tensor(a)))
    def _A_setup():
        B, S, D, H = 1, 2048, 512, 32
        return {
            "x": _w((lambda *s: torch.randn(*s, dtype=torch.bfloat16) * 0.05)(B, S, D)),
            "wqkv": _w((lambda *s: torch.randn(*s, dtype=torch.bfloat16) * 0.8)(D, 3 * D)),
            "wo": _w((lambda *s: torch.randn(*s, dtype=torch.bfloat16) * 0.1)(D, D)),
        }
    _A_in = _A_setup()

    def _B_setup():
        B, S, D, F = 1, 2048, 512, 1376
        return {
            "x": _w((lambda *s: torch.randn(*s, dtype=torch.bfloat16) * 0.05)(B, S, D)),
            "w_gate": _w((lambda *s: torch.randn(*s, dtype=torch.bfloat16) * 0.8)(D, F)),
            "w_up": _w((lambda *s: torch.randn(*s, dtype=torch.bfloat16) * 0.05)(D, F)),
            "w_down": _w((lambda *s: torch.randn(*s, dtype=torch.bfloat16) * 0.05)(F, D)),
        }
    _B_in = _B_setup()

    return {
        "A_x": _A_in["x"],
        "A_wqkv": _A_in["wqkv"],
        "A_wo": _A_in["wo"],
        "B_x": _B_in["x"],
        "B_w_gate": _B_in["w_gate"],
        "B_w_up": _B_in["w_up"],
        "B_w_down": _B_in["w_down"],
        "gate_w": _w((lambda *s: torch.randn(*s, dtype=torch.bfloat16) * 0.05)(512) * 16.0),
    }

def reference(A_x, A_wqkv, A_wo, B_x, B_w_gate, B_w_up, B_w_down, gate_w):
    def _A_ref(x, wqkv, wo):
        B, S, D = x.shape
        H = 32
        Dh = D // H
        qkv = (lambda x, *d: x.permute(*d))((x @ wqkv).reshape(B, S, 3, H, Dh), 2, 0, 3, 1, 4)
        q, k, v = qkv[0], qkv[1], qkv[2]
        scores = torch.einsum("bhqd,bhkd->bhqk", q, k) * (Dh ** -0.5)
        p = _softmax(scores, axis=-1)
        o = torch.einsum("bhqk,bhkd->bhqd", p, v)
        return (lambda x, *d: x.permute(*d))(o, 0, 2, 1, 3).reshape(B, S, D) @ wo

    def _B_ref(x, w_gate, w_up, w_down):
        g = torch.einsum("bsd,df->bsf", x, w_gate)
        u = torch.einsum("bsd,df->bsf", x, w_up)
        h = _sigmoid(g) * u
        return torch.einsum("bsf,fd->bsd", h, w_down)

    x = A_x
    g = _sigmoid((x * gate_w).sum(-1, keepdims=True))
    a = _A_ref(x, A_wqkv, A_wo)
    b = _B_ref(x, B_w_gate, B_w_up, B_w_down)
    return g * a + (1 - g) * b
```

```python
class Asm:
    def __init__(self):
        self.lines = []
        self.uid = 0
    def __call__(self, *ls):
        for l in ls:
            self.lines.append("    " + l)
    def label(self, name):
        self.lines.append(name + ":")
    def c(self, text):
        self.lines.append("    ; " + text)
    def raw(self, l):
        self.lines.append(l)
    def newlabel(self, base):
        self.uid += 1
        return f"L_{base}_{self.uid}"
    def text(self):
        return "\n".join(self.lines) + "\n"
    def nop(self, n):
        while n > 0:
            k = min(n, 16)
            self(f"s_nop {k-1}")
            n -= k
    def srd(self, d, lo, hi, nbytes, add=0):
        if add:
            self(f"s_add_u32 s{d}, s{lo}, {add:#x}", f"s_addc_u32 s{d+1}, s{hi}, 0")
        else:
            self(f"s_mov_b32 s{d}, s{lo}", f"s_mov_b32 s{d+1}, s{hi}")
        self(f"s_mov_b32 s{d+2}, {nbytes:#x}", f"s_mov_b32 s{d+3}, 0x20000")

def vr(a, n=1):
    return f"v{a}" if n == 1 else f"v[{a}:{a+n-1}]"
def sr(a, n=1):
    return f"s{a}" if n == 1 else f"s[{a}:{a+n-1}]"

def kernel_header(a, name):
    a.raw(f".globl {name}")
    a.raw(".p2align 8")
    a.raw(f".type {name},@function")
    a.label(name)

def kernel_desc(name, nvgpr, nsgpr=102):
    acc = min(256, (nvgpr + 3) // 4 * 4)
    return "\n".join([
        ".p2align 6",
        f".amdhsa_kernel {name}",
        f"  .amdhsa_next_free_vgpr {nvgpr}",
        f"  .amdhsa_next_free_sgpr {nsgpr}",
        f"  .amdhsa_accum_offset {acc}",
        "  .amdhsa_group_segment_fixed_size 0",
        "  .amdhsa_kernarg_size 88",
        "  .amdhsa_user_sgpr_count 2",
        "  .amdhsa_user_sgpr_kernarg_segment_ptr 1",
        "  .amdhsa_system_sgpr_workgroup_id_x 1",
        ".end_amdhsa_kernel",
    ]) + "\n"
```

```python
import sys, math
from asmlib import *

MB = 1 << 20
QF, KF, VF, XF, OF, BF, GT, HF = 0, 2*MB, 4*MB, 6*MB, 8*MB, 10*MB, 12*MB, 16*MB
HF_BYTES = 86 * 65536
QSCALE = 0.25 * math.log2(math.e)
import struct
def fbits(x): return struct.unpack("<I", struct.pack("<f", x))[0]

MFMA = "v_mfma_f32_32x32x16_bf16"

def prologue_ids(a, nwg, endlabel):
    a(f"s_cmp_ge_u32 s2, {nwg}", f"s_cbranch_scc1 {endlabel}")

def gen_qkv(a, name):
    kernel_header(a, name)
    end = "L_qkv_end"
    prologue_ids(a, 256, end)
    a("s_load_dwordx4 s[4:7], s[0:1], 0", "s_load_dwordx2 s[8:9], s[0:1], 80")
    a("v_lshrrev_b32 v2, 6, v0", "v_and_b32 v1, 63, v0")
    a("s_and_b32 s10, s2, 7", "s_lshr_b32 s11, s2, 3")
    a("v_readfirstlane_b32 s3, v2")
    WB, XB = 0, 98304
    vX0, vX1, vW = 4, 5, 6
    vXa = [8, 9, 10, 11]; vWa = [12, 13]
    a("v_lshrrev_b32 v2, 3, v1", "v_lshrrev_b32 v3, 4, v1", "v_and_b32 v7, 7, v1", "v_xor_b32 v3, v3, v7",
      "v_lshlrev_b32 v3, 4, v3", f"v_lshl_add_u32 v{vX0}, v2, 10, v3",
      f"v_xor_b32 v{vX1}, 64, v{vX0}", f"v_add_u32 v{vX1}, 0x2000, v{vX1}")
    a("v_bfe_u32 v2, v1, 2, 3", "v_mul_u32_u24 v2, 3072, v2", "v_lshrrev_b32 v3, 5, v1", "v_lshl_add_u32 v2, v3, 6, v2",
      "v_and_b32 v3, 3, v1", f"v_lshl_add_u32 v{vW}, v3, 4, v2")
    a("s_lshl_b32 s24, s11, 16", "s_lshl_b32 s28, s3, 14", "s_add_u32 s24, s24, s28")
    a("s_mul_i32 s25, s3, 49152", "s_lshl_b32 s28, s10, 7", "s_add_u32 s25, s25, s28")
    a("s_lshl_b32 s26, s3, 11", f"s_add_u32 s26, s26, {XB}", "s_mul_i32 s27, s3, 6144")
    a("s_waitcnt lgkmcnt(0)")
    a.srd(12, 4, 5, 2048*512*2)
    a.srd(16, 6, 7, 512*1536*2)
    def issue(s):
        slot = s % 4
        a(f"s_add_u32 m0, s26, {s*8192}", f"s_add_u32 s28, s24, {s*128}",
          f"buffer_load_dwordx4 v{vX0}, s[12:15], s28 offen lds",
          f"s_add_u32 m0, s26, {s*8192+1024}", "s_nop 0",
          f"buffer_load_dwordx4 v{vX1}, s[12:15], s28 offen lds")
        for kh in range(2):
            a(f"s_add_u32 m0, s27, {WB + slot*24576 + kh*3072}", f"s_add_u32 s28, s25, {(64*s + 8*kh)*3072}")
            for mat in range(3):
                a(f"buffer_load_dwordx4 v{vW}, s[16:19], s28 offen offset:{mat*1024} lds")
    for s in range(4): issue(s)
    a.srd(20, 8, 9, 16*MB)
    a("s_lshr_b32 s29, s3, 1", "s_and_b32 s30, s3, 1")
    a("v_and_b32 v2, 31, v1", "v_lshrrev_b32 v3, 5, v1", "v_bfe_u32 v7, v1, 1, 3", "v_xor_b32 v3, v3, v7",
      "v_lshlrev_b32 v3, 4, v3", "v_lshl_add_u32 v2, v2, 7, v3",
      "s_lshl_b32 s28, s29, 12", f"s_add_u32 s28, s28, {XB}", f"v_add_u32 v{vXa[0]}, s28, v2")
    for ks in range(1, 4):
        a(f"v_xor_b32 v{vXa[ks]}, {32*ks}, v{vXa[0]}")
    a("v_lshrrev_b32 v2, 5, v1", "v_mul_u32_u24 v2, 3072, v2", "v_bfe_u32 v3, v1, 2, 2", "v_lshl_add_u32 v2, v3, 6, v2",
      "v_bfe_u32 v3, v1, 4, 1", "v_lshl_add_u32 v2, v3, 5, v2", "v_and_b32 v3, 3, v1", "v_lshl_add_u32 v2, v3, 3, v2",
      "s_lshl_b32 s28, s30, 9", f"v_add_u32 v{vWa[0]}, s28, v2", f"v_add_u32 v{vWa[1]}, 49152, v{vWa[0]}")
    acc = [16, 32, 48]
    fr = [64, 80]
    def reads(s, ks):
        f = fr[ks & 1]; slot = s % 4
        a(f"ds_read_b128 {vr(f,4)}, v{vXa[ks]} offset:{s*8192}")
        base = (slot & 1)*24576 + ks*6144
        for mat in range(3):
            a(f"ds_read_b64_tr_b16 {vr(f+4+4*mat,2)}, v{vWa[slot>>1]} offset:{base + mat*1024}",
              f"ds_read_b64_tr_b16 {vr(f+6+4*mat,2)}, v{vWa[slot>>1]} offset:{base + mat*1024 + 256}")
    vm = [24, 16, 16, 16, 16, 16, 8, 0]
    for s in range(8):
        a(f"s_waitcnt vmcnt({vm[s]})", "s_barrier")
        reads(s, 0)
        if 1 <= s <= 4: issue(s+3)
        for ks in range(4):
            f = fr[ks & 1]
            if ks < 3: reads(s, ks+1)
            extra = 7 if ks < 3 else 0
            for mat in range(3):
                a(f"s_waitcnt lgkmcnt({extra + 4 - 2*mat})")
                C = "0" if (s == 0 and ks == 0) else vr(acc[mat], 16)
                if mat < 2:
                    a(f"{MFMA} {vr(acc[mat],16)}, {vr(f+4+4*mat,4)}, {vr(f,4)}, {C}")
                else:
                    a(f"{MFMA} {vr(acc[mat],16)}, {vr(f,4)}, {vr(f+4+4*mat,4)}, {C}")
    a("s_lshl_b32 s28, s30, 6", f"v_xor_b32 v2, s28, v{vXa[0]}", "s_lshl_b32 s28, s10, 13", "v_add_u32 v2, s28, v2",
      "v_xor_b32 v3, 32, v2", "ds_read_b128 v[64:67], v2", "ds_read_b128 v[68:71], v3")
    a("s_lshl_b32 s31, s11, 1", "s_add_u32 s31, s31, s29", "s_lshl_b32 s32, s10, 2", "s_lshl_b32 s28, s30, 1", "s_add_u32 s32, s32, s28")
    a("s_lshl_b32 s33, s32, 6", "s_add_u32 s33, s33, s31", "s_lshl_b32 s33, s33, 10")
    a("s_lshl_b32 s34, s31, 5", "s_add_u32 s34, s34, s32", "s_lshl_b32 s34, s34, 10", f"s_add_u32 s34, s34, {XF:#x}")
    a("v_lshlrev_b32 v4, 4, v1")
    a("v_and_b32 v2, 0x33, v1", "v_bfe_u32 v3, v1, 2, 1", "v_lshl_add_u32 v2, v3, 3, v2", "v_bfe_u32 v3, v1, 3, 1", "v_lshl_add_u32 v2, v3, 2, v2",
      "v_lshlrev_b32 v5, 4, v2")
    a("v_and_b32 v2, 15, v1", "v_lshlrev_b32 v2, 4, v2", "v_lshrrev_b32 v3, 5, v1", "v_lshl_add_u32 v2, v3, 8, v2",
      "v_bfe_u32 v3, v1, 4, 1", "v_lshl_add_u32 v6, v3, 16, v2")
    a(f"s_mov_b32 s35, {fbits(QSCALE):#x}")
    a("s_waitcnt lgkmcnt(0)")
    a("buffer_store_dwordx4 v[64:67], v4, s[20:23], s34 offen", "buffer_store_dwordx4 v[68:71], v4, s[20:23], s34 offen offset:1024")
    for r in range(16):
        a(f"v_mul_f32 v{16+r}, s35, v{16+r}")
    for mat in range(3):
        for r in range(8):
            a(f"v_cvt_pk_bf16_f32 v{72+8*mat+r}, v{acc[mat]+2*r}, v{acc[mat]+2*r+1}")
    a(f"s_add_u32 s36, s33, {QF:#x}", f"s_add_u32 s37, s33, {QF+65536:#x}",
      "buffer_store_dwordx4 v[72:75], v4, s[20:23], s36 offen", "buffer_store_dwordx4 v[76:79], v4, s[20:23], s37 offen")
    a(f"s_add_u32 s36, s33, {KF:#x}", f"s_add_u32 s37, s33, {KF+65536:#x}",
      "buffer_store_dwordx4 v[80:83], v5, s[20:23], s36 offen", "buffer_store_dwordx4 v[84:87], v5, s[20:23], s37 offen")
    a(f"s_add_u32 s36, s33, {VF:#x}",
      "buffer_store_dwordx4 v[88:91], v6, s[20:23], s36 offen", "buffer_store_dwordx4 v[92:95], v6, s[20:23], s36 offen offset:512")
    a.label(end)
    a("s_endpgm")
    return kernel_desc(name, 96, 48)

VST = 1040
def gen_attn(a, name):
    kernel_header(a, name)
    end = "L_attn_end"
    prologue_ids(a, 256, end)
    a("s_load_dwordx2 s[8:9], s[0:1], 80")
    a("v_lshrrev_b32 v2, 6, v0", "v_and_b32 v1, 63, v0")
    a("s_and_b32 s10, s2, 7", "s_lshl_b32 s10, s10, 2", "s_bfe_u32 s11, s2, 0x20003", "s_add_u32 s10, s10, s11", "s_lshr_b32 s11, s2, 5")
    a("v_readfirstlane_b32 s3, v2")
    a("v_lshlrev_b32 v2, 4, v1")
    KB, VB = 0, 65536
    a("s_lshl_b32 s24, s10, 16")
    a("s_lshl_b32 s25, s11, 3", "s_add_u32 s25, s25, s3", "s_lshl_b32 s25, s25, 10", "s_add_u32 s25, s25, s24")
    a("s_lshl_b32 s26, s3, 10", "s_add_u32 s27, s24, s26")
    a(f"s_mul_i32 s28, s3, {VST}")
    a("s_waitcnt lgkmcnt(0)")
    a.srd(20, 8, 9, 16*MB)
    Q, Kf, V1, V2, IDX = 4, 8, 12, 16, 20
    vK, vV0, vV1 = 21, 22, 23
    NM = 24
    S = [40, 56]; O = 72
    a(f"buffer_load_dwordx4 {vr(Q,4)}, v2, s[20:23], s25 offen")
    for c in range(8):
        a(f"s_add_u32 m0, s26, {KB + c*8192}", f"s_add_u32 s29, s27, {KF + c*8192:#x}",
          "buffer_load_dwordx4 v2, s[20:23], s29 offen lds",
          f"s_add_u32 m0, s28, {VB + c*8*VST}", f"s_add_u32 s29, s27, {VF + c*8192:#x}",
          "buffer_load_dwordx4 v2, s[20:23], s29 offen lds")
    a(f"v_mul_u32_u24 v3, {VST}, v1", f"v_add_u32 v3, {VB+1024}, v3")
    for r in range(4): a(f"v_mov_b32 v{V2+r}, 0x3f803f80")
    a(f"ds_write_b128 v3, {vr(V2,4)}")
    a(f"v_mov_b32 v{IDX}, 0xdddd")
    a("v_and_b32 v3, 15, v1", "v_lshlrev_b32 v3, 4, v3", "v_lshrrev_b32 v24, 5, v1", "v_lshl_add_u32 v3, v24, 8, v3",
      "v_and_b32 v24, 16, v1", "v_cmp_eq_u32 vcc, 0, v24", "v_mov_b32 v24, 1024", "v_add_u32 v25, 512, v3",
      f"v_cndmask_b32 v26, v24, v3, vcc", f"v_cndmask_b32 v27, v24, v25, vcc")
    a(f"v_add_u32 v88, {VB}, v26", f"v_add_u32 v89, {VB}, v27")
    for r in range(16): a(f"v_mov_b32 v{NM+r}, 0")
    a("s_mov_b32 s31, 0")
    a("s_waitcnt vmcnt(14) lgkmcnt(0)", "s_barrier")
    a.label("L_attn_pass")
    a(f"v_mov_b32 v{vK}, v2", f"v_mov_b32 v{vV0}, v88", f"v_mov_b32 v{vV1}, v89")
    for r in range(16): a(f"v_mov_b32 v{O+r}, 0")
    for r in range(8, 16): a(f"v_mov_b32 v{S[1]+r}, 0")
    for r in range(4): a(f"v_mov_b32 v{V2+r}, 0")
    a(f"ds_read_b128 {vr(Kf,4)}, v{vK}", "s_waitcnt lgkmcnt(0)",
      f"{MFMA} {vr(S[0],16)}, {vr(Kf,4)}, {vr(Q,4)}, {vr(NM,16)}",
      f"ds_read_b128 {vr(Kf,4)}, v{vK} offset:1024",
      f"ds_read_b128 {vr(V1,4)}, v{vV0}")
    a.nop(12)
    a("s_mov_b32 s30, 0")
    a.raw(".p2align 6")
    a.label("L_attn_loop")
    SM = "v_smfmac_f32_32x32x32_bf16"
    for t in range(8):
        s = S[t & 1]; sn = S[1 - (t & 1)]
        def E(lo, hi):
            for i in range(lo, hi): a(f"v_exp_f32 v{s+i}, v{s+i}")
        if t == 5:
            lab = a.newlabel("ns")
            a("s_or_b32 s32, s30, s31", "s_cmp_lg_u32 s32, 0", f"s_cbranch_scc1 {lab}", "s_waitcnt vmcnt(0)", "s_barrier")
            a.label(lab)
        E(0, 2)
        a("s_waitcnt lgkmcnt(2)", f"{SM} {vr(O,16)}, {vr(V2,4)}, {vr(sn+8,8)}, v{IDX}",
          f"ds_read_b128 {vr(V2,4)}, v{vV1} offset:{t*VST}")
        E(2, 7)
        a("s_waitcnt lgkmcnt(2)", f"{MFMA} {vr(sn,16)}, {vr(Kf,4)}, {vr(Q,4)}, {vr(NM,16)}",
          f"ds_read_b128 {vr(Kf,4)}, v{vK} offset:{(t+2)*1024}")
        E(7, 12)
        a("s_waitcnt lgkmcnt(2)", f"{SM} {vr(O,16)}, {vr(V1,4)}, {vr(s,8)}, v{IDX}",
          f"ds_read_b128 {vr(V1,4)}, v{vV0} offset:{(t+1)*VST}")
        E(12, 16)
    a(f"v_add_u32 v{vK}, 8192, v{vK}", f"v_add_u32 v{vV0}, {8*VST}, v{vV0}", f"v_add_u32 v{vV1}, {8*VST}, v{vV1}")
    a("s_add_u32 s30, s30, 1", "s_cmp_lt_u32 s30, 8", "s_cbranch_scc1 L_attn_loop")
    a("s_waitcnt lgkmcnt(0)", f"{SM} {vr(O,16)}, {vr(V2,4)}, {vr(S[1]+8,8)}, v{IDX}")
    a.nop(14)
    a("s_cmp_lg_u32 s31, 0", "s_cbranch_scc1 L_attn_fin")
    a(f"v_max3_f32 v3, abs(v{O}), abs(v{O+1}), abs(v{O+2})", f"v_max3_f32 v3, abs(v{O+3}), abs(v{O+4}), v3",
      f"v_max3_f32 v3, abs(v{O+5}), abs(v{O+6}), v3", f"v_max3_f32 v3, abs(v{O+7}), v{O+8}, v3")
    a(f"v_add_f32 v90, v{O}, v{O+1}")
    for r in range(2, 9): a(f"v_add_f32 v90, v90, v{O+r}")
    a("s_mov_b32 s32, 0x5f800000")
    a("v_cmp_ge_f32 vcc, s32, v3", f"v_cmp_le_f32 s[34:35], 1.0, v{O+8}", "v_cmp_o_f32 s[36:37], v90, v90")
    a("s_and_b64 vcc, vcc, s[34:35]", "s_and_b64 vcc, vcc, s[36:37]", "s_cmp_eq_u64 vcc, exec", "s_cbranch_scc1 L_attn_fin")
    a(f"v_mov_b32 v{vK}, v2", "v_mov_b32 v3, 0xff800000", "s_mov_b32 s30, 0")
    a.label("L_attn_max")
    a(f"ds_read_b128 {vr(Kf,4)}, v{vK}", "s_waitcnt lgkmcnt(0)",
      f"{MFMA} {vr(S[0],16)}, {vr(Kf,4)}, {vr(Q,4)}, 0", f"v_add_u32 v{vK}, 1024, v{vK}")
    a.nop(14)
    for r in range(0, 16, 2): a(f"v_max3_f32 v3, v{S[0]+r}, v{S[0]+r+1}, v3")
    a("s_add_u32 s30, s30, 1", "s_cmp_lt_u32 s30, 64", "s_cbranch_scc1 L_attn_max")
    a("v_mov_b32 v90, v3", "s_nop 1", "v_permlane32_swap_b32 v90, v3", "s_nop 1", "v_max_f32 v3, v90, v3")
    for r in range(16): a(f"v_sub_f32 v{NM+r}, 0, v3")
    a("s_mov_b32 s31, 1", "s_branch L_attn_pass")
    a.label("L_attn_fin")
    a(f"v_rcp_f32 v3, v{O+8}", "s_nop 0")
    for r in range(8): a(f"v_mul_f32 v{O+r}, v3, v{O+r}")
    for r in range(4): a(f"v_cvt_pk_bf16_f32 v{Q+r}, v{O+2*r}, v{O+2*r+1}")
    a(f"s_add_u32 s25, s25, {OF:#x}", f"buffer_store_dwordx4 {vr(Q,4)}, v2, s[20:23], s25 offen")
    a.label(end)
    a("s_endpgm")
    return kernel_desc(name, 96, 48)

def gen_g(a, name):
    kernel_header(a, name)
    end = "L_g_end"
    prologue_ids(a, 256, end)
    a("s_load_dwordx4 s[4:7], s[0:1], 32", "s_load_dwordx2 s[8:9], s[0:1], 80", "s_load_dwordx2 s[40:41], s[0:1], 56")
    a("v_lshrrev_b32 v2, 6, v0", "v_and_b32 v1, 63, v0")
    a("s_and_b32 s10, s2, 7", "s_lshl_b32 s10, s10, 1", "s_bfe_u32 s11, s2, 0x10003", "s_add_u32 s10, s10, s11", "s_lshr_b32 s11, s2, 4")
    a("v_readfirstlane_b32 s3, v2")
    a("v_lshlrev_b32 v2, 4, v1")
    a("s_lshl_b32 s24, s11, 2", "s_add_u32 s24, s24, s3")
    a("s_lshl_b32 s25, s24, 15", f"s_add_u32 s25, s25, {XF:#x}")
    a("s_waitcnt lgkmcnt(0)")
    a.srd(12, 4, 5, 512*1376*2)
    a.srd(16, 6, 7, 512*1376*2)
    a.srd(20, 8, 9, 16*MB)
    a.srd(44, 8, 9, HF_BYTES, add=HF)
    a.srd(48, 40, 41, 1024)
    a("s_cmp_eq_u32 s10, 15", "s_cbranch_scc1 L_g_gate")
    vD = [4, 5, 6]
    a("s_mov_b32 s28, 0x15555556")
    for i in range(3):
        a(f"v_add_u32 v3, {64*i}, v1", "v_mul_hi_u32 v7, v3, s28", "v_mul_u32_u24 v8, 12, v7", "v_sub_u32 v8, v3, v8",
          "v_mul_u32_u24 v7, 2752, v7", f"v_lshl_add_u32 v{vD[i]}, v8, 4, v7")
    a("s_and_b32 s29, s3, 1", "s_lshr_b32 s30, s3, 1", "s_cmp_eq_u32 s29, 0",
      "s_cselect_b32 s52, s12, s16", "s_cselect_b32 s53, s13, s17", "s_mov_b32 s54, s14", "s_mov_b32 s55, 0x20000")
    a("s_mul_i32 s26, s10, 192", "s_mul_i32 s28, s30, 44032", "s_add_u32 s26, s26, s28")
    a("s_mul_i32 s27, s29, 3072", "s_mul_i32 s28, s30, 6144", "s_add_u32 s27, s27, s28")
    vT = 9
    a("v_lshrrev_b32 v3, 5, v1", "v_lshlrev_b32 v3, 3, v3", "v_bfe_u32 v7, v1, 2, 2", "v_add_u32 v3, v3, v7", "v_mul_u32_u24 v3, 192, v3",
      "v_bfe_u32 v7, v1, 4, 1", "v_lshl_add_u32 v3, v7, 5, v3", "v_and_b32 v7, 3, v1", f"v_lshl_add_u32 v{vT}, v7, 3, v3")
    NS = 4
    X = [16, 20, 24, 28, 32, 36, 40, 44]
    W = 48
    acc = [72 + 16*i for i in range(6)]
    def issue(st):
        slot = st % NS
        a(f"s_add_u32 s28, s26, {st*32*2752}")
        for i in range(3):
            a(f"s_add_u32 m0, s27, {slot*12288 + i*1024}", "s_nop 0", f"buffer_load_dwordx4 v{vD[i]}, s[52:55], s28 offen lds")
        a(f"s_add_u32 s28, s25, {st*2048}")
        for e in range(2):
            a(f"buffer_load_dwordx4 {vr(X[slot*2+e],4)}, v2, s[20:23], s28 offen offset:{e*1024}")
    for st in range(3): issue(st)
    for st in range(16):
        slot = st % NS
        a(f"s_waitcnt vmcnt({5*min(2, 15-st)})", "s_barrier")
        if st + 3 < 16: issue(st+3)
        for e in range(2):
            for mat in range(2):
                for ct in range(3):
                    o = slot*12288 + e*6144 + mat*3072 + ct*64
                    f = W + 4*(mat*3+ct)
                    a(f"ds_read_b64_tr_b16 {vr(f,2)}, v{vT} offset:{o}", f"ds_read_b64_tr_b16 {vr(f+2,2)}, v{vT} offset:{o+768}")
            for i in range(6):
                C = "0" if (st == 0 and e == 0) else vr(acc[i], 16)
                a(f"s_waitcnt lgkmcnt({10-2*i})", f"{MFMA} {vr(acc[i],16)}, {vr(W+4*i,4)}, {vr(X[slot*2+e],4)}, {C}")
    a.nop(14)
    a(f"s_mov_b32 s28, {fbits(-math.log2(math.e)):#x}")
    a("s_mul_i32 s29, s10, 6", "s_lshl_b32 s29, s29, 16", "s_lshl_b32 s30, s24, 10", "s_add_u32 s29, s29, s30")
    for ct in range(3):
        g, u = acc[ct], acc[3+ct]
        for r in range(16): a(f"v_mul_f32 v{g+r}, s28, v{g+r}")
        for r in range(16): a(f"v_exp_f32 v{g+r}, v{g+r}")
        for r in range(16): a(f"v_add_f32 v{g+r}, 1.0, v{g+r}")
        for r in range(16): a(f"v_rcp_f32 v{g+r}, v{g+r}")
        for r in range(16): a(f"v_mul_f32 v{g+r}, v{u+r}, v{g+r}")
        for r in range(8): a(f"v_cvt_pk_bf16_f32 v{u+r}, v{g+2*r}, v{g+2*r+1}")
        a(f"s_add_u32 s30, s29, {ct*2*65536}", f"s_add_u32 s31, s29, {(ct*2+1)*65536}",
          f"buffer_store_dwordx4 {vr(u,4)}, v2, s[44:47], s30 offen", f"buffer_store_dwordx4 {vr(u+4,4)}, v2, s[44:47], s31 offen")
    a("s_endpgm")
    a.label("L_g_gate")
    a("v_lshrrev_b32 v3, 5, v1", "v_lshlrev_b32 v3, 4, v3")
    for blk in range(4):
        for e in range(8):
            ks = blk*8 + e
            if e % 4 == 0: a(f"s_add_u32 s28, s25, {ks*1024}")
            a(f"buffer_load_dwordx4 {vr(16+4*e,4)}, v2, s[20:23], s28 offen offset:{(e%4)*1024}",
              f"buffer_load_dwordx4 {vr(48+4*e,4)}, v3, s[48:51], 0 offen offset:{ks*32}")
        a("s_waitcnt vmcnt(0)")
        for e in range(8):
            C = "0" if (blk == 0 and e == 0) else vr(80, 16)
            a(f"{MFMA} {vr(80,16)}, {vr(48+4*e,4)}, {vr(16+4*e,4)}, {C}")
    a.nop(14)
    a(f"s_mov_b32 s28, {fbits(-math.log2(math.e)):#x}", "v_mul_f32 v80, s28, v80", "v_exp_f32 v80, v80", "s_nop 0", "v_add_f32 v80, 1.0, v80",
      "v_rcp_f32 v80, v80", "v_and_b32 v3, 31, v1", "v_lshlrev_b32 v3, 2, v3", "s_lshl_b32 s28, s24, 7", f"s_add_u32 s28, s28, {GT:#x}",
      "buffer_store_dword v80, v3, s[20:23], s28 offen")
    a.label(end)
    a("s_endpgm")
    return kernel_desc(name, 168, 64)

def gen_d(a, name):
    kernel_header(a, name)
    end = "L_d_end"
    prologue_ids(a, 256, end)
    a("s_load_dwordx2 s[4:5], s[0:1], 48", "s_load_dwordx2 s[8:9], s[0:1], 80")
    a("v_lshrrev_b32 v2, 6, v0", "v_and_b32 v1, 63, v0")
    a("s_and_b32 s10, s2, 7", "s_lshl_b32 s10, s10, 2", "s_bfe_u32 s11, s2, 0x20003", "s_add_u32 s10, s10, s11", "s_lshr_b32 s11, s2, 5")
    a("v_readfirstlane_b32 s3, v2")
    a("v_lshlrev_b32 v2, 4, v1")
    vW, vT = 4, 5
    a("v_bfe_u32 v3, v1, 2, 3", "v_lshlrev_b32 v3, 10, v3", "v_lshrrev_b32 v7, 5, v1", "v_lshl_add_u32 v3, v7, 6, v3",
      "v_and_b32 v7, 3, v1", f"v_lshl_add_u32 v{vW}, v7, 4, v3")
    NS = 3
    a("s_mul_i32 s24, s3, 22", "s_lshl_b32 s25, s24, 16", "s_lshl_b32 s28, s10, 11", "s_add_u32 s25, s25, s28")
    a("s_lshl_b32 s26, s24, 14", "s_lshl_b32 s28, s11, 7", "s_add_u32 s26, s26, s28")
    a(f"s_mul_i32 s27, s3, {NS*2048}")
    a("v_lshrrev_b32 v3, 5, v1", "v_lshlrev_b32 v3, 2, v3", "v_bfe_u32 v7, v1, 2, 2", "v_add_u32 v3, v3, v7", "v_lshlrev_b32 v3, 6, v3",
      "v_bfe_u32 v7, v1, 4, 1", "v_lshl_add_u32 v3, v7, 5, v3", "v_and_b32 v7, 3, v1", "v_lshl_add_u32 v3, v7, 3, v3", f"v_add_u32 v{vT}, s27, v3")
    a("s_waitcnt lgkmcnt(0)")
    a.srd(12, 4, 5, 1376*512*2)
    a.srd(20, 8, 9, 16*MB)
    a.srd(44, 8, 9, HF_BYTES, add=HF)
    H = [8, 16, 24]; W = 32
    acc = [40 + 16*i for i in range(4)]
    def issue(k):
        slot = k % NS
        for o in range(2):
            a(f"s_add_u32 m0, s27, {slot*2048 + o*1024}", f"s_add_u32 s28, s26, {(k*16 + o*8)*1024}",
              f"buffer_load_dwordx4 v{vW}, s[12:15], s28 offen lds")
        a(f"s_add_u32 s28, s25, {k*65536}")
        for rt in range(2):
            a(f"buffer_load_dwordx4 {vr(H[slot]+4*rt,4)}, v2, s[44:47], s28 offen offset:{rt*1024}")
    issue(0); issue(1)
    for k in range(22):
        slot = k % NS
        if k + 2 < 22: issue(k+2)
        a(f"s_waitcnt vmcnt({4*min(2, 21-k)})")
        for ct in range(2):
            a(f"ds_read_b64_tr_b16 {vr(W+4*ct,2)}, v{vT} offset:{slot*2048 + ct*512}",
              f"ds_read_b64_tr_b16 {vr(W+4*ct+2,2)}, v{vT} offset:{slot*2048 + ct*512 + 1024}")
        for ct in range(2):
            a(f"s_waitcnt lgkmcnt({2-2*ct})")
            for rt in range(2):
                C = "0" if k == 0 else vr(acc[ct*2+rt], 16)
                a(f"{MFMA} {vr(acc[ct*2+rt],16)}, {vr(W+4*ct,4)}, {vr(H[slot]+4*rt,4)}, {C}")
    a.nop(14)
    a("s_barrier")
    a("s_lshl_b32 s28, s3, 14", "v_add_u32 v3, s28, v2")
    for t in range(4):
        for q in range(4):
            a(f"ds_write_b128 v3, {vr(acc[t]+4*q,4)} offset:{t*4096 + q*1024}")
    a("s_waitcnt lgkmcnt(0)", "s_barrier")
    a("s_lshl_b32 s28, s3, 12", "v_add_u32 v3, s28, v2")
    for w in range(4):
        for q in range(4):
            a(f"ds_read_b128 {vr(acc[w]+4*q,4)}, v3 offset:{w*16384 + q*1024}")
        if w == 1: a("s_waitcnt lgkmcnt(0)")
    a("s_waitcnt lgkmcnt(0)")
    for r in range(16):
        a(f"v_add_f32 v{acc[0]+r}, v{acc[0]+r}, v{acc[1]+r}", f"v_add_f32 v{acc[2]+r}, v{acc[2]+r}, v{acc[3]+r}")
    for r in range(16):
        a(f"v_add_f32 v{acc[0]+r}, v{acc[0]+r}, v{acc[2]+r}")
    for r in range(8):
        a(f"v_cvt_pk_bf16_f32 v{8+r}, v{acc[0]+2*r}, v{acc[0]+2*r+1}")
    a("s_lshl_b32 s28, s10, 3", "s_add_u32 s28, s28, s11", "s_lshl_b32 s28, s28, 2", "s_add_u32 s28, s28, s3", "s_lshl_b32 s28, s28, 11",
      f"s_add_u32 s28, s28, {BF:#x}",
      "buffer_store_dwordx4 v[8:11], v2, s[20:23], s28 offen", "buffer_store_dwordx4 v[12:15], v2, s[20:23], s28 offen offset:1024")
    a.label(end)
    a("s_endpgm")
    return kernel_desc(name, 104, 64)

def gen_out(a, name):
    kernel_header(a, name)
    end = "L_out_end"
    prologue_ids(a, 256, end)
    a("s_load_dwordx2 s[4:5], s[0:1], 16", "s_load_dwordx2 s[8:9], s[0:1], 80", "s_load_dwordx2 s[6:7], s[0:1], 64")
    a("v_lshrrev_b32 v2, 6, v0", "v_and_b32 v1, 63, v0")
    a("s_and_b32 s10, s2, 7", "s_lshl_b32 s10, s10, 2", "s_bfe_u32 s11, s2, 0x20003", "s_add_u32 s10, s10, s11", "s_lshr_b32 s11, s2, 5")
    a("v_readfirstlane_b32 s3, v2")
    a("v_lshlrev_b32 v2, 4, v1")
    vW, vT, vO = 4, 5, 6
    a("v_bfe_u32 v3, v1, 2, 3", "v_lshlrev_b32 v3, 10, v3", "v_lshrrev_b32 v7, 5, v1", "v_lshl_add_u32 v3, v7, 6, v3",
      "v_and_b32 v7, 3, v1", f"v_lshl_add_u32 v{vW}, v7, 4, v3")
    OB, WB = 0, 65536
    a("s_lshl_b32 s24, s3, 17", "s_lshl_b32 s28, s10, 11", "s_add_u32 s24, s24, s28", f"s_add_u32 s24, s24, {OF:#x}")
    a("s_lshl_b32 s25, s3, 15", "s_lshl_b32 s28, s11, 7", "s_add_u32 s25, s25, s28")
    a("s_lshl_b32 s26, s3, 12")
    a("s_lshr_b32 s29, s3, 1", "s_and_b32 s30, s3, 1")
    a("s_waitcnt lgkmcnt(0)")
    a.srd(12, 4, 5, 512*512*2)
    a.srd(20, 8, 9, 16*MB)
    for c in range(4):
        for e in range(2):
            h = 8*c + e
            a(f"s_add_u32 m0, s26, {OB + h*2048}", f"s_add_u32 s28, s24, {h*65536}",
              "buffer_load_dwordx4 v2, s[20:23], s28 offen lds", "buffer_load_dwordx4 v2, s[20:23], s28 offen offset:1024 lds")
            for o in range(2):
                a(f"s_add_u32 m0, s26, {WB + h*2048 + o*1024}", f"s_add_u32 s28, s25, {(h*16 + o*8)*1024}",
                  f"buffer_load_dwordx4 v{vW}, s[12:15], s28 offen lds")
    a.srd(16, 6, 7, 2048*512*2)
    Bv, Gv = 40, 48
    a("s_lshl_b32 s28, s10, 3", "s_add_u32 s28, s28, s11", "s_lshl_b32 s28, s28, 2", "s_add_u32 s28, s28, s3", "s_lshl_b32 s28, s28, 11",
      f"s_add_u32 s28, s28, {BF:#x}",
      f"buffer_load_dwordx4 {vr(Bv,4)}, v2, s[20:23], s28 offen", f"buffer_load_dwordx4 {vr(Bv+4,4)}, v2, s[20:23], s28 offen offset:1024")
    a("s_lshl_b32 s31, s10, 1", "s_add_u32 s31, s31, s30", "s_lshl_b32 s28, s31, 7", f"s_add_u32 s28, s28, {GT:#x}",
      "v_and_b32 v3, 31, v1", "v_lshlrev_b32 v3, 2, v3", f"buffer_load_dword v{Gv}, v3, s[20:23], s28 offen")
    a("v_lshrrev_b32 v3, 5, v1", "v_lshlrev_b32 v3, 2, v3", "v_bfe_u32 v7, v1, 2, 2", "v_add_u32 v3, v3, v7", "v_lshlrev_b32 v3, 6, v3",
      "v_bfe_u32 v7, v1, 4, 1", "v_lshl_add_u32 v3, v7, 5, v3", "v_and_b32 v7, 3, v1", "v_lshl_add_u32 v3, v7, 3, v3",
      "s_lshl_b32 s28, s29, 9", f"s_add_u32 s28, s28, {WB}", f"v_add_u32 v{vT}, s28, v3")
    a("s_lshl_b32 s28, s30, 10", f"v_add_u32 v{vO}, s28, v2")
    acc = 16
    F = [52 + 8*i for i in range(4)]
    def reads(h):
        f = F[h % 4]
        a(f"ds_read_b128 {vr(f,4)}, v{vO} offset:{h*2048}",
          f"ds_read_b64_tr_b16 {vr(f+4,2)}, v{vT} offset:{h*2048}", f"ds_read_b64_tr_b16 {vr(f+6,2)}, v{vT} offset:{h*2048+1024}")
    for c in range(4):
        a(f"s_waitcnt vmcnt({8*(3-c)+3})", "s_barrier")
        for e in range(3): reads(8*c+e)
        for e in range(8):
            h = 8*c + e
            if e + 3 < 8: reads(h+3)
            a(f"s_waitcnt lgkmcnt({3*min(3, 7-e)})")
            C = "0" if h == 0 else vr(acc, 16)
            a(f"{MFMA} {vr(acc,16)}, {vr(F[h%4]+4,4)}, {vr(F[h%4],4)}, {C}")
    a("s_waitcnt vmcnt(0)")
    a("v_and_b32 v3, 31, v1", "v_lshlrev_b32 v3, 10, v3", "v_lshrrev_b32 v7, 5, v1", "v_lshl_add_u32 v3, v7, 4, v3",
      "s_lshl_b32 s28, s31, 15", "s_lshl_b32 s32, s11, 7", "s_add_u32 s28, s28, s32", "s_lshl_b32 s32, s29, 6", "s_add_u32 s28, s28, s32")
    a(f"v_sub_f32 v{Gv+1}, 1.0, v{Gv}")
    for r in range(8):
        a(f"v_lshlrev_b32 v{52+2*r}, 16, v{Bv+r}", f"v_and_b32 v{53+2*r}, 0xffff0000, v{Bv+r}")
    for r in range(16):
        a(f"v_mul_f32 v{52+r}, v{Gv+1}, v{52+r}")
    for r in range(16):
        a(f"v_fmac_f32 v{52+r}, v{Gv}, v{acc+r}")
    for r in range(8):
        a(f"v_cvt_pk_bf16_f32 v{Bv+r}, v{52+2*r}, v{53+2*r}")
    a("s_nop 1")
    for p in range(2):
        b = Bv + 4*p
        a(f"v_permlane32_swap_b32 v{b}, v{b+2}", f"v_permlane32_swap_b32 v{b+1}, v{b+3}")
    a(f"buffer_store_dwordx4 {vr(Bv,4)}, v3, s[16:19], s28 offen", f"buffer_store_dwordx4 {vr(Bv+4,4)}, v3, s[16:19], s28 offen offset:32")
    a.label(end)
    a("s_endpgm")
    return kernel_desc(name, 88, 48)

HEADER = open("gated_mix__mha_block__glu_gated_glu__prompt.s.ref").read().split("; Override launch")[0]

def build():
    a = Asm()
    launches = [("qkv_kernel", 256, 256, 163840), ("glu_g_kernel", 256, 256, 49152), ("attn_kernel", 256, 512, 65536 + 65*VST),
                ("glu_d_kernel", 256, 256, 65536), ("out_kernel", 256, 256, 131072)]
    txt = HEADER
    for n, g, b, l in launches:
        txt += f"; @launch kernel={n} grid=({g},1,1) block=({b},1,1) lds={l}\n"
    txt += '.amdgcn_target "amdgcn-amd-amdhsa--gfx950"\n.text\n'
    descs = [gen_qkv(a, "qkv_kernel"), gen_g(a, "glu_g_kernel"), gen_attn(a, "attn_kernel"), gen_d(a, "glu_d_kernel"), gen_out(a, "out_kernel")]
    txt += a.text()
    txt += '.section .rodata,"a"\n' + "".join(descs)
    return txt

if __name__ == "__main__":
    out = sys.argv[1] if len(sys.argv) > 1 else "gated_mix__mha_block__glu_gated_glu__prompt.s"
    open(out, "w").write(build())
    print("wrote", out)
```

```python
import gen1
from asmlib import *
def variant(order, path):
    a = Asm()
    L = {"q": ("qkv_kernel", 256, 256, 163840), "g": ("glu_g_kernel", 256, 256, 49152), "a": ("attn_kernel", 256, 512, 65536 + 65*gen1.VST),
         "d": ("glu_d_kernel", 256, 256, 65536), "o": ("out_kernel", 256, 256, 131072), "n": ("nop_kernel", 256, 256, 0)}
    txt = gen1.HEADER
    for ch in order:
        n, g, b, l = L[ch]
        txt += f"; @launch kernel={n} grid=({g},1,1) block=({b},1,1) lds={l}\n"
    txt += '.amdgcn_target "amdgcn-amd-amdhsa--gfx950"\n.text\n'
    descs = [gen1.gen_qkv(a, "qkv_kernel"), gen1.gen_g(a, "glu_g_kernel"), gen1.gen_attn(a, "attn_kernel"), gen1.gen_d(a, "glu_d_kernel"), gen1.gen_out(a, "out_kernel")]
    if "n" in order:
        kernel_header(a, "nop_kernel"); a("s_endpgm"); descs.append(kernel_desc("nop_kernel", 8, 16))
    txt += a.text() + '.section .rodata,"a"\n' + "".join(descs)
    open(path, "w").write(txt)
for o in ["qgado", "qgadonnnn", "qgaado", "qqgado", "qggado", "qgaddoo"]:
    variant(o, f"var/v_{o}.s")
```

```python
import sys, math, struct
from asmlib import *

MB = 1 << 20
QF, KF, VF, XF, OF, GT, FL, ST, HF = 0, 2*MB, 4*MB, 6*MB, 8*MB, 12*MB, 13*MB, 14*MB, 16*MB
FQ, FX, FH, FO = FL, FL + 0x1000, FL + 0x4000, FL + 0x6000
HF_BYTES = 86 * 65536
QSCALE = 0.25 * math.log2(math.e)
LOG2E = math.log2(math.e)
def fbits(x): return struct.unpack("<I", struct.pack("<f", x))[0]
MFMA = "v_mfma_f32_32x32x16_bf16"
SM = "v_smfmac_f32_32x32x32_bf16"
NAME = "gated_mix__mha_block__glu_gated_glu__prompt_kernel"
rX, rWQ, rWS, rHF, rWG, rWD, rWO, rOUT, rGW, rDBG = [f"s[{i}:{i+3}]" for i in range(8, 48, 4)]
P1W, P1X = 0, 98304
KB, VB, VST = 0, 65536, 1040
RING = VB + 64*VST
CB = RING + 30720
cNONCE, cP1, cA, cALL, cPASS, cG, cEX = 0, 4, 8, 16, 20, 28, 32
vCB, vONE, vPOLL = 4, 5, 6
sN, sBUD = 70, 83
OPT = dict(stamp=False)

def stamp(a, i):
    if OPT["stamp"]:
        a(f"s_memrealtime s[{84+2*i}:{85+2*i}]", "s_waitcnt lgkmcnt(0)")
def stamp_end(a, kidx, nw, wsub):
    if not OPT["stamp"]: return
    a("s_waitcnt vmcnt(0)", "s_memrealtime s[98:99]", "s_waitcnt lgkmcnt(0)")
    for j in range(8): a(f"v_mov_b32 v{8+j}, s{84+2*j}")
    a(f"s_mul_i32 s71, s2, {nw}", "s_add_u32 s71, s71, s3", f"s_sub_u32 s71, s71, {wsub}", "s_lshl_b32 s71, s71, 5", f"s_add_u32 s71, s71, {ST + kidx*131072:#x}",
      "v_mov_b32 v7, 0", "s_mov_b64 exec, 1",
      f"buffer_store_dwordx4 v[8:11], v7, {rWS}, s71 offen", f"buffer_store_dwordx4 v[12:15], v7, {rWS}, s71 offen offset:16")

def lds_arrive(a, off, vaddr=vCB):
    a("s_mov_b64 exec, 1", f"ds_add_u32 v{vaddr}, v{vONE} offset:{off}", "s_mov_b64 exec, -1")
def lds_wait(a, off, target, pre=False, prio=None, vaddr=vCB):
    lp, dn = a.newlabel("lw"), a.newlabel("lwd")
    if pre:
        chk = a.newlabel("lwc")
        a(f"s_branch {chk}") if False else None
    if not pre:
        a(f"ds_read_b32 v{vPOLL}, v{vaddr} offset:{off}")
    a.label(lp)
    a("s_waitcnt lgkmcnt(0)")
    if prio is not None: a("s_setprio 3")
    a(f"v_readfirstlane_b32 s82, v{vPOLL}")
    if prio is not None: a(f"s_setprio {prio}")
    a(f"s_cmp_ge_u32 s82, {target}", f"s_cbranch_scc1 {dn}",
      f"ds_read_b32 v{vPOLL}, v{vaddr} offset:{off}",
      f"s_sub_u32 s{sBUD}, s{sBUD}, 1", f"s_cbranch_scc0 {lp}", f"s_mov_b32 s{sBUD}, 0", "s_waitcnt lgkmcnt(0)")
    a.label(dn)
def gpoll(a, vaddr, soff, sleep=2):
    lp, dn = a.newlabel("gp"), a.newlabel("gpd")
    a.label(lp)
    a(f"buffer_load_dword v{vPOLL}, v{vaddr}, {rWS}, {soff} offen sc1", "s_waitcnt vmcnt(0)",
      f"v_cmp_ne_u32 vcc, s{sN}, v{vPOLL}", f"s_cbranch_vccz {dn}", f"s_sleep {sleep}",
      f"s_sub_u32 s{sBUD}, s{sBUD}, 1", f"s_cbranch_scc0 {lp}", f"s_mov_b32 s{sBUD}, 0")
    a.label(dn)
def flag_store(a, soff):
    a(f"v_mov_b32 v3, s{sN}", "s_mov_b64 exec, 1", f"buffer_store_dword v3, off, {rWS}, {soff} sc1", "s_mov_b64 exec, -1")

class VQ:
    def __init__(self, a): self.a = a; self.q = []
    def issue(self, tag): self.q.append(tag)
    def wait(self, *tags):
        idx = max([i for i, t in enumerate(self.q) if t in tags], default=-1)
        if idx < 0: return
        n = len(self.q) - 1 - idx
        assert n <= 63
        self.a(f"s_waitcnt vmcnt({n})")
        self.q = self.q[idx+1:]
    def drain(self):
        self.q = []

def build_srds_rest(a):
    a.srd(20, 68, 69, HF_BYTES, add=HF)
    a.srd(28, 60, 61, 1376*512*2)
    a.srd(32, 52, 53, 512*512*2)
    a.srd(36, 64, 65, 2048*512*2)
    a.srd(40, 62, 63, 1024)

def gen(a):
    kernel_header(a, NAME)
    a("s_cmp_ge_u32 s2, 256", "s_cbranch_scc1 L_end")
    a("s_load_dwordx16 s[48:63], s[0:1], 0", "s_load_dwordx4 s[64:67], s[0:1], 64", "s_load_dwordx2 s[68:69], s[0:1], 80")
    if OPT["stamp"]: a("s_memrealtime s[84:85]")
    a("v_lshrrev_b32 v2, 6, v0", "v_and_b32 v1, 63, v0")
    a("s_bfe_u32 s71, s2, 0x20003", "s_lshr_b32 s7, s2, 5", "s_and_b32 s4, s2, 1", "s_lshl2_add_u32 s4, s4, s71")
    a("v_readfirstlane_b32 s3, v2")
    a("s_bfe_u32 s5, s2, 0x20001", "s_lshl3_add_u32 s5, s5, s7", "s_and_b32 s6, s2, 7", "s_lshl2_add_u32 s6, s6, s71")
    a("v_lshlrev_b32 v2, 4, v1", f"v_mov_b32 v{vCB}, {CB}", f"v_mov_b32 v{vONE}, 1", f"s_mov_b32 s{sBUD}, 200000")
    a("s_add_u32 s72, s4, s5", "s_and_b32 s72, s72, 7")
    a("s_cmp_ge_u32 s3, 8", "s_cbranch_scc1 L_gwave")
    gen_awave(a)
    a.raw(".p2align 6")
    a.label("L_gwave")
    gen_gwave(a)
    a.label("L_end")
    a("s_endpgm")
    return kernel_desc(NAME, 168, 102)

def gen_awave(a):
    vXa = [8, 9, 10, 11]; vWa = [12, 13]
    a("s_bfe_u32 s73, s3, 0x10001", "s_and_b32 s74, s3, 1", "s_lshr_b32 s75, s3, 2")
    a("v_and_b32 v14, 31, v1", "v_lshrrev_b32 v3, 5, v1", "v_bfe_u32 v7, v1, 1, 3", "v_xor_b32 v3, v3, v7",
      "v_lshlrev_b32 v3, 4, v3", "v_lshl_add_u32 v14, v14, 7, v3",
      "s_lshl_b32 s76, s73, 12", f"s_add_u32 s76, s76, {P1X}", f"v_add_u32 v{vXa[0]}, s76, v14")
    for ks in range(1, 4):
        a(f"v_xor_b32 v{vXa[ks]}, {32*ks}, v{vXa[0]}")
    a("v_lshrrev_b32 v14, 5, v1", "v_mul_u32_u24 v14, 3072, v14", "v_bfe_u32 v3, v1, 2, 2", "v_lshl_add_u32 v14, v3, 6, v14",
      "v_bfe_u32 v3, v1, 4, 1", "v_lshl_add_u32 v14, v3, 5, v14", "v_and_b32 v3, 3, v1", "v_lshl_add_u32 v14, v3, 3, v14",
      "s_lshl_b32 s76, s74, 9", f"v_add_u32 v{vWa[0]}, s76, v14", f"v_add_u32 v{vWa[1]}, 49152, v{vWa[0]}")
    for r in range(16, 48): a(f"v_mov_b32 v{r}, 0")
    a("s_waitcnt lgkmcnt(0)")
    a.srd(16, 68, 69, 16*MB)
    a.srd(44, 66, 67, 256)
    a("s_lshl1_add_u32 s77, s5, s73", "s_lshl_b32 s78, s4, 2", "s_lshl1_add_u32 s78, s74, s78")
    a("s_cmp_lg_u32 s3, 0", "s_cbranch_scc1 L_a_nononce")
    a("v_lshl_add_u32 v3, v1, 2, v4", "ds_write_b32 v3, v16")
    a("s_cmp_lg_u32 s2, 0", "s_cbranch_scc1 L_a_getnonce")
    a("s_memrealtime s[80:81]", "s_waitcnt lgkmcnt(0)", "s_or_b32 s79, s80, 1", "v_mov_b32 v3, s79",
      "s_mov_b64 exec, 1", f"buffer_store_dword v3, off, {rDBG}, 0 sc1", "s_mov_b64 exec, -1")
    a.label("L_a_getnonce")
    a(f"buffer_load_dword v3, off, {rDBG}, 0 sc1", "s_waitcnt vmcnt(0)", "v_cmp_eq_u32 vcc, 0, v3", "s_cbranch_vccz L_a_gotnonce",
      "s_sleep 1", f"s_sub_u32 s{sBUD}, s{sBUD}, 1", "s_cbranch_scc0 L_a_getnonce", f"s_mov_b32 s{sBUD}, 0")
    a.label("L_a_gotnonce")
    a(f"ds_write_b32 v{vCB}, v3 offset:{cNONCE}", "s_waitcnt lgkmcnt(0)")
    a.label("L_a_nononce")
    stamp(a, 1)
    a("s_mov_b32 s79, 0")
    a("s_cmp_lg_u32 s75, 0", "s_cbranch_scc1 L_p1v")
    fr = [64, 80]
    def p1loop(isv):
        mats = [2] if isv else [0, 1]
        acc = {0: 16, 1: 32, 2: 16}
        nrd = 1 + 2*len(mats)
        def reads(slot, ks):
            f = fr[ks & 1]
            a(f"ds_read_b128 {vr(f,4)}, v{vXa[ks]} offset:{slot*8192}")
            base = (slot & 1)*24576 + ks*6144
            for i, mat in enumerate(mats):
                a(f"ds_read_b64_tr_b16 {vr(f+4+4*i,2)}, v{vWa[slot>>1]} offset:{base + mat*1024}",
                  f"ds_read_b64_tr_b16 {vr(f+6+4*i,2)}, v{vWa[slot>>1]} offset:{base + mat*1024 + 256}")
        lab = "L_p1v_loop" if isv else "L_p1q_loop"
        a.label(lab)
        for slot in range(4):
            a("s_barrier")
            if slot == 0:
                sk = a.newlabel("p1s")
                a("s_cmp_lg_u32 s79, 0", f"s_cbranch_scc1 {sk}")
                stamp(a, 2)
                a(f"ds_read_b32 v3, v{vCB} offset:{cNONCE}")
                if isv:
                    a("s_lshl_b32 s76, s74, 6", f"v_xor_b32 v14, s76, v{vXa[0]}", "v_xor_b32 v15, 32, v14",
                      "ds_read_b128 v[96:99], v14", "ds_read_b128 v[100:103], v15")
                    a("s_lshl_b32 s76, s77, 3", "s_add_u32 s76, s76, s72", "s_lshl1_add_u32 s76, s76, s74", "s_lshl_b32 s76, s76, 11", f"s_add_u32 s76, s76, {XF:#x}")
                a("s_waitcnt lgkmcnt(0)", f"v_readfirstlane_b32 s{sN}, v3")
                if isv:
                    a(f"buffer_store_dwordx4 v[96:99], v2, {rWS}, s76 offen sc1", f"buffer_store_dwordx4 v[100:103], v2, {rWS}, s76 offen offset:1024 sc1")
                a.label(sk)
            if slot == 2 and isv:
                sk = a.newlabel("p1s")
                a("s_cmp_lg_u32 s79, 0", f"s_cbranch_scc1 {sk}")
                a("s_lshl_b32 s76, s77, 5", "s_lshl1_add_u32 s76, s4, s76", "s_add_u32 s76, s76, s74", "s_lshl_b32 s76, s76, 2", f"s_add_u32 s76, s76, {FX:#x}",
                  "s_waitcnt vmcnt(0)")
                flag_store(a, "s76")
                a.label(sk)
            reads(slot, 0)
            for ks in range(4):
                f = fr[ks & 1]
                if ks < 3: reads(slot, ks+1)
                extra = nrd if ks < 3 else 0
                for i, mat in enumerate(mats):
                    a(f"s_waitcnt lgkmcnt({extra + nrd - 3 - 2*i})")
                    if mat < 2: a(f"{MFMA} {vr(acc[mat],16)}, {vr(f+4+4*i,4)}, {vr(f,4)}, {vr(acc[mat],16)}")
                    else: a(f"{MFMA} {vr(acc[mat],16)}, {vr(f,4)}, {vr(f+4+4*i,4)}, {vr(acc[mat],16)}")
        a("s_add_u32 s79, s79, 1", "s_cmp_lt_u32 s79, 2", f"s_cbranch_scc1 {lab}")
    p1loop(False)
    a("s_lshl_b32 s76, s78, 6", "s_add_u32 s76, s76, s77", "s_lshl_b32 s76, s76, 10")
    a("v_and_b32 v14, 0x33, v1", "v_bfe_u32 v3, v1, 2, 1", "v_lshl_add_u32 v14, v3, 3, v14", "v_bfe_u32 v3, v1, 3, 1", "v_lshl_add_u32 v14, v3, 2, v14",
      "v_lshlrev_b32 v14, 4, v14")
    a(f"s_mov_b32 s80, {fbits(QSCALE):#x}", f"s_add_u32 s79, s76, {QF+65536:#x}", "s_nop 1")
    for r in range(0, 16, 2): a(f"v_pk_mul_f32 {vr(16+r,2)}, {vr(16+r,2)}, s[80:81] op_sel_hi:[1,0]")
    for r in range(8): a(f"v_cvt_pk_bf16_f32 v{64+r}, v{16+2*r}, v{17+2*r}")
    a(f"buffer_store_dwordx4 v[64:67], v2, {rWS}, s76 offen sc1", f"buffer_store_dwordx4 v[68:71], v2, {rWS}, s79 offen sc1")
    for r in range(8): a(f"v_cvt_pk_bf16_f32 v{72+r}, v{32+2*r}, v{33+2*r}")
    a(f"s_add_u32 s76, s76, {KF:#x}", f"s_add_u32 s79, s76, 0x10000",
      f"buffer_store_dwordx4 v[72:75], v14, {rWS}, s76 offen sc1", f"buffer_store_dwordx4 v[76:79], v14, {rWS}, s79 offen sc1")
    a("s_branch L_p1done")
    a.label("L_p1v")
    p1loop(True)
    a("s_lshl_b32 s76, s78, 6", "s_add_u32 s76, s76, s77", "s_lshl_b32 s76, s76, 10", f"s_add_u32 s76, s76, {VF:#x}")
    a("v_and_b32 v14, 15, v1", "v_lshlrev_b32 v14, 4, v14", "v_lshrrev_b32 v3, 5, v1", "v_lshl_add_u32 v14, v3, 8, v14",
      "v_bfe_u32 v3, v1, 4, 1", "v_lshl_add_u32 v14, v3, 16, v14", "s_nop 1")
    for r in range(8): a(f"v_cvt_pk_bf16_f32 v{64+r}, v{16+2*r}, v{17+2*r}")
    a(f"buffer_store_dwordx4 v[64:67], v14, {rWS}, s76 offen sc1", f"buffer_store_dwordx4 v[68:71], v14, {rWS}, s76 offen offset:512 sc1")
    a.label("L_p1done")
    stamp(a, 3)
    Qa, Qb, Kf, V1, V2, IDX, vK, vV0, vV1, Sa, Sb, Oa, Ob = 8, 12, 16, 20, 24, 28, 29, 30, 31, 32, 48, 64, 80
    a("s_and_b32 s73, s3, 3")
    a("s_lshl_b32 s74, s75, 15", f"v_add_u32 v{vK}, s74, v2")
    a("v_and_b32 v3, 15, v1", "v_lshlrev_b32 v3, 4, v3", "v_lshrrev_b32 v7, 5, v1", "v_lshl_add_u32 v3, v7, 8, v3",
      "v_and_b32 v7, 27, v1", "v_cmp_eq_u32 vcc, 16, v7", "v_mov_b32 v14, 0x18000", "v_mov_b32 v15, 1024",
      "v_cndmask_b32 v14, v14, v15, vcc",
      "v_and_b32 v7, 16, v1", "v_cmp_eq_u32 vcc, 0, v7", "v_add_u32 v15, 512, v3",
      f"s_mul_i32 s74, s75, {32*VST}", f"s_add_u32 s74, s74, {VB}",
      f"v_cndmask_b32 v{vV0}, v14, v3, vcc", f"v_cndmask_b32 v{vV1}, v14, v15, vcc",
      f"v_add_u32 v{vV0}, s74, v{vV0}", f"v_add_u32 v{vV1}, s74, v{vV1}")
    a(f"v_mov_b32 v{IDX}, 0xdddd")
    vHC = 112
    a("s_lshl_b32 s76, s75, 2", f"v_add_u32 v{vHC}, s76, v{vCB}")
    a("v_and_b32 v7, 31, v1", "v_lshlrev_b32 v7, 2, v7")
    a("s_lshl_b32 s77, s7, 3", "s_lshl1_add_u32 s77, s73, s77", "s_add_u32 s77, s77, s75")
    a("s_lshl_b32 s78, s6, 16")
    a("s_waitcnt vmcnt(0)")
    for r in range(8, 16): a(f"v_mov_b32 v{Sb+r}, 0")
    a("s_mov_b64 exec, 1", f"ds_add_rtn_u32 v3, v{vCB}, v{vONE} offset:{cP1}", "s_mov_b64 exec, -1", "s_waitcnt lgkmcnt(0)",
      "v_readfirstlane_b32 s76, v3", "s_cmp_lg_u32 s76, 7", "s_cbranch_scc1 L_a_noflag")
    a("s_lshl_b32 s76, s4, 5", "s_add_u32 s76, s76, s5", "s_lshl_b32 s76, s76, 2", f"s_add_u32 s76, s76, {FQ:#x}")
    flag_store(a, "s76")
    a.label("L_a_noflag")
    for r in range(32): a(f"v_mov_b32 v{Oa+r}, 0")
    lds_wait(a, cP1, 8)
    a(f"v_mul_u32_u24 v3, {VST//4}, v7", f"s_add_u32 s74, s74, 1024", "v_add_u32 v3, s74, v3")
    for r in range(4): a(f"v_mov_b32 v{V2+r}, 0x3f803f80")
    a(f"ds_write_b128 v3, {vr(V2,4)}")
    a("s_lshr_b32 s76, s6, 2", "s_lshl_b32 s76, s76, 7", f"s_add_u32 s76, s76, {FQ:#x}")
    gpoll(a, 7, "s76", sleep=1)
    stamp(a, 4)
    for r in range(4): a(f"v_mov_b32 v{V2+r}, 0")
    a("s_lshl_b32 s76, s77, 10", "s_add_u32 s76, s76, s78", "s_xor_b32 s79, s76, 1024",
      f"buffer_load_dwordx4 {vr(Qa,4)}, v2, {rWS}, s76 offen sc1", f"buffer_load_dwordx4 {vr(Qb,4)}, v2, {rWS}, s79 offen sc1")
    a("s_lshl_b32 s80, s75, 5", "s_add_u32 s80, s80, s73", "s_lshl_b32 s81, s80, 10", f"s_mul_i32 s80, s80, {VST}", "s_add_u32 s79, s78, s81")
    def kvload(dt):
        a(f"s_add_u32 m0, s81, {(KB + dt*1024) & 0xffffffff:#x}", f"s_add_u32 s76, s79, {(KF + dt*1024):#x}",
          f"buffer_load_dwordx4 v2, {rWS}, s76 offen sc1 lds",
          f"s_add_u32 m0, s80, {(VB + dt*VST):#x}", f"s_add_u32 s76, s79, {(VF + dt*1024):#x}",
          f"buffer_load_dwordx4 v2, {rWS}, s76 offen sc1 lds")
    kvload(0); kvload(4)
    a("s_cmp_eq_u32 s75, 0", "s_cbranch_scc1 L_a_ld0")
    for c in range(2, 8): kvload(4*c - 32)
    for c in range(2, 8): kvload(4*c)
    a("s_waitcnt vmcnt(24)", "s_branch L_a_ld1")
    a.label("L_a_ld0")
    a("s_waitcnt vmcnt(0)")
    a.label("L_a_ld1")
    lds_arrive(a, cA, vHC)
    lds_wait(a, cA, 4, vaddr=vHC)
    a("s_setprio 3")
    stamp(a, 5)
    a(f"ds_read_b128 {vr(Kf,4)}, v{vK}", f"ds_read_b128 {vr(V1,4)}, v{vV0}", "s_waitcnt lgkmcnt(1)",
      f"{MFMA} {vr(Sa,16)}, {vr(Kf,4)}, {vr(Qa,4)}, 0", "s_mov_b32 s76, 0")
    a.nop(12)
    a.raw(".p2align 6")
    a.label("L_a_loop")
    def E(S, lo, hi):
        for i in range(lo, hi): a(f"v_exp_f32 v{S+i}, v{S+i}")
    for t in range(4):
        if t == 3:
            a("s_cmp_lt_u32 s76, 7", "s_cbranch_scc1 L_a_hook")
            a.label("L_a_hookret")
        E(Sa, 0, 2)
        a(f"{SM} {vr(Ob,16)}, {vr(V2,4)}, {vr(Sb+8,8)}, v{IDX}", f"ds_read_b128 {vr(V2,4)}, v{vV1} offset:{t*VST}")
        E(Sa, 2, 6)
        a(f"{MFMA} {vr(Sb,16)}, {vr(Kf,4)}, {vr(Qb,4)}, 0", f"ds_read_b128 {vr(Kf,4)}, v{vK} offset:{(t+1)*1024}")
        E(Sa, 6, 12)
        a("s_waitcnt lgkmcnt(2)", f"{SM} {vr(Oa,16)}, {vr(V1,4)}, {vr(Sa,8)}, v{IDX}")
        E(Sa, 12, 16)
        E(Sb, 0, 2)
        a("s_waitcnt lgkmcnt(0)", f"{SM} {vr(Oa,16)}, {vr(V2,4)}, {vr(Sa+8,8)}, v{IDX}")
        E(Sb, 2, 6)
        a(f"{MFMA} {vr(Sa,16)}, {vr(Kf,4)}, {vr(Qa,4)}, 0")
        E(Sb, 6, 12)
        a(f"{SM} {vr(Ob,16)}, {vr(V1,4)}, {vr(Sb,8)}, v{IDX}", f"ds_read_b128 {vr(V1,4)}, v{vV0} offset:{(t+1)*VST}")
        E(Sb, 12, 16)
    a(f"v_add_u32 v{vK}, 4096, v{vK}", f"v_add_u32 v{vV0}, {4*VST}, v{vV0}", f"v_add_u32 v{vV1}, {4*VST}, v{vV1}")
    a("s_add_u32 s76, s76, 1", "s_cmp_lt_u32 s76, 8", "s_cbranch_scc1 L_a_loop")
    a(f"{SM} {vr(Ob,16)}, {vr(V2,4)}, {vr(Sb+8,8)}, v{IDX}")
    stamp(a, 6)
    a("s_lshr_b32 s76, s77, 1", "s_lshl_b32 s76, s76, 5", "s_and_b32 s79, s77, 1", "s_add_u32 s76, s76, s79", "s_lshl_b32 s76, s76, 2",
      f"s_add_u32 s76, s76, {FH + 120:#x}", "v_mov_b32 v15, 0")
    lds_wait(a, cPASS, 4, vaddr=vHC)
    a("s_mul_i32 s79, s73, 2304", "s_lshl_b32 s80, s75, 15", "s_add_u32 s79, s79, s80", "v_add_u32 v3, s79, v2",
      "v_lshrrev_b32 v16, 2, v2", "v_add_u32 v16, s79, v16", "s_lshl_b32 s80, s3, 2", f"v_add_u32 v17, s80, v{vCB}", "s_nop 3")
    a(f"ds_write_b128 v3, {vr(Ob,4)}", f"ds_write_b128 v3, {vr(Ob+4,4)} offset:1024", f"ds_write_b32 v16, v{Ob+8} offset:2048", "s_waitcnt lgkmcnt(0)")
    lds_arrive(a, cEX, 17)
    gpoll(a, 15, "s76")
    a("s_lshl_b32 s76, s77, 7", f"s_add_u32 s76, s76, {GT:#x}", f"buffer_load_dword v18, v7, {rWS}, s76 offen sc1")
    a("v_xor_b32 v17, 16, v17", "v_xor_b32 v3, 0x8000, v3", "v_xor_b32 v16, 0x8000, v16")
    lds_wait(a, cEX, 1, vaddr=17)
    a(f"ds_read_b128 {vr(Ob,4)}, v3", f"ds_read_b128 {vr(Ob+4,4)}, v3 offset:1024", f"ds_read_b32 v{Ob+8}, v16 offset:2048", "s_waitcnt lgkmcnt(0)")
    for r in range(9): a(f"v_add_f32 v{Oa+r}, v{Oa+r}, v{Ob+r}")
    O = Oa
    a(f"v_max3_f32 v3, abs(v{O}), abs(v{O+1}), abs(v{O+2})", f"v_max3_f32 v3, abs(v{O+3}), abs(v{O+4}), v3",
      f"v_max3_f32 v3, abs(v{O+5}), abs(v{O+6}), v3", f"v_max3_f32 v3, abs(v{O+7}), v{O+8}, v3")
    a(f"v_add_f32 v16, v{O}, v{O+1}")
    for r in range(2, 9): a(f"v_add_f32 v16, v16, v{O+r}")
    a("s_mov_b32 s76, 0x5f800000")
    a("v_cmp_ge_f32 vcc, s76, v3", f"v_cmp_le_f32 s[80:81], 1.0, v{O+8}", "s_and_b64 vcc, vcc, s[80:81]", "v_cmp_o_f32 s[80:81], v16, v16",
      "s_and_b64 vcc, vcc, s[80:81]", "s_cmp_eq_u64 vcc, exec", "s_cbranch_scc0 L_a_slow")
    a.label("L_a_fin")
    a(f"v_rcp_f32 v3, v{O+8}", "s_waitcnt vmcnt(0)", "v_mul_f32 v3, v3, v18")
    for r in range(8): a(f"v_mul_f32 v{O+r}, v3, v{O+r}")
    for r in range(4): a(f"v_cvt_pk_bf16_f32 v{Qb+r}, v{O+2*r}, v{O+2*r+1}")
    a("s_lshl_b32 s76, s77, 10", "s_add_u32 s76, s76, s78", f"s_add_u32 s76, s76, {OF:#x}",
      f"buffer_store_dwordx4 {vr(Qb,4)}, v2, {rWS}, s76 offen sc1")
    a("s_lshr_b32 s76, s77, 1", "s_lshl_b32 s76, s76, 5", "s_add_u32 s76, s76, s6", "s_and_b32 s79, s77, 1", "s_lshl1_add_u32 s76, s76, s79",
      "s_lshl_b32 s76, s76, 2", f"s_add_u32 s76, s76, {FO:#x}", "s_waitcnt vmcnt(0)")
    flag_store(a, "s76")
    stamp_end(a, 0, 8, 0)
    a("s_endpgm")
    a.label("L_a_hook")
    h1, h3, h4, h6 = [a.newlabel("hk") for _ in range(4)]
    a("s_cmp_lg_u32 s76, 0", f"s_cbranch_scc1 {h1}")
    a("s_cmp_eq_u32 s75, 0", "s_cbranch_scc1 L_a_hookret", "s_waitcnt vmcnt(0)")
    lds_arrive(a, cALL)
    a("s_branch L_a_hookret")
    a.label(h1)
    a("s_cmp_lg_u32 s76, 1", f"s_cbranch_scc1 {h3}")
    lds_wait(a, cALL, 4)
    a("s_branch L_a_hookret")
    a.label(h3)
    a("s_cmp_lg_u32 s76, 3", f"s_cbranch_scc1 {h4}")
    lds_arrive(a, cPASS, vHC)
    a("s_branch L_a_hookret")
    a.label(h4)
    a("s_cmp_lg_u32 s76, 4", f"s_cbranch_scc1 {h6}", "s_setprio 2", "s_branch L_a_hookret")
    a.label(h6)
    a("s_cmp_lg_u32 s76, 6", "s_cbranch_scc1 L_a_hookret", "s_setprio 1", "s_branch L_a_hookret")
    a.label("L_a_slow")
    NM = 96
    a("v_mov_b32 v3, 0xff800000", f"s_add_u32 s76, s78, {KF:#x}", "s_mov_b32 s79, 0")
    a.label("L_a_max")
    a(f"buffer_load_dwordx4 {vr(V1,4)}, v2, {rWS}, s76 offen sc1", "s_waitcnt vmcnt(0)",
      f"{MFMA} {vr(Sa,16)}, {vr(V1,4)}, {vr(Qa,4)}, 0", "s_add_u32 s76, s76, 1024")
    a.nop(14)
    for r in range(0, 16, 2): a(f"v_max3_f32 v3, v{Sa+r}, v{Sa+r+1}, v3")
    a("s_add_u32 s79, s79, 1", "s_cmp_lt_u32 s79, 64", "s_cbranch_scc1 L_a_max")
    a("v_mov_b32 v16, v3", "s_nop 1", "v_permlane32_swap_b32 v16, v3", "s_nop 1", "v_max_f32 v3, v16, v3")
    for r in range(16): a(f"v_sub_f32 v{NM+r}, 0, v3")
    for r in range(16): a(f"v_mov_b32 v{Oa+r}, 0")
    a("v_and_b32 v3, 15, v1", "v_lshlrev_b32 v3, 4, v3", "v_lshrrev_b32 v16, 5, v1", "v_lshl_add_u32 v3, v16, 8, v3",
      "v_and_b32 v16, 16, v1", "v_cmp_eq_u32 vcc, 0, v16", "v_mov_b32 v16, 0x4000000", "v_mov_b32 v17, 0x3f803f80",
      "v_cndmask_b32 v3, v16, v3, vcc", "v_cndmask_b32 v17, v17, 0, vcc")
    a(f"s_add_u32 s76, s78, {KF:#x}", f"s_add_u32 s80, s78, {VF:#x}", "s_mov_b32 s79, 0")
    a.label("L_a_redo")
    a(f"buffer_load_dwordx4 {vr(Sb,4)}, v2, {rWS}, s76 offen sc1", f"buffer_load_dwordx4 {vr(V1,4)}, v3, {rWS}, s80 offen sc1",
      f"buffer_load_dwordx4 {vr(V2,4)}, v3, {rWS}, s80 offen offset:512 sc1", "s_waitcnt vmcnt(0)",
      f"{MFMA} {vr(Sa,16)}, {vr(Sb,4)}, {vr(Qa,4)}, {vr(NM,16)}", "s_add_u32 s76, s76, 1024", "s_add_u32 s80, s80, 1024")
    for r in range(8): a(f"v_or_b32 v{V1+r}, v17, v{V1+r}")
    a.nop(6)
    E(Sa, 0, 16)
    a("s_nop 1", f"{SM} {vr(Oa,16)}, {vr(V1,4)}, {vr(Sa,8)}, v{IDX}", f"{SM} {vr(Oa,16)}, {vr(V2,4)}, {vr(Sa+8,8)}, v{IDX}")
    a("s_add_u32 s79, s79, 1", "s_cmp_lt_u32 s79, 64", "s_cbranch_scc1 L_a_redo")
    a.nop(14)
    a("s_branch L_a_fin")

def gen_gwave(a):
    a("s_sub_u32 s73, s3, 8", "s_setprio 3")
    vX0, vX1, vW = 8, 9, 10
    a("v_lshrrev_b32 v11, 3, v1", "v_lshrrev_b32 v3, 4, v1", "v_and_b32 v7, 7, v1", "v_xor_b32 v3, v3, v7",
      "v_lshlrev_b32 v3, 4, v3", f"v_lshl_add_u32 v{vX0}, v11, 10, v3",
      f"v_xor_b32 v{vX1}, 64, v{vX0}", f"v_add_u32 v{vX1}, 0x2000, v{vX1}")
    a("v_bfe_u32 v11, v1, 2, 3", "v_mul_u32_u24 v11, 3072, v11", "v_lshrrev_b32 v3, 5, v1", "v_lshl_add_u32 v11, v3, 6, v11",
      "v_and_b32 v3, 3, v1", f"v_lshl_add_u32 v{vW}, v3, 4, v11")
    a("s_lshl_b32 s74, s5, 16", "s_lshl_b32 s78, s73, 14", "s_add_u32 s74, s74, s78")
    a("s_mul_i32 s75, s73, 49152", "s_lshl_b32 s78, s4, 7", "s_add_u32 s75, s75, s78")
    a("s_lshl_b32 s76, s73, 11", f"s_add_u32 s76, s76, {P1X}", "s_mul_i32 s77, s73, 6144")
    a("s_waitcnt lgkmcnt(0)")
    a.srd(8, 48, 49, 2048*512*2)
    a.srd(12, 50, 51, 512*1536*2)
    stamp(a, 1)
    def issue(s):
        slot = s % 4
        a("s_lshl_b32 s79, s72, 7", "s_add_u32 s78, s74, s79", f"s_add_u32 m0, s76, {slot*8192}", "s_mul_i32 s79, s72, 196608",
          f"buffer_load_dwordx4 v{vX0}, {rX}, s78 offen lds",
          f"s_add_u32 m0, s76, {slot*8192+1024}", "s_add_u32 s79, s79, s75",
          f"buffer_load_dwordx4 v{vX1}, {rX}, s78 offen lds")
        for kh in range(2):
            a(f"s_add_u32 m0, s77, {P1W + slot*24576 + kh*3072}")
            a("s_add_u32 s72, s72, 1" if kh == 0 else f"s_add_u32 s79, s79, {8*3072}")
            for mat in range(3):
                a(f"buffer_load_dwordx4 v{vW}, {rWQ}, s79 offen offset:{mat*1024} lds")
        a("s_and_b32 s72, s72, 7")
    for s in range(4): issue(s)
    a.srd(16, 68, 69, 16*MB)
    build_srds_rest(a)
    vm = [24, 16, 16, 16, 16, 16, 8, 0]
    for s in range(8):
        a(f"s_waitcnt vmcnt({vm[s]})", "s_barrier")
        if 1 <= s <= 4: issue(s+3)
    stamp(a, 2)
    a(f"ds_read_b32 v3, v{vCB} offset:{cNONCE}")
    a("s_and_b32 s74, s2, 1", "s_lshl3_add_u32 s74, s74, s7", "s_bfe_u32 s75, s2, 0x20001", "s_lshl2_add_u32 s75, s75, s71")
    a("s_lshl2_add_u32 s74, s74, s73")
    a("s_and_b32 s76, s73, 1", "s_lshr_b32 s77, s73, 1")
    a("s_cmp_eq_u32 s76, 0", "s_cselect_b32 s24, s56, s58", "s_cselect_b32 s25, s57, s59", f"s_mov_b32 s26, {512*1376*2:#x}", "s_mov_b32 s27, 0x20000")
    a("s_waitcnt lgkmcnt(0)", f"v_readfirstlane_b32 s{sN}, v3")
    a("s_lshl_b32 s78, s74, 15", f"s_add_u32 s78, s78, {XF:#x}")
    a("v_and_b32 v7, 15, v1", "v_lshlrev_b32 v7, 2, v7", "s_lshl_b32 s79, s74, 7", f"s_add_u32 s79, s79, {FX:#x}")
    a("s_cmp_eq_u32 s75, 15", "s_cbranch_scc1 L_g_gate")
    vD = [8, 9, 10]; vT = 11
    X = [12, 16, 20, 24]; W = 28
    acc = [64 + 16*i for i in range(6)]
    a("s_mov_b32 s80, 0x15555556")
    for i in range(3):
        a(f"v_add_u32 v3, {64*i}, v1", "v_mul_hi_u32 v12, v3, s80", "v_mul_u32_u24 v13, 12, v12", "v_sub_u32 v13, v3, v13",
          "v_mul_u32_u24 v12, 2752, v12", f"v_lshl_add_u32 v{vD[i]}, v13, 4, v12")
    a("s_mul_i32 s80, s75, 192", "s_mul_i32 s81, s77, 44032", "s_add_u32 s80, s80, s81")
    a("s_mul_i32 s81, s76, 3072", f"s_add_u32 s81, s81, {RING}")
    def gdma(slot):
        for i in range(3):
            a(f"s_add_u32 m0, s81, {slot*6144 + i*1024}", "s_nop 0", f"buffer_load_dwordx4 v{vD[i]}, {rWG}, s80 offen lds")
        a(f"s_add_u32 s80, s80, {2*44032}")
    l1, l2 = a.newlabel("gp"), a.newlabel("gp")
    a("s_cmp_eq_u32 s77, 0", f"s_cbranch_scc0 {l1}")
    gdma(0); gdma(2)
    a(f"s_branch {l2}")
    a.label(l1)
    gdma(1)
    a.label(l2)
    a("v_lshrrev_b32 v3, 5, v1", "v_lshlrev_b32 v3, 3, v3", "v_bfe_u32 v12, v1, 2, 2", "v_add_u32 v3, v3, v12", "v_mul_u32_u24 v3, 192, v3",
      "v_bfe_u32 v12, v1, 4, 1", "v_lshl_add_u32 v3, v12, 5, v3", "v_and_b32 v12, 3, v1", "v_lshl_add_u32 v3, v12, 3, v3", f"v_add_u32 v{vT}, {RING}, v3")
    for r in range(96): a(f"v_mov_b32 v{64+r}, 0")
    gpoll(a, 7, "s79")
    lds_arrive(a, cG)
    for e in range(3):
        a(f"buffer_load_dwordx4 {vr(X[e],4)}, v2, {rWS}, s78 offen offset:{e*1024} sc1")
    a("s_add_u32 s78, s78, 3072", "s_mov_b32 s79, 4", f"ds_read_b32 v{vPOLL}, v{vCB} offset:{cG}", "s_waitcnt vmcnt(0)")
    stamp(a, 3)
    a.raw(".p2align 6")
    a.label("L_g_loop")
    for u in range(4):
        lds_wait(a, cG, "s79", pre=True, prio=0)
        for ct in range(3):
            for mat in range(2):
                o = u*6144 + mat*3072 + ct*64
                f = W + 4*(ct*2+mat)
                a(f"ds_read_b64_tr_b16 {vr(f,2)}, v{vT} offset:{o}", f"ds_read_b64_tr_b16 {vr(f+2,2)}, v{vT} offset:{o+768}")
        sk = a.newlabel("gs")
        a(f"s_cmp_eq_u32 s77, {(u+3)&1}", f"s_cbranch_scc0 {sk}")
        gdma((u+3) % 4)
        a.label(sk)
        a(f"buffer_load_dwordx4 {vr(X[(u+3)%4],4)}, v2, {rWS}, s78 offen sc1", "s_add_u32 s78, s78, 1024", "s_add_u32 s79, s79, 4")
        mm = lambda i: f"{MFMA} {vr(acc[i],16)}, {vr(W+4*i,4)}, {vr(X[u],4)}, {vr(acc[i],16)}"
        a("s_waitcnt vmcnt(6) lgkmcnt(10)", mm(0), "s_waitcnt lgkmcnt(0)")
        lds_arrive(a, cG)
        sk = a.newlabel("gs")
        a(mm(1), "s_cmp_eq_u32 s75, 14", f"s_cbranch_scc1 {sk}", mm(2), mm(3), mm(4))
        a.label(sk)
        sk = a.newlabel("gs")
        a(f"ds_read_b32 v{vPOLL}, v{vCB} offset:{cG}", f"s_cbranch_scc1 {sk}", mm(5))
        a.label(sk)
    a(f"s_cmp_lt_u32 s79, {4*33}", "s_cbranch_scc1 L_g_loop")
    stamp(a, 4)
    a("s_setprio 3")
    a(f"s_mov_b32 s80, {fbits(-LOG2E):#x}")
    a("s_mul_i32 s79, s75, 6", "s_lshl_b32 s79, s79, 16", "s_lshl_b32 s81, s74, 10", "s_add_u32 s79, s79, s81")
    a.nop(8)
    for ct in range(3):
        g, u = acc[2*ct], acc[2*ct+1]
        for r in range(0, 16, 2): a(f"v_pk_mul_f32 {vr(g+r,2)}, {vr(g+r,2)}, s[80:81] op_sel_hi:[1,0]")
        for r in range(16): a(f"v_exp_f32 v{g+r}, v{g+r}")
        for r in range(0, 16, 2): a(f"v_pk_add_f32 {vr(g+r,2)}, {vr(g+r,2)}, 1.0 op_sel_hi:[1,0]")
        for r in range(16): a(f"v_rcp_f32 v{g+r}, v{g+r}")
        for r in range(0, 16, 2): a(f"v_pk_mul_f32 {vr(g+r,2)}, {vr(g+r,2)}, {vr(u+r,2)}")
        for r in range(8): a(f"v_cvt_pk_bf16_f32 v{u+r}, v{g+2*r}, v{g+2*r+1}")
        a("s_add_u32 s78, s79, 0x10000",
          f"buffer_store_dwordx4 {vr(u,4)}, v2, {rHF}, s79 offen sc1", f"buffer_store_dwordx4 {vr(u+4,4)}, v2, {rHF}, s78 offen sc1")
        if ct == 0: a("s_cmp_eq_u32 s75, 14", "s_cbranch_scc1 L_g_hdone")
        if ct < 2: a("s_add_u32 s79, s79, 0x20000")
    a.label("L_g_hdone")
    a("s_waitcnt vmcnt(0) lgkmcnt(0)")
    lds_arrive(a, cG)
    a("s_mov_b32 s72, 136", "s_branch L_g_pub")
    a.label("L_g_gate")
    gpoll(a, 7, "s79")
    stamp(a, 3); stamp(a, 4)
    a("v_lshrrev_b32 v3, 5, v1", "v_lshlrev_b32 v3, 4, v3", "s_mov_b32 s80, 0")
    for r in range(16): a(f"v_mov_b32 v{80+r}, 0")
    a.label("L_g_gloop")
    for e in range(8):
        if e == 4: a("s_add_u32 s78, s78, 4096")
        a(f"buffer_load_dwordx4 {vr(16+4*e,4)}, v2, {rWS}, s78 offen offset:{(e%4)*1024} sc1",
          f"buffer_load_dwordx4 {vr(48+4*e,4)}, v3, {rGW}, s80 offen offset:{e*32}")
    a("s_add_u32 s78, s78, 4096", "s_add_u32 s80, s80, 256", "s_waitcnt vmcnt(0)")
    for e in range(8):
        a(f"{MFMA} {vr(80,16)}, {vr(48+4*e,4)}, {vr(16+4*e,4)}, {vr(80,16)}")
    a("s_cmp_lt_u32 s80, 1024", "s_cbranch_scc1 L_g_gloop")
    a("s_setprio 3")
    a.nop(12)
    a(f"s_mov_b32 s80, {fbits(-LOG2E):#x}", "v_mul_f32 v80, s80, v80", "v_exp_f32 v80, v80", "s_nop 0", "v_add_f32 v80, 1.0, v80",
      "v_rcp_f32 v80, v80", "v_and_b32 v3, 31, v1", "v_lshlrev_b32 v3, 2, v3", "s_lshl_b32 s80, s74, 7", f"s_add_u32 s80, s80, {GT:#x}",
      f"buffer_store_dword v80, v3, {rWS}, s80 offen sc1", "s_waitcnt vmcnt(0)", "s_mov_b32 s72, 0")
    a.label("L_g_pub")
    a("s_lshr_b32 s79, s74, 1", "s_lshl_b32 s79, s79, 4", "s_add_u32 s79, s79, s75", "s_and_b32 s80, s74, 1", "s_lshl1_add_u32 s79, s79, s80",
      "s_lshl_b32 s79, s79, 2", f"s_add_u32 s79, s79, {FH:#x}")
    flag_store(a, "s79")
    vW, vT2, vG = 8, 9, 10
    Wf = 12; HD = 6; H = [20 + 8*i for i in range(HD)]
    acc = [104 + 16*i for i in range(4)]
    WF = 40; OFR = 8
    NS = 3
    a("v_bfe_u32 v3, v1, 2, 3", "v_lshlrev_b32 v3, 10, v3", "v_lshrrev_b32 v7, 5, v1", "v_lshl_add_u32 v3, v7, 6, v3",
      "v_and_b32 v7, 3, v1", f"v_lshl_add_u32 v{vW}, v7, 4, v3")
    a("s_mul_i32 s74, s73, 22", "s_lshl_b32 s75, s74, 16", "s_lshl_b32 s79, s6, 11", "s_add_u32 s75, s75, s79")
    a("s_lshl_b32 s76, s74, 14", "s_lshl_b32 s79, s7, 7", "s_add_u32 s76, s76, s79")
    a("s_lshl_b32 s74, s73, 17", "s_add_u32 s74, s74, s79")
    a(f"s_mul_i32 s77, s73, 7680", f"s_add_u32 s77, s77, {RING}")
    a("v_lshrrev_b32 v3, 5, v1", "v_lshlrev_b32 v3, 2, v3", "v_bfe_u32 v7, v1, 2, 2", "v_add_u32 v3, v3, v7", "v_lshlrev_b32 v3, 6, v3",
      "v_bfe_u32 v7, v1, 4, 1", "v_lshl_add_u32 v3, v7, 5, v3", "v_and_b32 v7, 3, v1", "v_lshl_add_u32 v3, v7, 3, v3", f"v_add_u32 v{vT2}, s77, v3")
    a("v_and_b32 v7, 31, v1", "v_lshlrev_b32 v7, 2, v7")
    lds_wait(a, cG, "s72")
    q = VQ(a)
    def wload(k):
        slot = k % NS
        for o in range(2):
            if k < 22:
                a(f"s_add_u32 m0, s77, {slot*2048 + o*1024}", f"s_add_u32 s79, s76, {(k*16 + o*8)*1024}", f"buffer_load_dwordx4 v{vW}, {rWD}, s79 offen lds")
            else:
                a(f"s_add_u32 m0, s77, {slot*2048 + o*1024}", f"s_add_u32 s79, s74, {((k-22)*16 + o*8)*1024}", f"buffer_load_dwordx4 v{vW}, {rWO}, s79 offen lds")
            q.issue(("W", k))
    def hload(k):
        a(f"s_add_u32 s79, s75, {k*65536}")
        for rt in range(2):
            a(f"buffer_load_dwordx4 {vr(H[k%HD]+4*rt,4)}, v2, {rHF}, s79 offen offset:{rt*1024} sc1")
            q.issue(("H", k))
    wload(0); wload(1)
    a("s_lshl_b32 s79, s6, 7", f"s_add_u32 s79, s79, {FH:#x}")
    gpoll(a, 7, "s79")
    q.drain()
    stamp(a, 5)
    a("s_setprio 0")
    for k in range(HD-1): hload(k)
    a("s_lshl_b32 s79, s6, 8", f"s_add_u32 s79, s79, {GT:#x}",
      f"buffer_load_dword v{vG}, v7, {rWS}, s79 offen sc1", f"buffer_load_dword v{vG+1}, v7, {rWS}, s79 offen offset:128 sc1")
    q.issue("g"); q.issue("g")
    for k in range(30):
        slot = k % NS
        if k + 2 < 30: wload(k+2)
        if k + HD - 1 < 22: hload(k + HD - 1)
        q.wait(("W", k), ("H", k))
        dst = Wf if k < 22 else WF + 8*(k-22)
        if k == 22: a.nop(2)
        for ct in range(2):
            a(f"ds_read_b64_tr_b16 {vr(dst+4*ct,2)}, v{vT2} offset:{slot*2048 + ct*512}",
              f"ds_read_b64_tr_b16 {vr(dst+4*ct+2,2)}, v{vT2} offset:{slot*2048 + ct*512 + 1024}")
        if k < 22:
            for ct in range(2):
                a(f"s_waitcnt lgkmcnt({2-2*ct})")
                for rt in range(2):
                    C = "0" if k == 0 else vr(acc[ct*2+rt], 16)
                    a(f"{MFMA} {vr(acc[ct*2+rt],16)}, {vr(Wf+4*ct,4)}, {vr(H[k%HD]+4*rt,4)}, {C}")
        else:
            a("s_waitcnt lgkmcnt(0)")
    a("s_setprio 3")
    a(f"v_sub_f32 v12, 1.0, v{vG}", f"v_sub_f32 v14, 1.0, v{vG+1}")
    for t in range(4):
        for r in range(0, 16, 2):
            a(f"v_pk_mul_f32 {vr(acc[t]+r,2)}, {vr(acc[t]+r,2)}, {vr(12+2*(t&1),2)} op_sel_hi:[1,0]")
    stamp(a, 6)
    a("v_and_b32 v7, 15, v1", "v_lshlrev_b32 v7, 2, v7", "s_lshl_b32 s79, s6, 8", "s_lshl_b32 s80, s73, 6", "s_add_u32 s79, s79, s80", f"s_add_u32 s79, s79, {FO:#x}")
    a("s_lshl_b32 s75, s73, 19", "s_lshl_b32 s80, s6, 11", "s_add_u32 s75, s75, s80", f"s_add_u32 s75, s75, {OF:#x}")
    a("v_lshrrev_b32 v3, 4, v1", "v_lshlrev_b32 v3, 16, v3", "v_lshl_add_u32 v3, v7, 5, v3", "s_add_u32 s80, s75, 0x40000")
    gpoll(a, 7, "s79", sleep=1)
    q.drain()
    def oload(h):
        a(f"s_add_u32 s79, s75, {h*65536}")
        for rt in range(2):
            a(f"buffer_load_dwordx4 {vr(OFR+8*(h%4)+4*rt,4)}, v2, {rWS}, s79 offen offset:{rt*1024} sc1")
            q.issue(("O", h))
    for h in range(4): oload(h)
    a(f"buffer_load_dword v7, v3, {rWS}, s80 offen sc1"); q.issue("t")
    for h in range(8):
        q.wait(("O", h))
        for ct in range(2):
            for rt in range(2):
                a(f"{MFMA} {vr(acc[ct*2+rt],16)}, {vr(WF+8*h+4*ct,4)}, {vr(OFR+8*(h%4)+4*rt,4)}, {vr(acc[ct*2+rt],16)}")
        if h + 4 < 8: oload(h+4)
    a("s_lshl_b32 s79, s73, 14", "v_add_u32 v3, s79, v2", "s_lshl_b32 s79, s73, 12", "v_add_u32 v7, s79, v2")
    a("s_barrier")
    a.nop(8)
    for t in range(4):
        for qd in range(4):
            a(f"ds_write_b128 v3, {vr(acc[t]+4*qd,4)} offset:{t*4096 + qd*1024}")
    a("s_waitcnt lgkmcnt(0)", "s_barrier")
    for w in range(4):
        for qd in range(4):
            a(f"ds_read_b128 {vr(acc[w]+4*qd,4)}, v7 offset:{w*16384 + qd*1024}")
    a("v_and_b32 v3, 31, v1", "v_lshlrev_b32 v3, 10, v3", "v_lshrrev_b32 v7, 5, v1", "v_lshl_add_u32 v3, v7, 4, v3",
      "s_and_b32 s79, s73, 1", "s_lshl1_add_u32 s79, s6, s79", "s_lshl_b32 s79, s79, 15", "s_lshl_b32 s80, s7, 7", "s_add_u32 s79, s79, s80",
      "s_lshr_b32 s80, s73, 1", "s_lshl_b32 s80, s80, 6", "s_add_u32 s79, s79, s80")
    a("s_waitcnt lgkmcnt(8)")
    for r in range(0, 16, 2): a(f"v_pk_add_f32 {vr(acc[0]+r,2)}, {vr(acc[0]+r,2)}, {vr(acc[1]+r,2)}")
    a("s_waitcnt lgkmcnt(0)")
    for r in range(0, 16, 2): a(f"v_pk_add_f32 {vr(acc[2]+r,2)}, {vr(acc[2]+r,2)}, {vr(acc[3]+r,2)}")
    for r in range(0, 16, 2): a(f"v_pk_add_f32 {vr(acc[0]+r,2)}, {vr(acc[0]+r,2)}, {vr(acc[2]+r,2)}")
    for r in range(8): a(f"v_cvt_pk_bf16_f32 v{16+r}, v{acc[0]+2*r}, v{acc[0]+2*r+1}")
    a("s_nop 1")
    for p in range(2):
        b = 16 + 4*p
        a(f"v_permlane32_swap_b32 v{b}, v{b+2}", f"v_permlane32_swap_b32 v{b+1}, v{b+3}")
    a(f"buffer_store_dwordx4 v[16:19], v3, {rOUT}, s79 offen", f"buffer_store_dwordx4 v[20:23], v3, {rOUT}, s79 offen offset:32")
    stamp_end(a, 1, 4, 8)

HEADER = open("gated_mix__mha_block__glu_gated_glu__prompt.s.ref").read().split("; Override launch")[0]
def build():
    a = Asm()
    txt = HEADER + "; @launch grid=(256,1,1) block=(768,1,1) lds=163840\n"
    txt += '.amdgcn_target "amdgcn-amd-amdhsa--gfx950"\n.text\n'
    d = gen(a)
    txt += a.text() + '.section .rodata,"a"\n' + d
    return txt
if __name__ == "__main__":
    for o in sys.argv[2:]:
        if "=" in o:
            k, v = o.split("="); OPT[k] = int(v)
        else: OPT[o] = True
    open(sys.argv[1], "w").write(build())
    print("wrote", sys.argv[1])
```

```python
import sys, math, struct
from asmlib import *

MB = 1 << 20
QF, KF, VF, XF, OF, GT, FL, ST, HF = 0, 2*MB, 4*MB, 6*MB, 8*MB, 12*MB, 13*MB, 14*MB, 16*MB
EP = FL + 0xf0000
FQ, FX, FH, FO = FL, FL + 0x8000, FL + 0x28000, FL + 0x48000
HF_BYTES = 86 * 65536
QSCALE = 0.25 * math.log2(math.e)
LOG2E = math.log2(math.e)
def fbits(x): return struct.unpack("<I", struct.pack("<f", x))[0]
MFMA = "v_mfma_f32_32x32x16_bf16"
SM = "v_smfmac_f32_32x32x32_bf16"
NAME = "gated_mix__mha_block__glu_gated_glu__prompt_kernel"
rX, rWQ, rWS, rHF, rWG, rWD, rWO, rOUT, rGW, rDBG = [f"s[{i}:{i+3}]" for i in range(8, 48, 4)]
P1W, P1X = 0, 98304
KB, VB, VST = 0, 65536, 1040
RING = VB + 64*VST
CB = RING + 30720
cNONCE, cP1, cA, cALL, cPASS, cG, cEX, cQ = 0, 4, 8, 16, 20, 28, 32, 64
vCB, vONE, vPOLL = 4, 5, 6
sN, sBUD = 70, 83
OPT = dict(g_nox=0, g_now=0, g_nosync=0, g_xplain=0, stamp=False, tdelay=12, noattn=0, pr2=4, pr1=6)

def stamp(a, i):
    if OPT["stamp"]:
        a(f"s_memrealtime s[{84+2*i}:{85+2*i}]", "s_waitcnt lgkmcnt(0)")
def stamp_end(a, kidx, nw, wsub):
    if not OPT["stamp"]: return
    a("s_waitcnt vmcnt(0)", "s_memrealtime s[98:99]", "s_waitcnt lgkmcnt(0)")
    for j in range(8): a(f"v_mov_b32 v{8+j}, s{84+2*j}")
    a(f"s_mul_i32 s71, s2, {nw}", "s_add_u32 s71, s71, s3", f"s_sub_u32 s71, s71, {wsub}", "s_lshl_b32 s71, s71, 5", f"s_add_u32 s71, s71, {ST + kidx*131072:#x}",
      "v_mov_b32 v7, 0", "s_mov_b64 exec, 1",
      f"buffer_store_dwordx4 v[8:11], v7, {rWS}, s71 offen", f"buffer_store_dwordx4 v[12:15], v7, {rWS}, s71 offen offset:16")

def lds_arrive(a, off, vaddr=vCB):
    a("s_mov_b64 exec, 1", f"ds_add_u32 v{vaddr}, v{vONE} offset:{off}", "s_mov_b64 exec, -1")
OOL = []
def emit_ool(a):
    for blk in OOL:
        for l in blk:
            if l.endswith(":"): a.label(l[:-1])
            else: a(l)
    OOL.clear()
def retry(a, lp, dn, sleep):
    rt = a.newlabel("rt")
    OOL.append([rt + ":"] + ([f"s_sleep {sleep}"] if sleep else []) +
               [f"s_sub_u32 s{sBUD}, s{sBUD}, 1", f"s_cbranch_scc0 {lp}", f"s_mov_b32 s{sBUD}, 0", f"s_branch {dn}"])
    return rt
def lds_wait(a, off, target, vaddr=vCB, sleep=0):
    lp, dn = a.newlabel("lw"), a.newlabel("lwd")
    rt = retry(a, lp, dn, sleep)
    a.label(lp)
    a(f"ds_read_b32 v{vPOLL}, v{vaddr} offset:{off}", "s_waitcnt lgkmcnt(0)", f"v_readfirstlane_b32 s82, v{vPOLL}",
      f"s_cmp_ge_u32 s82, {target}", f"s_cbranch_scc0 {rt}")
    a.label(dn)
def gpoll(a, vaddr, soff, sleep=2, nl=64):
    lp, dn = a.newlabel("gp"), a.newlabel("gpd")
    rt = retry(a, lp, dn, sleep)
    if nl < 64: a(f"s_mov_b64 exec, {(1 << nl) - 1:#x}")
    a.label(lp)
    a(f"buffer_load_dword v{vPOLL}, v{vaddr}, {rWS}, {soff} offen sc1", "s_waitcnt vmcnt(0)",
      f"v_cmp_ne_u32 vcc, s{sN}, v{vPOLL}", f"s_cbranch_vccnz {rt}")
    a.label(dn)
    if nl < 64: a("s_mov_b64 exec, -1")
def flag_store(a, soff):
    a(f"v_mov_b32 v3, s{sN}", "s_mov_b64 exec, 1", f"buffer_store_dword v3, off, {rWS}, {soff} sc1", "s_mov_b64 exec, -1")

class VQ:
    def __init__(self, a): self.a = a; self.q = []
    def issue(self, tag): self.q.append(tag)
    def wait(self, *tags):
        idx = max([i for i, t in enumerate(self.q) if t in tags], default=-1)
        if idx < 0: return
        n = len(self.q) - 1 - idx
        assert n <= 63
        self.a(f"s_waitcnt vmcnt({n})")
        self.q = self.q[idx+1:]
    def drain(self):
        self.q = []

def gen(a):
    kernel_header(a, NAME)
    a("s_cmp_ge_u32 s2, 256", "s_cbranch_scc1 L_end")
    a("s_load_dwordx16 s[48:63], s[0:1], 0", "s_load_dwordx4 s[64:67], s[0:1], 64", "s_load_dwordx2 s[68:69], s[0:1], 80")
    if OPT["stamp"]: a("s_memrealtime s[84:85]")
    a("v_lshrrev_b32 v2, 6, v0", "v_and_b32 v1, 63, v0")
    a("s_bfe_u32 s71, s2, 0x20003", "s_lshr_b32 s7, s2, 5", "s_and_b32 s4, s2, 1", "s_lshl2_add_u32 s4, s4, s71")
    a("v_readfirstlane_b32 s3, v2")
    a("s_bfe_u32 s5, s2, 0x20001", "s_lshl3_add_u32 s5, s5, s7")
    a("s_add_u32 s72, s4, s5", "s_and_b32 s72, s72, 3")
    a("s_cmp_ge_u32 s3, 4", "s_cbranch_scc1 L_awave")
    gen_gwave(a)
    a.label("L_end")
    a("s_endpgm")
    emit_ool(a)
    a.raw(".p2align 6")
    a.label("L_awave")
    gen_awave(a)
    emit_ool(a)
    a.label("L_codeend")
    return kernel_desc(NAME, 168, 102)

def common2(a):
    a("s_and_b32 s6, s2, 7", "s_lshl2_add_u32 s6, s6, s71")
    a("v_lshlrev_b32 v2, 4, v1", f"v_mov_b32 v{vCB}, {CB}", f"v_mov_b32 v{vONE}, 1", f"s_mov_b32 s{sBUD}, 20000")

def gen_awave(a):
    common2(a)
    a("s_sub_u32 s3, s3, 4")
    a("s_cmp_lg_u32 s3, 1", "s_cbranch_scc1 L_a_nocode")
    a("s_getpc_b64 s[40:41]")
    a.label("L_pc")
    a(f"s_sub_u32 s40, s40, L_pc-{NAME}", "s_subb_u32 s41, s41, 0", f"s_mov_b32 s42, L_codeend-{NAME}", "s_mov_b32 s43, 0x20000", "v_lshlrev_b32 v3, 7, v1")
    for i in range(3): a(f"s_mov_b32 s76, {i*8192}", f"buffer_load_dword v{100+i}, v3, s[40:43], s76 offen")
    a.label("L_a_nocode")
    vXa = [8, 9, 10, 11]; vWa = [12, 13]
    a("s_bfe_u32 s73, s3, 0x10001", "s_and_b32 s74, s3, 1", "s_lshr_b32 s75, s3, 2")
    a("v_and_b32 v14, 31, v1", "v_lshrrev_b32 v3, 5, v1", "v_bfe_u32 v7, v1, 1, 3", "v_xor_b32 v3, v3, v7",
      "v_lshlrev_b32 v3, 4, v3", "v_lshl_add_u32 v14, v14, 7, v3",
      "s_lshl_b32 s76, s73, 12", f"s_add_u32 s76, s76, {P1X}", f"v_add_u32 v{vXa[0]}, s76, v14")
    for ks in range(1, 4):
        a(f"v_xor_b32 v{vXa[ks]}, {32*ks}, v{vXa[0]}")
    a("v_lshrrev_b32 v14, 5, v1", "v_mul_u32_u24 v14, 3072, v14", "v_bfe_u32 v3, v1, 2, 2", "v_lshl_add_u32 v14, v3, 6, v14",
      "v_bfe_u32 v3, v1, 4, 1", "v_lshl_add_u32 v14, v3, 5, v14", "v_and_b32 v3, 3, v1", "v_lshl_add_u32 v14, v3, 3, v14",
      "s_lshl_b32 s76, s74, 9", f"v_add_u32 v{vWa[0]}, s76, v14", f"v_add_u32 v{vWa[1]}, 49152, v{vWa[0]}")
    for r in range(16, 48): a(f"v_mov_b32 v{r}, 0")
    a("s_waitcnt lgkmcnt(0)")
    a(f"s_add_u32 s44, s68, {EP:#x}", "s_addc_u32 s45, s69, 0", f"s_load_dword s{sN}, s[44:45], 0")
    a.srd(16, 68, 69, 16*MB)
    a.srd(8, 48, 49, 2048*512*2)
    a.srd(12, 50, 51, 512*1536*2)
    a.srd(28, 60, 61, 1376*512*2)
    a.srd(32, 52, 53, 512*512*2)
    a("s_lshl1_add_u32 s77, s5, s73", "s_lshl_b32 s78, s4, 2", "s_lshl1_add_u32 s78, s74, s78")
    a("s_cmp_lg_u32 s3, 0", "s_cbranch_scc1 L_a_nononce")
    a("v_lshl_add_u32 v3, v1, 2, v4", "ds_write_b32 v3, v16")
    a.label("L_a_nononce")
    a("s_waitcnt lgkmcnt(0)", f"s_add_u32 s{sN}, s{sN}, 1")
    if OPT["tdelay"] >= 0:
        a("s_cmp_lg_u32 s3, 2", "s_cbranch_scc1 L_a_notouch")
        a("s_lshr_b32 s79, s2, 3")
        a("s_mov_b32 s76, 0x15555556", "v_mul_hi_u32 v14, v1, s76", "v_mul_u32_u24 v15, 12, v14", "v_sub_u32 v15, v1, v15",
          "v_mul_u32_u24 v14, 3072, v14", "v_lshrrev_b32 v3, 2, v15", "v_lshl_add_u32 v14, v3, 10, v14", "v_and_b32 v3, 3, v15", "v_lshl_add_u32 v14, v3, 7, v14",
          "s_mul_i32 s76, s79, 12288", "s_and_b32 s80, s2, 1", "s_lshl_b32 s80, s80, 9", "s_add_u32 s76, s76, s80")
        a("v_lshrrev_b32 v15, 2, v1", "v_lshlrev_b32 v15, 10, v15", "v_and_b32 v3, 3, v1", "v_lshl_add_u32 v15, v3, 7, v15",
          "s_bfe_u32 s80, s2, 0x20001", "s_lshl_b32 s80, s80, 19", "s_lshl_b32 s79, s79, 14", "s_add_u32 s80, s80, s79")
        if OPT["tdelay"]: a(f"s_sleep {OPT['tdelay']}")
        a(f"buffer_load_dword v100, v15, {rX}, s80 offen offset:512", "s_mov_b32 exec_hi, 0xffff")
        for p in (2, 3):
            a(f"s_add_u32 s79, s76, {p*128*3072}", f"buffer_load_dword v{99+p}, v14, {rWQ}, s79 offen")
        a("s_mov_b64 exec, -1")
        a.label("L_a_notouch")
    stamp(a, 1)
    a("s_mov_b32 s79, 0", "s_lshr_b32 s81, s4, 2")
    a("s_cmp_lg_u32 s75, 0", "s_barrier", "s_cbranch_scc1 L_p1v")
    fr = [64, 80]
    def p1loop(isv):
        mats = [2] if isv else [0, 1]
        acc = {0: 16, 1: 32, 2: 16}
        nrd = 1 + 2*len(mats)
        def reads(slot, ks):
            f = fr[ks & 1]
            a(f"ds_read_b128 {vr(f,4)}, v{vXa[ks]} offset:{slot*8192}")
            base = (slot & 1)*24576 + ks*6144
            for i, mat in enumerate(mats):
                a(f"ds_read_b64_tr_b16 {vr(f+4+4*i,2)}, v{vWa[slot>>1]} offset:{base + mat*1024}",
                  f"ds_read_b64_tr_b16 {vr(f+6+4*i,2)}, v{vWa[slot>>1]} offset:{base + mat*1024 + 256}")
        lab = "L_p1v_loop" if isv else "L_p1q_loop"
        stamp(a, 2)
        reads(0, 0)
        a.label(lab)
        for slot in range(4):
            if slot == 0 and isv:
                sk = a.newlabel("p1s")
                a("s_cmp_lg_u32 s79, s81", f"s_cbranch_scc1 {sk}")
                a("s_lshl_b32 s76, s74, 6", f"v_xor_b32 v14, s76, v{vXa[0]}", "v_xor_b32 v15, 32, v14",
                  "ds_read_b128 v[96:99], v14", "ds_read_b128 v[100:103], v15")
                a("s_lshl1_add_u32 s76, s77, s81", "s_lshl2_add_u32 s76, s76, s72", "s_lshl1_add_u32 s76, s76, s74", "s_lshl_b32 s76, s76, 11", f"s_add_u32 s76, s76, {XF:#x}")
                a("s_waitcnt lgkmcnt(0)")
                a(f"buffer_store_dwordx4 v[96:99], v2, {rWS}, s76 offen sc1", f"buffer_store_dwordx4 v[100:103], v2, {rWS}, s76 offen offset:1024 sc1")
                a.label(sk)
            if slot == 3 and isv:
                sk = a.newlabel("p1s")
                a("s_cmp_lg_u32 s79, s81", f"s_cbranch_scc1 {sk}")
                a("s_lshl3_add_u32 s76, s77, s4", "s_lshl1_add_u32 s76, s76, s74", "s_lshl_b32 s76, s76, 7", f"s_add_u32 s76, s76, {FX:#x}",
                  "s_waitcnt vmcnt(0)")
                flag_store(a, "s76")
                a.label(sk)
            for ks in range(4):
                f = fr[ks & 1]
                if ks < 3:
                    reads(slot, ks+1)
                else:
                    a("s_waitcnt lgkmcnt(0)")
                    sk = None
                    if slot == 3:
                        sk = a.newlabel("p1e")
                        a("s_cmp_lg_u32 s79, 0", f"s_cbranch_scc1 {sk}")
                    a("s_barrier")
                    reads((slot+1) % 4, 0)
                    if sk: a.label(sk)
                for i, mat in enumerate(mats):
                    if ks < 3: a(f"s_waitcnt lgkmcnt({2*nrd - 3 - 2*i})")
                    if mat < 2: a(f"{MFMA} {vr(acc[mat],16)}, {vr(f+4+4*i,4)}, {vr(f,4)}, {vr(acc[mat],16)}")
                    else: a(f"{MFMA} {vr(acc[mat],16)}, {vr(f,4)}, {vr(f+4+4*i,4)}, {vr(acc[mat],16)}")
        a("s_add_u32 s79, s79, 1", "s_cmp_lt_u32 s79, 2", f"s_cbranch_scc1 {lab}")
    p1loop(False)
    a("s_lshl_b32 s76, s78, 6", "s_add_u32 s76, s76, s77", "s_lshl_b32 s76, s76, 10")
    a("v_and_b32 v14, 0x33, v1", "v_bfe_u32 v3, v1, 2, 1", "v_lshl_add_u32 v14, v3, 3, v14", "v_bfe_u32 v3, v1, 3, 1", "v_lshl_add_u32 v14, v3, 2, v14",
      "v_lshlrev_b32 v14, 4, v14")
    a(f"s_mov_b32 s80, {fbits(QSCALE):#x}", f"s_add_u32 s79, s76, {QF+65536:#x}", "s_nop 1")
    for r in range(0, 16, 2): a(f"v_pk_mul_f32 {vr(16+r,2)}, {vr(16+r,2)}, s[80:81] op_sel_hi:[1,0]")
    for r in range(8): a(f"v_cvt_pk_bf16_f32 v{64+r}, v{16+2*r}, v{17+2*r}")
    a(f"buffer_store_dwordx4 v[64:67], v2, {rWS}, s76 offen sc1", f"buffer_store_dwordx4 v[68:71], v2, {rWS}, s79 offen sc1")
    for r in range(8): a(f"v_cvt_pk_bf16_f32 v{72+r}, v{32+2*r}, v{33+2*r}")
    a(f"s_add_u32 s76, s76, {KF:#x}", f"s_add_u32 s79, s76, 0x10000",
      f"buffer_store_dwordx4 v[72:75], v14, {rWS}, s76 offen sc1", f"buffer_store_dwordx4 v[76:79], v14, {rWS}, s79 offen sc1")
    a("s_branch L_p1done")
    a.label("L_p1v")
    p1loop(True)
    a("s_lshl_b32 s76, s78, 6", "s_add_u32 s76, s76, s77", "s_lshl_b32 s76, s76, 10", f"s_add_u32 s76, s76, {VF:#x}")
    a("v_and_b32 v14, 15, v1", "v_lshlrev_b32 v14, 4, v14", "v_lshrrev_b32 v3, 5, v1", "v_lshl_add_u32 v14, v3, 8, v14",
      "v_bfe_u32 v3, v1, 4, 1", "v_lshl_add_u32 v14, v3, 16, v14", "s_nop 1")
    for r in range(8): a(f"v_cvt_pk_bf16_f32 v{64+r}, v{16+2*r}, v{17+2*r}")
    a(f"buffer_store_dwordx4 v[64:67], v14, {rWS}, s76 offen sc1", f"buffer_store_dwordx4 v[68:71], v14, {rWS}, s76 offen offset:512 sc1")
    a.label("L_p1done")
    stamp(a, 3)
    Qa, Qb, Kf, V1, V2, IDX, vK, vV0, vV1, Sa, Sb, Oa, Ob = 8, 12, 16, 20, 24, 28, 29, 30, 31, 32, 48, 64, 80
    vHC, vGT, vTC = 112, 113, 114
    a("s_and_b32 s73, s3, 3")
    a("s_lshl_b32 s74, s75, 15", f"v_add_u32 v{vK}, s74, v2")
    a("v_and_b32 v3, 15, v1", "v_lshlrev_b32 v3, 4, v3", "v_lshrrev_b32 v7, 5, v1", "v_lshl_add_u32 v3, v7, 8, v3",
      "v_and_b32 v7, 27, v1", "v_cmp_eq_u32 vcc, 16, v7", "v_mov_b32 v14, 0x18000", "v_mov_b32 v15, 1024",
      "v_cndmask_b32 v14, v14, v15, vcc",
      "v_and_b32 v7, 16, v1", "v_cmp_eq_u32 vcc, 0, v7", "v_add_u32 v15, 512, v3",
      f"s_mul_i32 s74, s75, {32*VST}", f"s_add_u32 s74, s74, {VB}",
      f"v_cndmask_b32 v{vV0}, v14, v3, vcc", f"v_cndmask_b32 v{vV1}, v14, v15, vcc",
      f"v_add_u32 v{vV0}, s74, v{vV0}", f"v_add_u32 v{vV1}, s74, v{vV1}")
    a(f"v_mov_b32 v{IDX}, 0xdddd")
    a("s_lshl_b32 s76, s75, 2", f"v_add_u32 v{vHC}, s76, v{vCB}")
    a("v_and_b32 v7, 31, v1", "v_lshlrev_b32 v7, 2, v7", f"v_lshlrev_b32 v{vTC}, 7, v1")
    a("s_lshl_b32 s77, s7, 3", "s_lshl1_add_u32 s77, s73, s77", "s_add_u32 s77, s77, s75")
    a("s_lshl_b32 s78, s6, 16")
    for r in range(8, 16): a(f"v_mov_b32 v{Sb+r}, 0")
    for r in range(16): a(f"v_mov_b32 v{Ob+r}, 0")
    for r in range(4): a(f"v_mov_b32 v{V2+r}, 0x3f803f80")
    a(f"v_mul_u32_u24 v14, {VST//4}, v7", f"s_add_u32 s74, s74, 1024", "v_add_u32 v14, s74, v14")
    a("s_lshl_b32 s80, s75, 5", "s_add_u32 s80, s80, s73", "s_lshl_b32 s81, s80, 10", f"s_mul_i32 s80, s80, {VST}", "s_add_u32 s79, s78, s81")
    a("s_waitcnt vmcnt(0)")
    a("s_mov_b64 exec, 1", f"ds_add_rtn_u32 v3, v{vCB}, v{vONE} offset:{cP1}", "s_mov_b64 exec, -1", "s_waitcnt lgkmcnt(0)",
      "v_readfirstlane_b32 s76, v3", "s_cmp_lg_u32 s76, 7", "s_cbranch_scc1 L_a_noflag")
    a("s_lshl_b32 s76, s4, 5", "s_add_u32 s76, s76, s5", "s_lshl_b32 s76, s76, 7", f"s_add_u32 s76, s76, {FQ:#x}")
    flag_store(a, "s76")
    a("s_lshr_b32 s76, s6, 2", "s_lshl_b32 s76, s76, 12", f"s_add_u32 s76, s76, {FQ:#x}")
    gpoll(a, vTC, "s76", sleep=2, nl=32)
    lds_arrive(a, cQ)
    a.label("L_a_noflag")
    for r in range(16): a(f"v_mov_b32 v{Oa+r}, 0")
    lds_wait(a, cQ, 1, sleep=1)
    stamp(a, 4)
    a(f"ds_write_b128 v14, {vr(V2,4)}")
    a("s_lshl_b32 s76, s77, 10", "s_add_u32 s76, s76, s78", "s_xor_b32 s74, s76, 1024",
      f"buffer_load_dwordx4 {vr(Qa,4)}, v2, {rWS}, s76 offen sc1", f"buffer_load_dwordx4 {vr(Qb,4)}, v2, {rWS}, s74 offen sc1")
    def kvload(dt):
        a(f"s_add_u32 m0, s81, {(KB + dt*1024) & 0xffffffff:#x}", f"s_add_u32 s76, s79, {(KF + dt*1024):#x}",
          f"buffer_load_dwordx4 v2, {rWS}, s76 offen sc1 lds",
          f"s_add_u32 m0, s80, {(VB + dt*VST):#x}", f"s_add_u32 s76, s79, {(VF + dt*1024):#x}",
          f"buffer_load_dwordx4 v2, {rWS}, s76 offen sc1 lds")
    kvload(0); kvload(4)
    a("s_cmp_eq_u32 s75, 0", "s_cbranch_scc1 L_a_ld0")
    for c in range(2, 8): kvload(4*c - 32)
    for c in range(2, 8): kvload(4*c)
    a("s_waitcnt vmcnt(24)", "s_branch L_a_ld1")
    a.label("L_a_ld0")
    a("s_waitcnt vmcnt(0)")
    a.label("L_a_ld1")
    lds_arrive(a, cA, vHC)
    a("s_setprio 3")
    lds_wait(a, cA, 4, vaddr=vHC)
    for r in range(4): a(f"v_mov_b32 v{V2+r}, 0")
    stamp(a, 5)
    a(f"ds_read_b128 {vr(Kf,4)}, v{vK}", f"ds_read_b128 {vr(V1,4)}, v{vV0}", "s_waitcnt lgkmcnt(1)",
      f"{MFMA} {vr(Sa,16)}, {vr(Kf,4)}, {vr(Qa,4)}, 0", "s_mov_b32 s76, 0")
    a.nop(12)
    a.raw(".p2align 6")
    a.label("L_a_loop")
    def E(S, lo, hi):
        for i in range(lo, hi): a(f"v_exp_f32 v{S+i}, v{S+i}")
    for t in range(4):
        if t == 3:
            a("s_cmp_lt_u32 s76, 7", "s_cbranch_scc1 L_a_hook")
            a.label("L_a_hookret")
        if OPT["noattn"]: continue
        E(Sa, 0, 2)
        a(f"{SM} {vr(Ob,16)}, {vr(V2,4)}, {vr(Sb+8,8)}, v{IDX}", f"ds_read_b128 {vr(V2,4)}, v{vV1} offset:{t*VST}")
        E(Sa, 2, 6)
        a(f"{MFMA} {vr(Sb,16)}, {vr(Kf,4)}, {vr(Qb,4)}, 0", f"ds_read_b128 {vr(Kf,4)}, v{vK} offset:{(t+1)*1024}")
        E(Sa, 6, 12)
        a("s_waitcnt lgkmcnt(2)", f"{SM} {vr(Oa,16)}, {vr(V1,4)}, {vr(Sa,8)}, v{IDX}")
        E(Sa, 12, 16)
        E(Sb, 0, 2)
        a("s_waitcnt lgkmcnt(0)", f"{SM} {vr(Oa,16)}, {vr(V2,4)}, {vr(Sa+8,8)}, v{IDX}")
        E(Sb, 2, 6)
        a(f"{MFMA} {vr(Sa,16)}, {vr(Kf,4)}, {vr(Qa,4)}, 0")
        E(Sb, 6, 12)
        a(f"{SM} {vr(Ob,16)}, {vr(V1,4)}, {vr(Sb,8)}, v{IDX}", f"ds_read_b128 {vr(V1,4)}, v{vV0} offset:{(t+1)*VST}")
        E(Sb, 12, 16)
    a(f"v_add_u32 v{vK}, 4096, v{vK}", f"v_add_u32 v{vV0}, {4*VST}, v{vV0}", f"v_add_u32 v{vV1}, {4*VST}, v{vV1}")
    a("s_add_u32 s76, s76, 1", "s_cmp_lt_u32 s76, 8", "s_cbranch_scc1 L_a_loop")
    a(f"{SM} {vr(Ob,16)}, {vr(V2,4)}, {vr(Sb+8,8)}, v{IDX}", "s_setprio 3")
    if OPT["noattn"]: a(f"v_mov_b32 v{Oa+8}, 1.0")
    stamp(a, 6)
    a("s_mul_i32 s79, s73, 2304", "s_lshl_b32 s80, s75, 15", "s_add_u32 s79, s79, s80", "v_add_u32 v3, s79, v2",
      "v_lshrrev_b32 v16, 2, v2", "v_add_u32 v16, s79, v16", "s_lshl_b32 s80, s3, 2", f"v_add_u32 v17, s80, v{vCB}")
    lds_wait(a, cPASS, 4, vaddr=vHC)
    a(f"ds_write_b128 v3, {vr(Ob,4)}", f"ds_write_b128 v3, {vr(Ob+4,4)} offset:1024", f"ds_write_b32 v16, v{Ob+8} offset:2048")
    lds_arrive(a, cEX, 17)
    a("v_xor_b32 v17, 16, v17", "v_xor_b32 v3, 0x8000, v3", "v_xor_b32 v16, 0x8000, v16", "s_setprio 0")
    lds_wait(a, cEX, 1, vaddr=17, sleep=1)
    a("s_setprio 3")
    a(f"ds_read_b128 {vr(Ob,4)}, v3", f"ds_read_b128 {vr(Ob+4,4)}, v3 offset:1024", f"ds_read_b32 v{Ob+8}, v16 offset:2048")
    a("s_lshl_b32 s74, s77, 10", "s_add_u32 s74, s74, s78", f"s_add_u32 s74, s74, {OF:#x}", "s_mov_b32 s76, 0x5f800000", "s_waitcnt lgkmcnt(0)")
    for r in range(9): a(f"v_add_f32 v{Oa+r}, v{Oa+r}, v{Ob+r}")
    O = Oa
    a(f"v_max3_f32 v3, abs(v{O}), abs(v{O+1}), abs(v{O+2})", f"v_max3_f32 v3, abs(v{O+3}), abs(v{O+4}), v3",
      f"v_max3_f32 v3, abs(v{O+5}), abs(v{O+6}), v3", f"v_max3_f32 v3, abs(v{O+7}), v{O+8}, v3")
    a(f"v_add_f32 v16, v{O}, v{O+1}")
    for r in range(2, 9): a(f"v_add_f32 v16, v16, v{O+r}")
    a("v_cmp_ge_f32 vcc, s76, v3", f"v_cmp_le_f32 s[80:81], 1.0, v{O+8}", "s_and_b64 vcc, vcc, s[80:81]", "v_cmp_o_f32 s[80:81], v16, v16",
      "s_and_b64 vcc, vcc, s[80:81]", "s_cmp_eq_u64 vcc, exec", "s_cbranch_scc0 L_a_slow")
    a.label("L_a_fin")
    a(f"v_rcp_f32 v3, v{O+8}", "s_waitcnt vmcnt(0)", f"v_mul_f32 v3, v3, v{vGT}")
    for r in range(8): a(f"v_mul_f32 v{O+r}, v3, v{O+r}")
    for r in range(4): a(f"v_cvt_pk_bf16_f32 v{Qb+r}, v{O+2*r}, v{O+2*r+1}")
    a(f"buffer_store_dwordx4 {vr(Qb,4)}, v2, {rWS}, s74 offen sc1")
    a("s_lshr_b32 s76, s77, 1", "s_lshl_b32 s76, s76, 5", "s_add_u32 s76, s76, s6", "s_and_b32 s79, s77, 1", "s_lshl1_add_u32 s76, s76, s79",
      "s_lshl_b32 s76, s76, 7", f"s_add_u32 s76, s76, {FO:#x}", "s_waitcnt vmcnt(0)")
    flag_store(a, "s76")
    stamp_end(a, 0, 8, 0)
    a("s_endpgm")
    a.label("L_a_hook")
    hooks = {}
    def h0():
        a("s_cmp_eq_u32 s75, 0", "s_cbranch_scc1 L_a_hookret", "s_waitcnt vmcnt(0)")
        lds_arrive(a, cALL)
    def h1(): lds_wait(a, cALL, 4)
    def h2():
        a("s_lshr_b32 s79, s2, 3", "s_lshl3_add_u32 s79, s79, s3", "s_mul_i32 s80, s79, 5504", "s_lshl_b32 s79, s79, 11",
          "s_mov_b32 exec_hi, 0x7ff", f"buffer_load_dword v115, v{vTC}, {rWD}, s80 offen",
          "s_mov_b64 exec, 0xffff", f"buffer_load_dword v116, v{vTC}, {rWO}, s79 offen", "s_mov_b64 exec, -1")
    def h3(): lds_arrive(a, cPASS, vHC)
    def h5():
        a("s_lshr_b32 s79, s77, 1", "s_lshl_b32 s79, s79, 5", "s_and_b32 s80, s77, 1", "s_add_u32 s79, s79, s80", "s_lshl_b32 s79, s79, 7",
          f"s_add_u32 s79, s79, {FH + 30*128:#x}")
        gpoll(a, vTC, "s79", nl=1)
        a("s_lshl_b32 s79, s77, 7", f"s_add_u32 s79, s79, {GT:#x}", f"buffer_load_dword v{vGT}, v7, {rWS}, s79 offen sc1")
    acts = {0: [h0], 1: [h1], 2: [h2], 3: [h3], 5: [h5]}
    acts.setdefault(OPT["pr2"], []).insert(0, lambda: a("s_setprio 2"))
    acts.setdefault(OPT["pr1"], []).insert(0, lambda: a("s_setprio 1"))
    for it in sorted(acts):
        nx = a.newlabel("hk")
        a(f"s_cmp_lg_u32 s76, {it}", f"s_cbranch_scc1 {nx}")
        for f in acts[it]: f()
        a("s_branch L_a_hookret")
        a.label(nx)
    a("s_branch L_a_hookret")
    a.label("L_a_slow")
    NM = 96
    a("v_mov_b32 v3, 0xff800000", f"s_add_u32 s76, s78, {KF:#x}", "s_mov_b32 s79, 0")
    a.label("L_a_max")
    a(f"buffer_load_dwordx4 {vr(V1,4)}, v2, {rWS}, s76 offen sc1", "s_waitcnt vmcnt(0)",
      f"{MFMA} {vr(Sa,16)}, {vr(V1,4)}, {vr(Qa,4)}, 0", "s_add_u32 s76, s76, 1024")
    a.nop(14)
    for r in range(0, 16, 2): a(f"v_max3_f32 v3, v{Sa+r}, v{Sa+r+1}, v3")
    a("s_add_u32 s79, s79, 1", "s_cmp_lt_u32 s79, 64", "s_cbranch_scc1 L_a_max")
    a("v_mov_b32 v16, v3", "s_nop 1", "v_permlane32_swap_b32 v16, v3", "s_nop 1", "v_max_f32 v3, v16, v3")
    for r in range(16): a(f"v_sub_f32 v{NM+r}, 0, v3")
    for r in range(16): a(f"v_mov_b32 v{Oa+r}, 0")
    a("v_and_b32 v3, 15, v1", "v_lshlrev_b32 v3, 4, v3", "v_lshrrev_b32 v16, 5, v1", "v_lshl_add_u32 v3, v16, 8, v3",
      "v_and_b32 v16, 16, v1", "v_cmp_eq_u32 vcc, 0, v16", "v_mov_b32 v16, 0x4000000", "v_mov_b32 v17, 0x3f803f80",
      "v_cndmask_b32 v3, v16, v3, vcc", "v_cndmask_b32 v17, v17, 0, vcc")
    a(f"s_add_u32 s76, s78, {KF:#x}", f"s_add_u32 s80, s78, {VF:#x}", "s_mov_b32 s79, 0")
    a.label("L_a_redo")
    a(f"buffer_load_dwordx4 {vr(Sb,4)}, v2, {rWS}, s76 offen sc1", f"buffer_load_dwordx4 {vr(V1,4)}, v3, {rWS}, s80 offen sc1",
      f"buffer_load_dwordx4 {vr(V2,4)}, v3, {rWS}, s80 offen offset:512 sc1", "s_waitcnt vmcnt(0)",
      f"{MFMA} {vr(Sa,16)}, {vr(Sb,4)}, {vr(Qa,4)}, {vr(NM,16)}", "s_add_u32 s76, s76, 1024", "s_add_u32 s80, s80, 1024")
    for r in range(8): a(f"v_or_b32 v{V1+r}, v17, v{V1+r}")
    a.nop(6)
    E(Sa, 0, 16)
    a("s_nop 1", f"{SM} {vr(Oa,16)}, {vr(V1,4)}, {vr(Sa,8)}, v{IDX}", f"{SM} {vr(Oa,16)}, {vr(V2,4)}, {vr(Sa+8,8)}, v{IDX}")
    a("s_add_u32 s79, s79, 1", "s_cmp_lt_u32 s79, 64", "s_cbranch_scc1 L_a_redo")
    a.nop(14)
    a("s_branch L_a_fin")

def gen_gwave(a):
    vX0, vX1, vW = 8, 9, 10
    a("s_setprio 3")
    a("v_lshrrev_b32 v11, 3, v1", "v_lshrrev_b32 v3, 4, v1", "v_and_b32 v7, 7, v1", "v_xor_b32 v3, v3, v7",
      "v_lshlrev_b32 v3, 4, v3", f"v_lshl_add_u32 v{vX0}, v11, 10, v3",
      f"v_xor_b32 v{vX1}, 64, v{vX0}", f"v_add_u32 v{vX1}, 0x2000, v{vX1}")
    a("v_bfe_u32 v11, v1, 2, 3", "v_mul_u32_u24 v11, 3072, v11", "v_lshrrev_b32 v3, 5, v1", "v_lshl_add_u32 v11, v3, 6, v11",
      "v_and_b32 v3, 3, v1", f"v_lshl_add_u32 v{vW}, v3, 4, v11")
    a("s_lshl_b32 s74, s5, 16", "s_lshl_b32 s78, s3, 14", "s_add_u32 s74, s74, s78")
    a("s_mul_i32 s75, s3, 49152", "s_lshl_b32 s78, s4, 7", "s_add_u32 s75, s75, s78")
    a("s_lshl_b32 s76, s3, 11", f"s_add_u32 s76, s76, {P1X}", "s_mul_i32 s77, s3, 6144")
    a("s_mov_b32 s10, 0x200000", "s_mov_b32 s11, 0x20000", "s_mov_b32 s14, 0x180000", "s_mov_b32 s15, 0x20000", "s_mov_b32 s80, 0")
    a("s_waitcnt lgkmcnt(0)")
    a("s_mov_b64 s[8:9], s[48:49]", "s_mov_b64 s[12:13], s[50:51]")
    stamp(a, 1)
    def issue():
        a("s_xor_b32 s73, s72, s80", "s_and_b32 s81, s80, 3", "s_lshl_b32 s79, s73, 7", "s_add_u32 s78, s74, s79",
          "s_lshl_b32 s79, s81, 13", "s_add_u32 m0, s76, s79", "s_mul_i32 s79, s73, 196608",
          f"buffer_load_dwordx4 v{vX0}, {rX}, s78 offen lds",
          "s_add_u32 m0, m0, 1024", "s_add_u32 s79, s79, s75",
          f"buffer_load_dwordx4 v{vX1}, {rX}, s78 offen lds",
          "s_mul_i32 s81, s81, 24576", "s_add_u32 m0, s77, s81", "s_add_u32 s80, s80, 1")
        for kh in range(2):
            if kh: a("s_add_u32 m0, m0, 3072", f"s_add_u32 s79, s79, {8*3072}")
            for mat in range(3):
                a(f"buffer_load_dwordx4 v{vW}, {rWQ}, s79 offen offset:{mat*1024} lds")
    issue(); issue()
    common2(a)
    a(f"s_add_u32 s44, s68, {EP:#x}", "s_addc_u32 s45, s69, 0", f"s_load_dword s{sN}, s[44:45], 0")
    a.srd(16, 68, 69, 16*MB)
    a.srd(20, 68, 69, HF_BYTES, add=HF)
    a.srd(28, 60, 61, 1376*512*2)
    a.srd(32, 52, 53, 512*512*2)
    a.srd(36, 64, 65, 2048*512*2)
    a.srd(40, 62, 63, 1024)
    a("s_cmp_lt_u32 s3, 2", "s_cselect_b32 s24, s56, s58", "s_cselect_b32 s25, s57, s59", f"s_mov_b32 s26, {512*1376*2:#x}", "s_mov_b32 s27, 0x20000")
    sRT, sCBK, sWb, sL, sK, sXb, sKx, sT = 48, 49, 50, 51, 52, 53, 54, 55
    a(f"s_and_b32 s{sRT}, s2, 1", f"s_lshl3_add_u32 s{sRT}, s{sRT}, s7", f"s_bfe_u32 s{sCBK}, s2, 0x20001", f"s_lshl2_add_u32 s{sCBK}, s{sCBK}, s71")
    a(f"s_lshl1_add_u32 s{sK}, s{sCBK}, s{sRT}", f"s_and_b32 s{sK}, s{sK}, 7", f"s_lshl_b32 s{sK}, s{sK}, 2")
    a(f"s_lshl2_add_u32 s{sRT}, s{sRT}, s3")
    a(f"s_and_b32 s{sT}, s3, 1", f"s_mul_i32 s{sWb}, s{sT}, {8*2752}", f"s_mul_i32 s{sT}, s{sCBK}, 192", f"s_add_u32 s{sWb}, s{sWb}, s{sT}")
    a(f"s_mul_i32 s{sL}, s3, 1536", f"s_add_u32 s{sL}, s{sL}, {RING}")
    a(f"s_lshl_b32 s{sXb}, s{sRT}, 15", f"s_add_u32 s{sXb}, s{sXb}, {XF:#x}", f"s_lshl_b32 s{sKx}, s{sK}, 10")
    vD = [53, 54]; vT, vTd = 11, 52
    X = [12, 16, 20, 24]; W = 28
    acc = [64 + 16*i for i in range(6)]
    a(f"s_mov_b32 s{sT}, 0x15555556")
    for i in range(2):
        a(f"v_add_u32 v3, {64*i}, v1", f"v_mul_hi_u32 v12, v3, s{sT}", "v_mul_u32_u24 v13, 12, v12", "v_sub_u32 v13, v3, v13",
          "v_mul_u32_u24 v12, 2752, v12", f"v_lshl_add_u32 v{vD[i]}, v13, 4, v12")
    a("v_lshrrev_b32 v3, 5, v1", "v_lshlrev_b32 v3, 3, v3", "v_bfe_u32 v12, v1, 2, 2", "v_add_u32 v3, v3, v12", "v_mul_u32_u24 v3, 192, v3",
      "v_bfe_u32 v12, v1, 4, 1", "v_lshl_add_u32 v3, v12, 5, v3", "v_and_b32 v12, 3, v1", "v_lshl_add_u32 v3, v12, 3, v3", f"v_add_u32 v{vT}, {RING}, v3")
    a("v_lshlrev_b32 v7, 7, v1", f"v_mov_b32 v{vTd}, v{vT}")
    for r in range(96): a(f"v_mov_b32 v{64+r}, 0")
    a("s_waitcnt lgkmcnt(0)", f"s_add_u32 s{sN}, s{sN}, 1")
    a("s_waitcnt vmcnt(8)", "s_barrier")
    issue()
    a.label("L_g_p1")
    issue()
    a("s_waitcnt vmcnt(16)", "s_barrier", "s_cmp_lt_u32 s80, 7", "s_cbranch_scc1 L_g_p1")
    issue()
    def wnext():
        a(f"s_mul_i32 s78, s{sK}, 44032", f"s_add_u32 s78, s78, s{sWb}", f"s_add_u32 s{sK}, s{sK}, 1", f"s_and_b32 s{sK}, s{sK}, 31")
    a(f"s_cmp_eq_u32 s{sCBK}, 15", f"s_cmov_b32 s{sWb}, 0x40000000")
    for st in range(4):
        wnext()
        a(f"s_add_u32 m0, s{sL}, {st*6144}", "s_nop 0", f"buffer_load_dwordx4 v{vD[0]}, {rWG}, s78 offen lds",
          "s_add_u32 m0, m0, 1024", "s_mov_b32 exec_hi, 0", f"buffer_load_dwordx4 v{vD[1]}, {rWG}, s78 offen lds", "s_mov_b32 exec_hi, -1")
    a("s_waitcnt vmcnt(24)", "s_barrier", "s_waitcnt vmcnt(16)", "s_barrier", "s_waitcnt vmcnt(8)", "s_barrier")
    stamp(a, 2)
    a(f"s_lshl_b32 s79, s{sRT}, 11", f"s_add_u32 s79, s79, {FX:#x}")
    gpoll(a, 7, "s79", nl=16)
    lds_arrive(a, cG)
    a(f"s_cmp_eq_u32 s{sCBK}, 15", "s_cbranch_scc1 L_g_gate")
    a(f"s_add_u32 s78, s{sXb}, s{sKx}")
    for e in range(3):
        a(f"buffer_load_dwordx4 {vr(X[e],4)}, v2, {rWS}, s78 offen offset:{e*1024} sc1")
    a(f"s_add_u32 s{sKx}, s{sKx}, 3072", f"v_add_u32 v3, s{sKx}, v7", "v_and_b32 v3, 0x7fff, v3", "s_mov_b32 exec_hi, 0xff",
      f"buffer_load_dword v61, v3, {rWS}, s{sXb} offen sc1", "s_mov_b32 exec_hi, -1")
    lds_wait(a, cG, 4)
    def rd(i):
        ct, mat = i >> 1, i & 1
        o = mat*3072 + ct*64
        f = W + 4*i
        return [f"ds_read_b64_tr_b16 {vr(f,2)}, v{vTd} offset:{o}", f"ds_read_b64_tr_b16 {vr(f+2,2)}, v{vTd} offset:{o+768}"]
    for i in range(4): a(*rd(i))
    a(f"ds_read_b32 v{vPOLL}, v{vCB} offset:{cG}")
    for i in range(4, 6): a(*rd(i))
    a("s_mov_b32 s79, 4", "s_mov_b32 s72, 6144", f"s_add_u32 s73, s{sL}, {24576+1024}", f"s_add_u32 s74, s{sL}, {30720+1024}", f"s_add_u32 s75, s{sL}, 1024",
      "s_waitcnt vmcnt(1)")
    stamp(a, 3)
    a.raw(".p2align 6")
    a.label("L_g_loop")
    for u in range(4):
        mm = lambda i: f"{MFMA} {vr(acc[i],16)}, {vr(W+4*i,4)}, {vr(X[u],4)}, {vr(acc[i],16)}"
        lp, ok, rt = a.newlabel("gl"), a.newlabel("gk"), a.newlabel("gr")
        OOL.append([rt + ":", f"ds_read_b32 v{vPOLL}, v{vCB} offset:{cG}", f"s_sub_u32 s{sBUD}, s{sBUD}, 1", "s_waitcnt lgkmcnt(0)",
                    f"s_cbranch_scc0 {lp}", f"s_mov_b32 s{sBUD}, 0", f"s_branch {ok}"])
        a("s_waitcnt lgkmcnt(4)")
        a.label(lp)
        a("s_setprio 3", f"v_readfirstlane_b32 s82, v{vPOLL}", f"v_add_u32 v{vTd}, s72, v{vT}", "s_setprio 0",
          "s_cmp_ge_u32 s82, s79", f"s_cbranch_scc0 {rt}")
        a.label(ok)
        a("s_waitcnt vmcnt(6)", mm(0), *rd(0))
        a("s_add_u32 s72, s72, 6144", "s_cmp_eq_u32 s72, 30720", "s_cmov_b32 s72, 0", "s_add_u32 s79, s79, 4")
        a(mm(1), *rd(1))
        wnext()
        a("s_mov_b32 m0, s73", "s_mov_b64 exec, 1", "s_waitcnt vmcnt(4) lgkmcnt(4)", f"ds_add_u32 v{vCB}, v{vONE} offset:{cG}", "s_mov_b32 exec_lo, -1",
          f"buffer_load_dwordx4 v{vD[1]}, {rWG}, s78 offen lds", "s_mov_b64 exec, -1")
        a(mm(2), *rd(2))
        a("s_sub_u32 m0, s73, 1024", "s_add_u32 s73, s73, 6144", f"buffer_load_dwordx4 v{vD[0]}, {rWG}, s78 offen lds")
        a(mm(3), *rd(3))
        a(f"ds_read_b32 v{vPOLL}, v{vCB} offset:{cG}", "s_cmp_eq_u32 s73, s74", "s_cmov_b32 s73, s75")
        a(mm(4), *rd(4))
        a(f"s_add_u32 s78, s{sXb}, s{sKx}", f"s_add_u32 s{sKx}, s{sKx}, 1024", f"s_and_b32 s{sKx}, s{sKx}, 0x7fff")
        a(mm(5), *rd(5))
        a(f"buffer_load_dwordx4 {vr(X[(u+3)%4],4)}, v2, {rWS}, s78 offen sc1")
    a(f"s_cmp_eq_u32 s79, {4*29}", f"s_cmov_b32 s{sWb}, 0x40000000")
    a(f"s_cmp_lt_u32 s79, {4*33}", "s_cbranch_scc1 L_g_loop")
    a(f"s_mov_b32 s74, s{sRT}", f"s_mov_b32 s75, s{sCBK}")
    stamp(a, 4)
    a("s_setprio 3")
    a(f"s_mov_b32 s80, {fbits(-LOG2E):#x}")
    a("s_mul_i32 s79, s75, 6", "s_lshl_b32 s79, s79, 16", "s_lshl_b32 s81, s74, 10", "s_add_u32 s79, s79, s81")
    for ct in range(3):
        g, u = acc[2*ct], acc[2*ct+1]
        for r in range(0, 16, 2): a(f"v_pk_mul_f32 {vr(g+r,2)}, {vr(g+r,2)}, s[80:81] op_sel_hi:[1,0]")
        for r in range(16): a(f"v_exp_f32 v{g+r}, v{g+r}")
        for r in range(0, 16, 2): a(f"v_pk_add_f32 {vr(g+r,2)}, {vr(g+r,2)}, 1.0 op_sel_hi:[1,0]")
        for r in range(16): a(f"v_rcp_f32 v{g+r}, v{g+r}")
        for r in range(0, 16, 2): a(f"v_pk_mul_f32 {vr(g+r,2)}, {vr(g+r,2)}, {vr(u+r,2)}")
        for r in range(8): a(f"v_cvt_pk_bf16_f32 v{u+r}, v{g+2*r}, v{g+2*r+1}")
        a("s_add_u32 s78, s79, 0x10000",
          f"buffer_store_dwordx4 {vr(u,4)}, v2, {rHF}, s79 offen sc1", f"buffer_store_dwordx4 {vr(u+4,4)}, v2, {rHF}, s78 offen sc1")
        if ct == 0: a("s_cmp_eq_u32 s75, 14", "s_cbranch_scc1 L_g_hdone")
        if ct < 2: a("s_add_u32 s79, s79, 0x20000")
    a.label("L_g_hdone")
    a("s_waitcnt vmcnt(0) lgkmcnt(0)")
    lds_arrive(a, cG)
    a("s_mov_b32 s72, 136", "s_branch L_g_pub")
    a.label("L_g_gate")
    a(f"s_mov_b32 s74, s{sRT}", f"s_mov_b32 s75, s{sCBK}", f"s_mov_b32 s78, s{sXb}")
    stamp(a, 3); stamp(a, 4)
    a("v_lshrrev_b32 v3, 5, v1", "v_lshlrev_b32 v3, 4, v3", "s_mov_b32 s80, 0")
    a.label("L_g_gloop")
    for e in range(8):
        if e == 4: a("s_add_u32 s78, s78, 4096")
        a(f"buffer_load_dwordx4 {vr(16+4*e,4)}, v2, {rWS}, s78 offen offset:{(e%4)*1024} sc1",
          f"buffer_load_dwordx4 {vr(48+4*e,4)}, v3, {rGW}, s80 offen offset:{e*32}")
    a("s_add_u32 s78, s78, 4096", "s_add_u32 s80, s80, 256", "s_waitcnt vmcnt(0)")
    for e in range(8):
        a(f"{MFMA} {vr(80,16)}, {vr(48+4*e,4)}, {vr(16+4*e,4)}, {vr(80,16)}")
    a("s_cmp_lt_u32 s80, 1024", "s_cbranch_scc1 L_g_gloop")
    a.nop(12)
    a(f"s_mov_b32 s80, {fbits(-LOG2E):#x}", "v_mul_f32 v80, s80, v80", "v_exp_f32 v80, v80", "s_nop 0", "v_add_f32 v80, 1.0, v80",
      "v_rcp_f32 v80, v80", "v_and_b32 v3, 31, v1", "v_lshlrev_b32 v3, 2, v3", "s_lshl_b32 s80, s74, 7", f"s_add_u32 s80, s80, {GT:#x}",
      f"buffer_store_dword v80, v3, {rWS}, s80 offen sc1", "s_waitcnt vmcnt(0)", "s_mov_b32 s72, 4")
    a.label("L_g_pub")
    a("s_lshr_b32 s79, s74, 1", "s_lshl4_add_u32 s79, s79, s75", "s_and_b32 s80, s74, 1", "s_lshl1_add_u32 s79, s79, s80",
      "s_lshl_b32 s79, s79, 7", f"s_add_u32 s79, s79, {FH:#x}")
    flag_store(a, "s79")
    vW, vT2, vG = 8, 9, 10
    Wf = [12, 20]; HD = 5; H = [28 + 8*i for i in range(HD)]
    acc = [104 + 16*i for i in range(4)]
    WF = 40; OFR = 8
    NS = 3
    a("v_bfe_u32 v3, v1, 2, 3", "v_lshlrev_b32 v3, 10, v3", "v_lshrrev_b32 v7, 5, v1", "v_lshl_add_u32 v3, v7, 6, v3",
      "v_and_b32 v7, 3, v1", f"v_lshl_add_u32 v{vW}, v7, 4, v3")
    a("s_mul_i32 s74, s3, 22", "s_lshl_b32 s75, s74, 16", "s_lshl_b32 s79, s6, 11", "s_add_u32 s75, s75, s79")
    a("s_lshl_b32 s76, s74, 14", "s_lshl_b32 s79, s7, 7", "s_add_u32 s76, s76, s79")
    a("s_lshl_b32 s74, s3, 17", "s_add_u32 s74, s74, s79")
    a(f"s_mul_i32 s77, s3, 7680", f"s_add_u32 s77, s77, {RING}")
    a("v_lshrrev_b32 v3, 5, v1", "v_lshlrev_b32 v3, 2, v3", "v_bfe_u32 v7, v1, 2, 2", "v_add_u32 v3, v3, v7", "v_lshlrev_b32 v3, 6, v3",
      "v_bfe_u32 v7, v1, 4, 1", "v_lshl_add_u32 v3, v7, 5, v3", "v_and_b32 v7, 3, v1", "v_lshl_add_u32 v3, v7, 3, v3", f"v_add_u32 v{vT2}, s77, v3")
    a("s_lshl_b32 s79, s3, 3", "s_sub_u32 s79, s79, 2", "s_max_i32 s79, s79, 0", "v_add_u32 v3, s79, v1", "v_add_u32 v7, 20, v1",
      "v_cmp_gt_u32 vcc, 10, v1", "s_lshl_b32 s80, s6, 12", f"s_add_u32 s80, s80, {FH:#x}", "v_cndmask_b32 v7, v7, v3, vcc", "v_lshlrev_b32 v7, 7, v7")
    a("v_lshrrev_b32 v3, 4, v1", "v_lshlrev_b32 v3, 16, v3", "v_and_b32 v11, 15, v1", "v_lshl_add_u32 v100, v11, 7, v3",
      "v_and_b32 v101, 31, v1", "v_lshlrev_b32 v101, 2, v101")
    lds_wait(a, cG, "s72")
    q = VQ(a)
    def wload(k, o):
        slot = k % NS
        if k < 22:
            a(f"s_add_u32 m0, s77, {slot*2048 + o*1024}", f"s_add_u32 s79, s76, {(k*16 + o*8)*1024}", f"buffer_load_dwordx4 v{vW}, {rWD}, s79 offen lds")
        else:
            a(f"s_add_u32 m0, s77, {slot*2048 + o*1024}", f"s_add_u32 s79, s74, {((k-22)*16 + o*8)*1024}", f"buffer_load_dwordx4 v{vW}, {rWO}, s79 offen lds")
        q.issue(("W", k))
    def hload(k, rt):
        if rt == 0: a(f"s_add_u32 s78, s75, {k*65536}")
        a(f"buffer_load_dwordx4 {vr(H[k%HD]+4*rt,4)}, v2, {rHF}, s78 offen offset:{rt*1024} sc1")
        q.issue(("H", k))
    def wread(k):
        slot = k % NS
        dst = Wf[k & 1] if k < 22 else WF + 8*(k-22)
        for ct in range(2):
            a(f"ds_read_b64_tr_b16 {vr(dst+4*ct,2)}, v{vT2} offset:{slot*2048 + ct*512}",
              f"ds_read_b64_tr_b16 {vr(dst+4*ct+2,2)}, v{vT2} offset:{slot*2048 + ct*512 + 1024}")
    for k in range(3):
        wload(k, 0); wload(k, 1)
    gpoll(a, 7, "s80", nl=12, sleep=4)
    q.drain()
    stamp(a, 5)
    a("s_setprio 0")
    for k in range(HD-1):
        hload(k, 0); hload(k, 1)
    a("s_mul_i32 s79, s7, 0x30000", "s_add_u32 s79, s79, s75", "s_mov_b32 exec_hi, 0xffff",
      f"buffer_load_dword v102, v100, {rHF}, s79 offen sc1", "s_mov_b64 exec, -1")
    q.issue("t")
    a("s_lshl_b32 s79, s6, 8", f"s_add_u32 s79, s79, {GT:#x}",
      f"buffer_load_dword v{vG}, v101, {rWS}, s79 offen sc1", f"buffer_load_dword v{vG+1}, v101, {rWS}, s79 offen offset:128 sc1")
    q.issue("g"); q.issue("g")
    wread(0)
    for k in range(22):
        q.wait(("W", k+1), ("H", k))
        a("s_waitcnt lgkmcnt(0)")
        if k < 21: wread(k+1)
        extra = [lambda: wload(k+3, 0), lambda: wload(k+3, 1)]
        if k + HD - 1 < 22: extra += [lambda: hload(k+HD-1, 0), lambda: hload(k+HD-1, 1)]
        for i in range(4):
            ct, rt = i >> 1, i & 1
            C = "0" if k == 0 else vr(acc[i], 16)
            a(f"{MFMA} {vr(acc[i],16)}, {vr(Wf[k&1]+4*ct,4)}, {vr(H[k%HD]+4*rt,4)}, {C}")
            if i < len(extra): extra[i]()
    a("s_setprio 3")
    for k in range(22, 30):
        q.wait(("W", k))
        wread(k)
        a("s_waitcnt lgkmcnt(0)")
        if k + 3 < 30:
            wload(k+3, 0); wload(k+3, 1)
        if k == 22:
            a(f"v_sub_f32 v12, 1.0, v{vG}", f"v_sub_f32 v14, 1.0, v{vG+1}")
        if 22 <= k < 26:
            t = k - 22
            for r in range(0, 16, 2):
                a(f"v_pk_mul_f32 {vr(acc[t]+r,2)}, {vr(acc[t]+r,2)}, {vr(12+2*(t&1),2)} op_sel_hi:[1,0]")
    stamp(a, 6)
    a("v_lshlrev_b32 v7, 7, v1", "s_lshl_b32 s79, s6, 13", "s_lshl_b32 s80, s3, 11", "s_add_u32 s79, s79, s80", f"s_add_u32 s79, s79, {FO:#x}")
    a("s_lshl_b32 s75, s3, 19", "s_lshl_b32 s80, s6, 11", "s_add_u32 s75, s75, s80", f"s_add_u32 s75, s75, {OF:#x}")
    a("v_lshrrev_b32 v3, 4, v1", "v_lshlrev_b32 v3, 16, v3", "v_and_b32 v8, 15, v1", "v_lshl_add_u32 v3, v8, 7, v3", "s_add_u32 s80, s75, 0x40000")
    gpoll(a, 7, "s79", sleep=2, nl=16)
    q.drain()
    def oload(h):
        a(f"s_add_u32 s79, s75, {h*65536}")
        for rt in range(2):
            a(f"buffer_load_dwordx4 {vr(OFR+8*(h%4)+4*rt,4)}, v2, {rWS}, s79 offen offset:{rt*1024} sc1")
            q.issue(("O", h))
    for h in range(4): oload(h)
    a(f"buffer_load_dword v7, v3, {rWS}, s80 offen sc1"); q.issue("t")
    for h in range(8):
        q.wait(("O", h))
        for ct in range(2):
            for rt in range(2):
                a(f"{MFMA} {vr(acc[ct*2+rt],16)}, {vr(WF+8*h+4*ct,4)}, {vr(OFR+8*(h%4)+4*rt,4)}, {vr(acc[ct*2+rt],16)}")
        if h + 4 < 8: oload(h+4)
    a("s_lshl_b32 s79, s3, 14", "v_add_u32 v3, s79, v2", "s_lshl_b32 s79, s3, 12", "v_add_u32 v7, s79, v2")
    a("s_barrier")
    a.nop(8)
    for t in range(4):
        for qd in range(4):
            a(f"ds_write_b128 v3, {vr(acc[t]+4*qd,4)} offset:{t*4096 + qd*1024}")
    a("s_waitcnt lgkmcnt(0)", "s_barrier")
    for w in range(4):
        for qd in range(4):
            a(f"ds_read_b128 {vr(acc[w]+4*qd,4)}, v7 offset:{w*16384 + qd*1024}")
    a("v_and_b32 v3, 31, v1", "v_lshlrev_b32 v3, 10, v3", "v_lshrrev_b32 v7, 5, v1", "v_lshl_add_u32 v3, v7, 4, v3",
      "s_and_b32 s79, s3, 1", "s_lshl1_add_u32 s79, s6, s79", "s_lshl_b32 s79, s79, 15", "s_lshl_b32 s80, s7, 7", "s_add_u32 s79, s79, s80",
      "s_lshr_b32 s80, s3, 1", "s_lshl_b32 s80, s80, 6", "s_add_u32 s79, s79, s80")
    a("s_waitcnt lgkmcnt(8)")
    for r in range(0, 16, 2): a(f"v_pk_add_f32 {vr(acc[0]+r,2)}, {vr(acc[0]+r,2)}, {vr(acc[1]+r,2)}")
    a("s_waitcnt lgkmcnt(0)")
    for r in range(0, 16, 2): a(f"v_pk_add_f32 {vr(acc[2]+r,2)}, {vr(acc[2]+r,2)}, {vr(acc[3]+r,2)}")
    for r in range(0, 16, 2): a(f"v_pk_add_f32 {vr(acc[0]+r,2)}, {vr(acc[0]+r,2)}, {vr(acc[2]+r,2)}")
    for r in range(8): a(f"v_cvt_pk_bf16_f32 v{16+r}, v{acc[0]+2*r}, v{acc[0]+2*r+1}")
    a("s_nop 1")
    for p in range(2):
        b = 16 + 4*p
        a(f"v_permlane32_swap_b32 v{b}, v{b+2}", f"v_permlane32_swap_b32 v{b+1}, v{b+3}")
    a(f"buffer_store_dwordx4 v[16:19], v3, {rOUT}, s79 offen", f"buffer_store_dwordx4 v[20:23], v3, {rOUT}, s79 offen offset:32")
    a("s_or_b32 s79, s2, s3", "s_cmp_lg_u32 s79, 0", "s_cbranch_scc1 L_g_noep", f"s_mov_b32 s79, {EP:#x}")
    flag_store(a, "s79")
    a.label("L_g_noep")
    stamp_end(a, 1, 4, 0)

HEADER = open("gated_mix__mha_block__glu_gated_glu__prompt.s.ref").read().split("; Override launch")[0]
def build():
    a = Asm()
    txt = HEADER + "; @launch grid=(256,1,1) block=(768,1,1) lds=163840\n"
    txt += '.amdgcn_target "amdgcn-amd-amdhsa--gfx950"\n.text\n'
    d = gen(a)
    txt += a.text() + '.section .rodata,"a"\n' + d
    return txt
if __name__ == "__main__":
    for o in sys.argv[2:]:
        if "=" in o:
            k, v = o.split("="); OPT[k] = int(v)
        else: OPT[o] = True
    open(sys.argv[1], "w").write(build())
    print("wrote", sys.argv[1])
```

```python
import sys, math, struct
from asmlib import *

MB = 1 << 20
QF, KF, VF, OF, XF, GT, FL, ST, HF = 0, 2*MB, 4*MB, 6*MB, 8*MB, 12*MB, 13*MB, 14*MB, 16*MB
KST = 44032
EP = FL + 0xf0000
FQ, FX, FH, FO, FP = FL, FL + 0x8000, FL + 0x28000, FL + 0x48000, FL + 0x88000
HF_BYTES = 86 * 65536
QSCALE = 0.25 * math.log2(math.e)
LOG2E = math.log2(math.e)
def fbits(x): return struct.unpack("<I", struct.pack("<f", x))[0]
MFMA = "v_mfma_f32_32x32x16_bf16"
SM = "v_smfmac_f32_32x32x32_bf16"
NAME = "gated_mix__mha_block__glu_gated_glu__prompt_kernel"
rX, rWQ, rWS, rHF, rWG, rWD, rWO, rOUT, rGW = [f"s[{i}:{i+3}]" for i in range(8, 44, 4)]
P1X, P1W = 0, 65536
KB, VB, VST = 0, 65536, 1040
RING = VB + 64*VST
CB = RING + 30720
cPASS, cEX, cB, cALL = 20, 32, 64, 80
vCB, vONE, vPOLL = 4, 5, 6
sN, sBUD = 70, 83
OPT = dict(nd=2, tr=set(), vtr=0, cyc=0, noattn=0, nod=0, pr2=4, pr1=6, warm=0, wstep=8, dprio=0, hst=1)

def trace(a, grp):
    if grp not in OPT["tr"]: return
    v = OPT["vtr"]
    a("s_memtime s[84:85]" if OPT["cyc"] else "s_memrealtime s[84:85]", "s_mov_b32 s87, m0", "s_mov_b32 m0, s86", "s_waitcnt lgkmcnt(0)", f"v_writelane_b32 v{v}, s84, m0",
      "s_add_u32 s86, s86, 1", "s_mov_b32 m0, s87", "s_nop 0")
def trace2(a, grp):
    if grp not in OPT["tr"]: return
    a("s_cselect_b32 s101, 1, 0"); trace(a, grp); a("s_cmp_eq_u32 s101, 1")
def stamp(a, i=0): trace(a, "m")
def trace_init(a):
    if OPT["tr"]: a("s_mov_b32 s86, 0", f"v_mov_b32 v{OPT['vtr']}, 0")
def stamp_end(a, kidx):
    if not OPT["tr"]: return
    a("s_waitcnt vmcnt(0)")
    OPT["tr"].add("end"); trace(a, "end")
    a("s_mul_i32 s71, s2, 12", "s_add_u32 s71, s71, s3", f"s_add_u32 s71, s71, {4 if kidx == 0 else 0}", "s_lshl_b32 s71, s71, 8", f"s_add_u32 s71, s71, {ST:#x}",
      "v_lshlrev_b32 v7, 2, v1", f"buffer_store_dword v{OPT['vtr']}, v7, {rWS}, s71 offen")

def lds_arrive(a, off, vaddr=vCB):
    a("s_mov_b64 exec, 1", f"ds_add_u32 v{vaddr}, v{vONE} offset:{off}", "s_mov_b64 exec, -1")
OOL = []
def emit_ool(a):
    while OOL:
        blk = OOL.pop(0)
        for l in blk:
            if l.startswith("@") or l.startswith("."): a.raw(l)
            elif l.endswith(":"): a.label(l[:-1])
            else: a(l)
class Ool:
    def __init__(self, a): self.a = a
    def __enter__(self): self.sv = self.a.lines; self.a.lines = []
    def __exit__(self, *e):
        OOL.append([l.strip() for l in self.a.lines]); self.a.lines = self.sv
def retry(a, lp, dn, sleep):
    rt = a.newlabel("rt")
    OOL.append([rt + ":"] + ([f"s_sleep {sleep}"] if sleep else []) +
               [f"s_sub_u32 s{sBUD}, s{sBUD}, 1", f"s_cbranch_scc0 {lp}", f"s_mov_b32 s{sBUD}, 0", f"s_branch {dn}"])
    return rt
def lds_wait(a, off, target, vaddr=vCB, sleep=0):
    lp, dn = a.newlabel("lw"), a.newlabel("lwd")
    rt = retry(a, lp, dn, sleep)
    a.label(lp)
    a(f"ds_read_b32 v{vPOLL}, v{vaddr} offset:{off}", "s_waitcnt lgkmcnt(0)", f"v_readfirstlane_b32 s82, v{vPOLL}",
      f"s_cmp_ge_u32 s82, {target}", f"s_cbranch_scc0 {rt}")
    a.label(dn)
def pre_wait(a, off, target, vaddr=vCB):
    lp, dn, rt = a.newlabel("pw"), a.newlabel("pwd"), a.newlabel("pwr")
    OOL.append([rt + ":", f"ds_read_b32 v{vPOLL}, v{vaddr} offset:{off}", f"s_sub_u32 s{sBUD}, s{sBUD}, 1", "s_waitcnt lgkmcnt(0)",
                f"s_cbranch_scc0 {lp}", f"s_mov_b32 s{sBUD}, 0", f"s_branch {dn}"])
    a.label(lp)
    a(f"v_readfirstlane_b32 s82, v{vPOLL}", f"s_cmp_ge_u32 s82, {target}", f"s_cbranch_scc0 {rt}")
    a.label(dn)
def flag_wait(a, off, vaddr, sleep=0):
    lp, dn = a.newlabel("fw"), a.newlabel("fwd")
    rt = retry(a, lp, dn, sleep)
    a.label(lp)
    a(f"ds_read_b32 v{vPOLL}, v{vaddr} offset:{off}", "s_waitcnt lgkmcnt(0)", f"v_cmp_eq_u32 vcc, 0, v{vPOLL}", f"s_cbranch_vccnz {rt}")
    a.label(dn)
def gpoll(a, vaddr, soff, sleep=2, nl=64):
    lp, dn = a.newlabel("gp"), a.newlabel("gpd")
    rt = retry(a, lp, dn, sleep)
    if nl < 64: a(f"s_mov_b64 exec, {(1 << nl) - 1:#x}")
    a.label(lp)
    a(f"buffer_load_dword v{vPOLL}, v{vaddr}, {rWS}, {soff} offen sc1", "s_waitcnt vmcnt(0)",
      f"v_cmp_ne_u32 vcc, s{sN}, v{vPOLL}", f"s_cbranch_vccnz {rt}")
    a.label(dn)
    if nl < 64: a("s_mov_b64 exec, -1")
def flag_store(a, soff):
    a(f"v_mov_b32 v3, s{sN}", "s_mov_b64 exec, 1", f"buffer_store_dword v3, off, {rWS}, {soff} sc1", "s_mov_b64 exec, -1")
def skip_ool(a):
    pass

class VQ:
    def __init__(self, a): self.a = a; self.q = []
    def issue(self, tag): self.q.append(tag)
    def wait(self, *tags):
        idx = max([i for i, t in enumerate(self.q) if t in tags], default=-1)
        if idx < 0: return
        n = len(self.q) - 1 - idx
        assert n <= 63
        self.a(f"s_waitcnt vmcnt({n})")
        self.q = self.q[idx+1:]
    def drain(self): self.q = []

def won(a, role): a.raw(f"@W+ {role}")
def woff(a): a.raw("@W-")
def warm_call(a, role, nchain, sel, extra=None):
    if not OPT["warm"]: return
    a("s_mov_b64 exec, 0")
    for c in range(nchain):
        a(f"s_cmp_eq_u32 {sel}, {c}", f"s_cbranch_scc1 L_w{role}_{c}")
    if extra: a(f"s_cmp_eq_u32 {sel}, {extra[0]}", f"s_cbranch_scc1 {extra[1]}")
    a.label(f"L_wret_{role}")
    a("s_mov_b64 exec, -1")
def insert_hops(lines, nchain):
    out = []; role = None; cnt = 0; spots = {}
    for l in lines:
        if l.startswith("@W+"): role = l.split()[1]; cnt = OPT["wstep"]; continue
        if l.startswith("@W-"): role = None; continue
        isins = l.startswith("    ") and not l.strip().startswith(";")
        if role and isins and OPT["warm"]:
            if cnt >= OPT["wstep"]:
                spots.setdefault(role, []).append(len(out)); out.append(None); cnt = 0
            cnt += 1
        out.append(l)
    for role, sp in spots.items():
        n = nchain[role]; per = -(-len(sp) // n)
        for k, pos in enumerate(sp):
            c, first, last = k // per, k % per == 0, (k % per == per-1 or k == len(sp)-1)
            lab = f"L_w{role}_{c}" if first else f"L_h{role}_{k}"
            tgt = f"L_wret_{role}" if last else f"L_h{role}_{k+1}"
            out[pos] = f"{lab}:\n    s_cbranch_execz {tgt}"
        assert -(-len(sp) // per) == n, (role, len(sp), per, n)
    return out

def gen(a):
    kernel_header(a, NAME)
    a("s_cmp_ge_u32 s2, 256", "s_cbranch_scc1 L_end")
    a("s_load_dwordx16 s[48:63], s[0:1], 0", "s_load_dwordx4 s[64:67], s[0:1], 64", "s_load_dwordx2 s[68:69], s[0:1], 80")
    a("v_lshrrev_b32 v2, 6, v0", "v_and_b32 v1, 63, v0")
    a("s_bfe_u32 s73, s2, 0x10003", "s_and_b32 s4, s2, 6", "s_add_u32 s4, s4, s73", "s_and_b32 s5, s2, 1")
    a("v_readfirstlane_b32 s3, v2")
    a("s_lshr_b32 s72, s2, 4", "s_lshl4_add_u32 s5, s5, s72")
    a("s_lshl2_add_u32 s72, s73, s5", "s_and_b32 s72, s72, 7")
    if OPT["tr"]:
        trace_init(a); OPT["tr"].add("start"); trace(a, "start")
    a("s_cmp_ge_u32 s3, 4", "s_cbranch_scc1 L_awave")
    gen_loader(a)
    gen_gwave(a)
    a.label("L_end")
    a("s_endpgm")
    emit_ool(a)
    a.raw(".p2align 6")
    a.label("L_awave")
    gen_awave(a)
    emit_ool(a)
    a.label("L_codeend")
    a.lines = insert_hops(a.lines, {"a": 3})
    return kernel_desc(NAME, 168, 102)

def common(a):
    a("s_bfe_u32 s71, s2, 0x20003", "s_lshr_b32 s7, s2, 5", "s_and_b32 s6, s2, 7", "s_lshl2_add_u32 s6, s6, s71")
    a(f"v_mov_b32 v{vCB}, {CB}", f"v_mov_b32 v{vONE}, 1", f"s_mov_b32 s{sBUD}, 20000", "v_lshlrev_b32 v2, 4, v1")
def epoch(a): a(f"s_add_u32 s44, s68, {EP:#x}", "s_addc_u32 s45, s69, 0", f"s_load_dword s{sN}, s[44:45], 0")
SLOT = 24576

def gen_loader(a):
    vX0, vX1, vW, vW1, vG0, vG2 = 8, 9, 10, 11, 12, 13
    a("s_setprio 3")
    a("v_lshrrev_b32 v11, 3, v1", "v_lshrrev_b32 v3, 4, v1", "v_and_b32 v7, 7, v1", "v_xor_b32 v3, v3, v7",
      "v_lshlrev_b32 v3, 4, v3", f"v_lshl_add_u32 v{vX0}, v11, 10, v3",
      f"v_xor_b32 v{vX1}, 64, v{vX0}", f"v_add_u32 v{vX1}, {0x2000 - 1024}, v{vX1}")
    a("v_bfe_u32 v12, v1, 2, 3", "v_mul_u32_u24 v11, 3072, v12", "v_lshrrev_b32 v3, 5, v1", "v_and_b32 v7, 3, v1", "v_lshlrev_b32 v7, 4, v7",
      "v_lshl_add_u32 v14, v3, 6, v7", f"v_add_u32 v{vW}, v11, v14", f"v_add_u32 v{vW1}, {8*3072 - 1024}, v{vW}")
    a("s_lshl_b32 s74, s5, 16", "s_lshl_b32 s78, s3, 14", "s_add_u32 s74, s74, s78")
    a("s_mul_i32 s75, s3, 49152", "s_lshl_b32 s78, s4, 7", "s_add_u32 s75, s75, s78")
    a("s_lshl_b32 s76, s3, 11", f"s_add_u32 s77, s76, {P1W}", "s_mov_b32 s73, s72")
    a("s_mov_b32 s10, 0x200000", "s_mov_b32 s11, 0x20000", "s_mov_b32 s14, 0x180000", "s_mov_b32 s15, 0x20000")
    def xunit():
        a("s_lshl_b32 s78, s72, 7", "s_mov_b32 m0, s76", "s_add_u32 s78, s78, s74",
          f"buffer_load_dwordx4 v{vX0}, {rX}, s78 offen lds", f"buffer_load_dwordx4 v{vX1}, {rX}, s78 offen offset:1024 lds",
          "s_add_u32 s76, s76, 8192", "s_add_u32 s72, s72, 1", "s_and_b32 s72, s72, 7")
    def wblock():
        a("s_mul_i32 s79, s73, 196608", "s_mov_b32 m0, s77", "s_add_u32 s79, s79, s75")
        for mat in range(3):
            if mat: a(f"s_add_u32 m0, s77, {mat*(8192 - 1024)}", "s_add_u32 s73, s73, 1" if mat == 1 else "s_and_b32 s73, s73, 7")
            a(f"buffer_load_dwordx4 v{vW}, {rWQ}, s79 offen offset:{mat*1024} lds", f"buffer_load_dwordx4 v{vW1}, {rWQ}, s79 offen offset:{mat*1024 + 1024} lds")
    def nslot(): a(f"s_add_u32 s77, s77, {SLOT}", "s_cmp_eq_u32 s77, s81", "s_cmov_b32 s77, s80")
    a("s_waitcnt lgkmcnt(0)")
    a("s_mov_b64 s[8:9], s[48:49]", "s_mov_b64 s[12:13], s[50:51]")
    stamp(a)
    xunit(); wblock()
    epoch(a); common(a)
    a("s_mov_b32 s80, s77", f"s_add_u32 s81, s77, {4*SLOT}")
    a("s_cmp_lt_u32 s3, 2", "s_cselect_b32 s24, s56, s58", "s_cselect_b32 s25, s57, s59", f"s_mov_b32 s26, {512*1376*2:#x}", "s_mov_b32 s27, 0x20000",
      "s_cselect_b32 s78, 0, 32")
    a("v_mul_u32_u24 v12, 2752, v12", "v_add_u32 v12, v12, v14", f"v_xor_b32 v{vG0}, s78, v12")
    a("s_and_b32 s78, s4, 1", "s_lshl_b32 s78, s78, 5", "s_sub_u32 s78, 64, s78", "s_cmp_eq_u32 s4, 7", "s_cmov_b32 s78, 0",
      "v_cmp_gt_u32 vcc, s78, v1", "v_mov_b32 v3, 0x40000000", "s_nop 0", f"v_cndmask_b32 v{vG2}, v3, v{vG0}, vcc")
    a.srd(16, 68, 69, 16*MB)
    a.srd(20, 68, 69, HF_BYTES, add=HF)
    a.srd(28, 60, 61, 1376*512*2)
    a.srd(32, 52, 53, 512*512*2)
    a.srd(36, 64, 65, 2048*512*2)
    a.srd(40, 62, 63, 1024)
    a("v_lshlrev_b32 v7, 7, v1")
    xunit(); xunit(); xunit()
    a("s_mov_b32 s47, 1")
    a.label("L_ld_a")
    nslot(); wblock(); xunit()
    a("s_add_u32 s47, s47, 1", "s_waitcnt vmcnt(8)", "s_cmp_lt_u32 s47, 5", "s_barrier")
    trace2(a, "p1")
    a("s_cbranch_scc1 L_ld_a")
    a.label("L_ld_b")
    nslot(); wblock()
    a("s_add_u32 s47, s47, 1", "s_waitcnt vmcnt(6)", "s_cmp_lt_u32 s47, 8", "s_barrier")
    trace2(a, "p1")
    a("s_cbranch_scc1 L_ld_b")
    a("s_bfe_u32 s78, s5, 0x10003", "s_lshl1_add_u32 s73, s73, s78")
    a("s_mul_i32 s75, s4, 11", "s_and_b32 s78, s4, 1", "s_add_u32 s75, s75, s78", "s_lshl_b32 s75, s75, 5", "s_and_b32 s78, s3, 1", f"s_mul_i32 s78, s78, {8*2752}",
      "s_add_u32 s75, s75, s78")
    a("s_lshl_b32 s78, s3, 10", "s_add_u32 s77, s77, s78", "s_add_u32 s80, s80, s78", "s_add_u32 s81, s81, s78")
    a("s_waitcnt lgkmcnt(0)", f"s_add_u32 s{sN}, s{sN}, 1")
    a.label("L_ld_g")
    nslot()
    a(f"s_mul_i32 s79, s73, {2*KST}", "s_mov_b32 m0, s77", "s_add_u32 s79, s79, s75")
    for e in range(2):
        for t in range(3):
            if e or t: a(f"s_add_u32 m0, s77, {e*12288 + t*(1024 - 128)}", {(0,1): "s_add_u32 s73, s73, 1", (0,2): "s_and_b32 s73, s73, 15", (1,0): f"s_add_u32 s79, s79, {KST}"}.get((e, t), "s_nop 0"))
            a(f"buffer_load_dwordx4 v{vG2 if t == 2 else vG0}, {rWG}, s79 offen offset:{t*128} lds")
    a("s_add_u32 s47, s47, 1", "s_waitcnt vmcnt(6)", "s_cmp_lt_u32 s47, 24", "s_barrier")
    trace2(a, "p1")
    a("s_cbranch_scc1 L_ld_g")
    a("s_lshr_b32 s76, s6, 2", "s_lshl_b32 s76, s76, 12", f"s_add_u32 s76, s76, {FQ:#x}", "s_mov_b32 exec_hi, 0",
      f"buffer_load_dword v{vPOLL}, v7, {rWS}, s76 offen sc1", "s_waitcnt vmcnt(1)", "s_barrier")
    stamp(a)

Qa, Qb, Kf, V1, V2, Sa, Sb, Oa, Ob = 8, 12, 16, 20, 24, 32, 48, 64, 80
IDX, vK, vV0, vV1, vHC, vGT, vTC, vL4, vON, vST, vF4, vE0, vE1, vE2, vWg, vSK = range(152, 168)
HA = 104
def gen_awave(a):
    vXa = [8, 9, 10, 11]; vWb, vWa, vXb = 12, 13, 14
    a("s_sub_u32 s3, s3, 4", f"v_lshlrev_b32 v{vTC}, 7, v1")
    a("s_cmp_lg_u32 s3, 0", "s_cbranch_scc1 L_a_nocode")
    a("s_getpc_b64 s[40:41]")
    a.label("L_pc")
    a(f"s_sub_u32 s40, s40, L_pc-{NAME}", "s_subb_u32 s41, s41, 0", f"s_mov_b32 s42, L_codeend-{NAME}", "s_mov_b32 s43, 0x20000",
      "s_lshr_b32 s76, s2, 3", "s_lshl_b32 s76, s76, 9", "s_mov_b64 exec, 0xf", f"buffer_load_dword v{vGT}, v{vTC}, s[40:43], s76 offen", "s_mov_b64 exec, -1")
    a.label("L_a_nocode")
    common(a)
    a("s_bfe_u32 s73, s3, 0x10001", "s_and_b32 s74, s3, 1", "s_lshr_b32 s75, s3, 2")
    a("v_and_b32 v15, 31, v1", "v_lshrrev_b32 v3, 5, v1", "v_bfe_u32 v7, v1, 1, 3", "v_xor_b32 v3, v3, v7",
      "v_lshlrev_b32 v3, 4, v3", "v_lshl_add_u32 v15, v15, 7, v3",
      "s_lshl_b32 s76, s73, 12", f"v_add_u32 v{vXb}, s76, v15", f"v_mov_b32 v{vXa[0]}, v{vXb}")
    a("v_bfe_u32 v3, v1, 2, 2", "v_lshlrev_b32 v15, 6, v3", "v_and_b32 v3, 3, v1", "v_lshl_add_u32 v15, v3, 3, v15",
      "v_lshrrev_b32 v16, 5, v1", "v_bfe_u32 v3, v1, 4, 1",
      "v_lshl_add_u32 v7, v16, 10, v15", "v_lshl_add_u32 v7, v3, 5, v7",
      "s_lshl_b32 s76, s74, 9", f"s_add_u32 s76, s76, {P1W}", f"v_add_u32 v{vWb}, s76, v7")
    a("v_lshl_add_u32 v7, v3, 1, v16", "v_mul_u32_u24 v7, 3072, v7", "v_add_u32 v15, v15, v7", "v_xor_b32 v7, s74, v3", "v_lshl_add_u32 v15, v7, 5, v15",
      "s_lshl_b32 s76, s75, 9", f"s_add_u32 s76, s76, {P1W}", f"v_add_u32 v{vWg}, s76, v15")
    a("s_waitcnt lgkmcnt(0)")
    epoch(a)
    a.srd(16, 68, 69, 16*MB)
    a.srd(20, 68, 69, HF_BYTES, add=HF)
    a("s_lshl1_add_u32 s48, s5, s73")
    a("s_and_b32 s77, s3, 3")
    a("s_lshl_b32 s76, s75, 15", f"v_add_u32 v{vK}, s76, v2")
    a("v_and_b32 v3, 15, v1", "v_lshlrev_b32 v3, 4, v3", "v_lshrrev_b32 v7, 5, v1", "v_lshl_add_u32 v3, v7, 8, v3",
      "v_and_b32 v7, 27, v1", "v_cmp_eq_u32 vcc, 16, v7", "v_mov_b32 v16, 0x18000", "v_mov_b32 v15, 1024",
      "v_cndmask_b32 v16, v16, v15, vcc",
      "v_and_b32 v7, 16, v1", "v_cmp_eq_u32 vcc, 0, v7", "v_add_u32 v15, 512, v3",
      f"s_mul_i32 s76, s75, {32*VST}", f"s_add_u32 s76, s76, {VB}",
      f"v_cndmask_b32 v{vV0}, v16, v3, vcc", f"v_cndmask_b32 v{vV1}, v16, v15, vcc",
      f"v_add_u32 v{vV0}, s76, v{vV0}", f"v_add_u32 v{vV1}, s76, v{vV1}")
    a(f"v_lshl_add_u32 v{vST}, v7, 12, v3", f"v_mov_b32 v{IDX}, 0xdddd")
    a("v_and_b32 v7, 0x33, v1", "v_bfe_u32 v3, v1, 2, 1", "v_lshl_add_u32 v7, v3, 3, v7", "v_bfe_u32 v3, v1, 3, 1", "v_lshl_add_u32 v7, v3, 2, v7",
      f"v_lshlrev_b32 v{vSK}, 4, v7")
    a(f"v_and_b32 v{vL4}, 31, v1", f"v_lshlrev_b32 v{vL4}, 2, v{vL4}")
    a(f"v_mul_u32_u24 v{vON}, {VST//4}, v{vL4}", "s_add_u32 s76, s76, 1024", f"v_add_u32 v{vON}, s76, v{vON}")
    a("s_lshl_b32 s76, s75, 2", f"v_add_u32 v{vHC}, s76, v{vCB}")
    a("v_and_b32 v3, 3, v1", f"v_lshl_add_u32 v{vF4}, v3, 2, v{vCB}")
    a("s_mul_i32 s79, s77, 2304", "s_lshl_b32 s80, s75, 15", "s_add_u32 s79, s79, s80", f"v_add_u32 v{vE0}, s79, v2",
      f"v_lshrrev_b32 v{vE1}, 2, v2", f"v_add_u32 v{vE1}, s79, v{vE1}", "s_lshl_b32 s80, s3, 2", f"v_add_u32 v{vE2}, s80, v{vCB}")
    a("s_lshl_b32 s88, s7, 3", "s_lshl1_add_u32 s88, s77, s88", "s_add_u32 s88, s88, s75", "s_lshl_b32 s89, s6, 16")
    a("s_lshl_b32 s90, s88, 10", "s_add_u32 s90, s90, s89", "s_xor_b32 s91, s90, 1024")
    a("s_lshl_b32 s95, s75, 5", "s_add_u32 s95, s95, s77", "s_lshl_b32 s94, s95, 10", f"s_mul_i32 s95, s95, {VST}", f"s_add_u32 s95, s95, {VB}",
      "s_add_u32 s92, s89, s94", f"s_add_u32 s92, s92, {KF:#x}", f"s_add_u32 s93, s92, {VF - KF:#x}")
    a("s_lshl_b32 s96, s4, 5", "s_add_u32 s96, s96, s5", "s_lshl_b32 s96, s96, 7", f"s_add_u32 s96, s96, {FQ:#x}")
    a("s_mul_i32 s98, s4, 11", "s_and_b32 s76, s4, 1", "s_add_u32 s98, s98, s76", "s_lshl1_add_u32 s98, s75, s98", "s_add_u32 s98, s98, s74",
      "s_lshl_b32 s98, s98, 16", "s_lshl_b32 s79, s48, 10", "s_add_u32 s98, s98, s79",
      "s_and_b32 s97, s76, s75", "s_xor_b32 s97, s97, 1", "s_cmp_eq_u32 s4, 7", "s_cmov_b32 s97, 0",
      "s_lshl3_add_u32 s99, s5, s4", "s_lshl3_add_u32 s99, s99, s3", "s_lshl_b32 s99, s99, 7", f"s_add_u32 s99, s99, {FP:#x}")
    a("s_lshl_b32 s49, s4, 2", "s_lshl1_add_u32 s49, s74, s49", "s_lshl_b32 s49, s49, 6", "s_add_u32 s49, s49, s48", "s_lshl_b32 s49, s49, 10")
    for r in range(16, 48): a(f"v_mov_b32 v{r}, 0")
    a("s_mov_b32 s79, 0", "s_mov_b32 s80, 0")
    def nslot(): a(f"s_add_u32 s80, s80, {SLOT}", f"s_cmp_eq_u32 s80, {4*SLOT}", "s_cmov_b32 s80, 0")
    def consumer(lab, steps, buf, nstage, adv, hook=None):
        per = 4 + 4*len(steps[0][1])
        nrd = 1 + 2*len(steps[0][1])
        tot = nrd*len(steps)
        def reads(b, i):
            f = buf[b] + per*i
            a(f"ds_read_b128 {vr(f,4)}, v{steps[i][0]}")
            for n, (wo, acc, sw) in enumerate(steps[i][1]):
                a(f"ds_read_b64_tr_b16 {vr(f+4+4*n,2)}, v{vWa} offset:{wo}", f"ds_read_b64_tr_b16 {vr(f+6+4*n,2)}, v{vWa} offset:{wo+256}")
        def mf(b, i, n):
            f = buf[b] + per*i
            wo, acc, sw = steps[i][1][n]
            A, B = (vr(f,4), vr(f+4+4*n,4)) if sw else (vr(f+4+4*n,4), vr(f,4))
            a(f"{MFMA} {vr(acc,16)}, {A}, {B}, {vr(acc,16)}")
        def readlist(b):
            sv = a.lines; a.lines = []
            for i in range(len(steps)): reads(b, i)
            r = [l.strip() for l in a.lines]; a.lines = sv
            return r
        mms = [(i, n) for i in range(len(steps)) for n in range(len(steps[i][1]))]
        def front(b):
            rl = readlist(1-b)
            ng = max(1, len(mms) - 2)
            per_gap = -(-len(rl) // ng)
            for g, (i, n) in enumerate(mms[:-1]):
                mf(b, i, n)
                a(*rl[g*per_gap:(g+1)*per_gap])
                if g == ng - 1: adv()
        a("s_barrier")
        trace(a, "p1")
        a(*readlist(0))
        adv()
        a(f"s_branch {lab}_in")
        emit_ool(a)
        a.label(lab)
        mf(1, *mms[-1])
        a.label(lab + "_in")
        a("s_waitcnt lgkmcnt(0)", "s_barrier")
        trace(a, "p1")
        front(0)
        a(f"s_cmp_eq_u32 s79, {nstage - 2}", f"s_cbranch_scc1 {lab}_e")
        if hook: hook(lab, lambda: mf(0, *mms[-1]))
        else:
            mf(0, *mms[-1])
            a("s_waitcnt lgkmcnt(0)", "s_barrier")
        trace(a, "p1")
        a("s_add_u32 s79, s79, 2")
        front(1)
        a(f"s_branch {lab}")
        emit_ool(a)
        a.label(lab + "_e")
        mf(0, *mms[-1])
        done = 0
        for i, n in mms:
            done += 3 if n == 0 else 2
            a(f"s_waitcnt lgkmcnt({min(15, tot - done)})")
            mf(1, i, n)
    def addr1():
        for ks in range(1, 4): a(f"v_xor_b32 v{vXa[ks]}, {32*ks}, v{vXa[0]}")
        a(f"v_add_u32 v{vWa}, s80, v{vWb}")
    def adv1():
        nslot()
        a(f"v_add_u32 v{vXa[0]}, 8192, v{vXa[0]}")
        addr1()
    addr1()
    a("s_waitcnt lgkmcnt(0)", f"s_add_u32 s{sN}, s{sN}, 1")
    stamp(a)
    a("s_cmp_lg_u32 s75, 0", "s_cbranch_scc1 L_p1q")
    a(f"s_add_u32 s76, s49, {VF:#x}", f"s_add_u32 s77, s49, {KF:#x}", "s_add_u32 s78, s77, 0x10000")
    consumer("L_p1kv", [(vXa[ks], [(8192 + ks*2048, 16, False), (16384 + ks*2048, 32, True)]) for ks in range(4)], [48, 96], 8, adv1)
    a.nop(10)
    for r in range(8): a(f"v_cvt_pk_bf16_f32 v{16+r}, v{16+2*r}, v{17+2*r}")
    a(f"buffer_store_dwordx4 v[16:19], v{vSK}, {rWS}, s77 offen sc1", f"buffer_store_dwordx4 v[20:23], v{vSK}, {rWS}, s78 offen sc1")
    for r in range(8): a(f"v_cvt_pk_bf16_f32 v{24+r}, v{32+2*r}, v{33+2*r}")
    a(f"buffer_store_dwordx4 v[24:27], v{vST}, {rWS}, s76 offen sc1", f"buffer_store_dwordx4 v[28:31], v{vST}, {rWS}, s76 offen offset:512 sc1")
    a("s_branch L_p1done")
    a.label("L_p1q")
    a(f"s_mov_b32 s50, {fbits(QSCALE):#x}", f"s_add_u32 s77, s49, {QF+65536:#x}")
    consumer("L_p1ql", [(vXa[ks], [(ks*2048, 16, False)]) for ks in range(4)], [48, 96], 8, adv1)
    a.nop(12)
    for r in range(0, 16, 2): a(f"v_pk_mul_f32 {vr(16+r,2)}, {vr(16+r,2)}, s[50:51] op_sel_hi:[1,0]")
    for r in range(8): a(f"v_cvt_pk_bf16_f32 v{16+r}, v{16+2*r}, v{17+2*r}")
    a(f"buffer_store_dwordx4 v[16:19], v2, {rWS}, s49 offen sc1", f"buffer_store_dwordx4 v[20:23], v2, {rWS}, s77 offen sc1")
    a.label("L_p1done")
    stamp(a)
    for r in range(48): a(f"v_mov_b32 v{HA+r}, 0")
    a("s_mov_b32 s79, 0", "s_bfe_u32 s76, s5, 0x10003", "s_cmp_eq_u32 s3, 7", f"s_cselect_b32 s81, {OPT['nd']}, -1")
    def addr2():
        a("s_lshr_b32 s77, s76, 1", "s_lshl_b32 s77, s77, 13", "s_and_b32 s78, s76, 1", "s_lshl_b32 s78, s78, 6", "s_or_b32 s77, s77, s78",
          f"v_xor_b32 v{vXa[0]}, s77, v{vXb}", f"v_add_u32 v{vWa}, s80, v{vWg}", f"v_xor_b32 v{vXa[1]}, 32, v{vXa[0]}")
    def adv2():
        nslot()
        a("s_add_u32 s76, s76, 1", "s_and_b32 s76, s76, 15")
        addr2()
    def hook(lab, last):
        with Ool(a):
            a.label(lab + "_d")
            trace(a, "h")
            a("s_waitcnt vmcnt(0)", "s_cmp_eq_u32 s79, s81", "s_barrier", f"s_cbranch_scc0 {lab}_r")
            flag_store(a, "s96")
            a(f"s_branch {lab}_r")
        a(f"s_cmp_eq_u32 s79, {OPT['nd']}")
        last()
        a("s_waitcnt lgkmcnt(0)", f"s_cbranch_scc1 {lab}_d", "s_barrier")
        a.label(lab + "_r")
    addr2()
    a("s_cmp_eq_u32 s97, 0", "s_cbranch_scc1 L_g2")
    consumer("L_g3l", [(vXa[e], [(e*12288 + t*1024, HA + 16*t, False) for t in range(3)]) for e in range(2)], [40, 72], 16, adv2, hook)
    a("s_branch L_gdone")
    a.label("L_g2")
    consumer("L_g2l", [(vXa[e], [(e*12288 + t*1024, HA + 16*t, False) for t in range(2)]) for e in range(2)], [40, 72], 16, adv2, hook)
    a.label("L_gdone")
    a("s_mov_b32 m0, s94", "s_setprio 3")
    stamp(a)
    a("s_barrier")
    stamp(a)
    a(f"buffer_load_dwordx4 v2, {rWS}, s92 offen sc1 lds", "s_mov_b32 m0, s95",
      f"buffer_load_dwordx4 {vr(Qa,4)}, v2, {rWS}, s90 offen sc1", f"buffer_load_dwordx4 v2, {rWS}, s93 offen sc1 lds",
      f"buffer_load_dwordx4 {vr(Qb,4)}, v2, {rWS}, s91 offen sc1")
    for r in range(4): a(f"v_mov_b32 v{V1+r}, 0x3f803f80")
    for r in range(4): a(f"v_mov_b32 v{V2+r}, 0")
    a(f"ds_write_b128 v{vON}, {vr(V1,4)}", f"v_add_u32 v3, v{vL4}, v{vCB}", f"ds_write_b32 v3, v{V2}", f"s_mov_b32 s80, {fbits(-LOG2E):#x}")
    for t in range(3):
        g = HA + 16*t
        if t == 2: a("s_cmp_eq_u32 s97, 0", "s_cbranch_scc1 L_a_e2")
        for r in range(0, 8, 2): a(f"v_pk_mul_f32 {vr(g+r,2)}, {vr(g+r,2)}, s[80:81] op_sel_hi:[1,0]")
        for r in range(8): a(f"v_exp_f32 v{g+r}, v{g+r}")
        for r in range(0, 8, 2): a(f"v_pk_add_f32 {vr(g+r,2)}, {vr(g+r,2)}, 1.0 op_sel_hi:[1,0]")
        for r in range(8): a(f"v_rcp_f32 v{g+r}, v{g+r}")
        for r in range(0, 8, 2): a(f"v_pk_mul_f32 {vr(g+r,2)}, {vr(g+r,2)}, {vr(g+8+r,2)}")
        for r in range(4): a(f"v_cvt_pk_bf16_f32 v{g+8+r}, v{g+2*r}, v{g+1+2*r}")
    a.label("L_a_e2")
    for r in range(8, 16): a(f"v_mov_b32 v{Sb+r}, 0")
    for r in range(32): a(f"v_mov_b32 v{Oa+r}, 0")
    a("s_mov_b32 s77, s88", "s_mov_b32 s78, s89", "s_mov_b32 s48, s90")
    a("s_waitcnt vmcnt(0) lgkmcnt(0)", "s_barrier")
    stamp(a)
    a(f"ds_read_b128 {vr(Kf,4)}, v{vK}", f"ds_read_b128 {vr(V1,4)}, v{vV0}", "s_waitcnt lgkmcnt(1)",
      f"{MFMA} {vr(Sa,16)}, {vr(Kf,4)}, {vr(Qa,4)}, 0", "s_mov_b32 s76, 0")
    a.nop(12)
    woff(a)
    a.raw(".p2align 6")
    a.label("L_a_loop")
    def E(S, lo, hi):
        for i in range(lo, hi): a(f"v_exp_f32 v{S+i}, v{S+i}")
    for t in range(4):
        if t == 3:
            a("s_cmp_lt_u32 s76, 7", "s_cbranch_scc1 L_a_hook")
            a.label("L_a_hookret")
        if OPT["noattn"]: continue
        E(Sa, 0, 2)
        a(f"{SM} {vr(Ob,16)}, {vr(V2,4)}, {vr(Sb+8,8)}, v{IDX}", f"ds_read_b128 {vr(V2,4)}, v{vV1} offset:{t*VST}")
        E(Sa, 2, 6)
        a(f"{MFMA} {vr(Sb,16)}, {vr(Kf,4)}, {vr(Qb,4)}, 0", f"ds_read_b128 {vr(Kf,4)}, v{vK} offset:{(t+1)*1024}")
        E(Sa, 6, 12)
        a("s_waitcnt lgkmcnt(2)", f"{SM} {vr(Oa,16)}, {vr(V1,4)}, {vr(Sa,8)}, v{IDX}")
        E(Sa, 12, 16)
        E(Sb, 0, 2)
        a("s_waitcnt lgkmcnt(0)", f"{SM} {vr(Oa,16)}, {vr(V2,4)}, {vr(Sa+8,8)}, v{IDX}")
        E(Sb, 2, 6)
        a(f"{MFMA} {vr(Sa,16)}, {vr(Kf,4)}, {vr(Qa,4)}, 0")
        E(Sb, 6, 12)
        a(f"{SM} {vr(Ob,16)}, {vr(V1,4)}, {vr(Sb,8)}, v{IDX}", f"ds_read_b128 {vr(V1,4)}, v{vV0} offset:{(t+1)*VST}")
        E(Sb, 12, 16)
    a(f"v_add_u32 v{vK}, 4096, v{vK}", f"v_add_u32 v{vV0}, {4*VST}, v{vV0}", f"v_add_u32 v{vV1}, {4*VST}, v{vV1}")
    trace(a, "a")
    a("s_add_u32 s76, s76, 1", "s_cmp_lt_u32 s76, 8", "s_cbranch_scc1 L_a_loop")
    won(a, "a")
    a(f"{SM} {vr(Ob,16)}, {vr(V2,4)}, {vr(Sb+8,8)}, v{IDX}", "s_setprio 3")
    if OPT["noattn"]: a(f"v_mov_b32 v{Oa+8}, 1.0")
    stamp(a)
    a(f"s_add_u32 s74, s48, {OF:#x}", "s_mov_b32 s76, 0x5f800000", f"v_xor_b32 v17, 16, v{vE2}", f"v_xor_b32 v3, 0x8000, v{vE0}", f"v_xor_b32 v16, 0x8000, v{vE1}")
    a.nop(6)
    a(f"ds_write_b128 v{vE0}, {vr(Ob,4)}", f"ds_write_b128 v{vE0}, {vr(Ob+4,4)} offset:1024", f"ds_write_b32 v{vE1}, v{Ob+8} offset:2048",
      f"ds_write_b32 v{vE2}, v{vONE} offset:{cEX}")
    lp, dn = a.newlabel("xw"), a.newlabel("xwd")
    rt = retry(a, lp, dn, 1)
    a.label(lp)
    a(f"ds_read_b32 v{vPOLL}, v17 offset:{cEX}", f"ds_read_b128 {vr(Sa,4)}, v3", f"ds_read_b128 {vr(Sa+4,4)}, v3 offset:1024", f"ds_read_b32 v{Sa+8}, v16 offset:2048",
      "s_waitcnt lgkmcnt(0)", f"v_cmp_eq_u32 vcc, 0, v{vPOLL}", f"s_cbranch_vccnz {rt}")
    a.label(dn)
    for r in range(0, 8, 2): a(f"v_pk_add_f32 {vr(Oa+r,2)}, {vr(Oa+r,2)}, {vr(Sa+r,2)}")
    a(f"v_add_f32 v{Oa+8}, v{Oa+8}, v{Sa+8}")
    O = Oa
    a(f"v_add_f32 v3, abs(v{O}), abs(v{O+1})", f"v_add_f32 v16, abs(v{O+2}), abs(v{O+3})", f"v_add_f32 v17, abs(v{O+4}), abs(v{O+5})",
      f"v_add_f32 v18, abs(v{O+6}), abs(v{O+7})", f"v_add_f32 v3, v3, v{O+8}", "v_add_f32 v16, v16, v17", "v_add_f32 v3, v3, v18", "v_add_f32 v3, v3, v16")
    a(f"v_cmp_nle_f32 s[80:81], 1.0, v{O+8}", "v_cmp_nge_f32 vcc, s76, v3", "s_or_b64 vcc, vcc, s[80:81]", "s_cbranch_scc1 L_a_slow")
    a.label("L_a_fin")
    trace(a, "t")
    a(f"v_rcp_f32 v3, v{O+8}", "s_waitcnt vmcnt(0)", f"v_mul_f32 v3, v3, v{vGT}")
    for r in range(8): a(f"v_mul_f32 v{O+r}, v3, v{O+r}")
    for r in range(4): a(f"v_cvt_pk_bf16_f32 v{Qb+r}, v{O+2*r}, v{O+2*r+1}")
    a(f"buffer_store_dwordx4 {vr(Qb,4)}, v2, {rWS}, s74 offen sc1")
    a("s_lshr_b32 s76, s77, 1", "s_lshl_b32 s76, s76, 5", "s_add_u32 s76, s76, s6", "s_and_b32 s79, s77, 1", "s_lshl1_add_u32 s76, s76, s79",
      "s_lshl_b32 s76, s76, 7", f"s_add_u32 s76, s76, {FO:#x}", "s_waitcnt vmcnt(0)")
    trace(a, "t")
    flag_store(a, "s76")
    stamp_end(a, 0)
    a("s_endpgm")
    a.label("L_a_hook")
    def h0(): flag_wait(a, cB, vF4)
    def h1(): flag_wait(a, cALL, vF4)
    def hs():
        a("s_add_u32 s79, s98, 0x40000", "s_add_u32 s80, s98, 0x80000", "s_cmp_eq_u32 s97, 0", "s_cmov_b32 s80, 0x40000000",
          f"buffer_store_dwordx4 {vr(HA+8,4)}, v2, {rHF}, s98 offen sc1", f"buffer_store_dwordx4 {vr(HA+24,4)}, v2, {rHF}, s79 offen sc1",
          f"buffer_store_dwordx4 {vr(HA+40,4)}, v2, {rHF}, s80 offen sc1")
    def hf():
        a("s_waitcnt vmcnt(0)")
        flag_store(a, "s99")
    def h6(): lds_wait(a, cPASS, 4, vaddr=vHC)
    def h3(): lds_arrive(a, cPASS, vHC)
    def h5():
        a("s_lshr_b32 s79, s77, 1", "s_lshl_b32 s79, s79, 5", "s_and_b32 s80, s77, 1", "s_add_u32 s79, s79, s80", "s_lshl_b32 s79, s79, 7",
          f"s_add_u32 s79, s79, {FH + 30*128:#x}")
        gpoll(a, vTC, "s79", nl=1)
        a("s_lshl_b32 s79, s77, 7", f"s_add_u32 s79, s79, {GT:#x}", f"buffer_load_dword v{vGT}, v{vL4}, {rWS}, s79 offen sc1")
    acts = {0: [h0], 1: [h1], 3: [h3], 6: [h6, h5]}
    acts.setdefault(OPT["hst"], []).append(hs)
    acts.setdefault(OPT["hst"] + 1, []).append(hf)
    acts.setdefault(OPT["pr2"], []).insert(0, lambda: a("s_setprio 2"))
    acts.setdefault(OPT["pr1"], []).insert(0, lambda: a("s_setprio 1"))
    its = sorted(acts)
    for it in its:
        a(f"s_cmp_eq_u32 s76, {it}", f"s_cbranch_scc1 L_a_hk_{it}")
    a("s_branch L_a_hookret")
    for it in its:
        a.label(f"L_a_hk_{it}")
        for f in acts[it]: f()
        a("s_branch L_a_hookret")
    emit_ool(a)
    woff(a)
    a.label("L_a_slow")
    NM = 96
    a("v_mov_b32 v3, 0xff800000", f"s_add_u32 s76, s78, {KF:#x}", "s_mov_b32 s79, 0")
    a.label("L_a_max")
    a(f"buffer_load_dwordx4 {vr(V1,4)}, v2, {rWS}, s76 offen sc1", "s_waitcnt vmcnt(0)",
      f"{MFMA} {vr(Sa,16)}, {vr(V1,4)}, {vr(Qa,4)}, 0", "s_add_u32 s76, s76, 1024")
    a.nop(14)
    for r in range(0, 16, 2): a(f"v_max3_f32 v3, v{Sa+r}, v{Sa+r+1}, v3")
    a("s_add_u32 s79, s79, 1", "s_cmp_lt_u32 s79, 64", "s_cbranch_scc1 L_a_max")
    a("v_mov_b32 v16, v3", "s_nop 1", "v_permlane32_swap_b32 v16, v3", "s_nop 1", "v_max_f32 v3, v16, v3")
    for r in range(16): a(f"v_sub_f32 v{NM+r}, 0, v3")
    for r in range(16): a(f"v_mov_b32 v{Oa+r}, 0")
    a("v_and_b32 v3, 15, v1", "v_lshlrev_b32 v3, 4, v3", "v_lshrrev_b32 v16, 5, v1", "v_lshl_add_u32 v3, v16, 8, v3",
      "v_and_b32 v16, 16, v1", "v_cmp_eq_u32 vcc, 0, v16", "v_mov_b32 v16, 0x4000000", "v_mov_b32 v17, 0x3f803f80",
      "v_cndmask_b32 v3, v16, v3, vcc", "v_cndmask_b32 v17, v17, 0, vcc")
    a(f"s_add_u32 s76, s78, {KF:#x}", f"s_add_u32 s80, s78, {VF:#x}", "s_mov_b32 s79, 0")
    a.label("L_a_redo")
    a(f"buffer_load_dwordx4 {vr(Sb,4)}, v2, {rWS}, s76 offen sc1", f"buffer_load_dwordx4 {vr(V1,4)}, v3, {rWS}, s80 offen sc1",
      f"buffer_load_dwordx4 {vr(V2,4)}, v3, {rWS}, s80 offen offset:512 sc1", "s_waitcnt vmcnt(0)",
      f"{MFMA} {vr(Sa,16)}, {vr(Sb,4)}, {vr(Qa,4)}, {vr(NM,16)}", "s_add_u32 s76, s76, 1024", "s_add_u32 s80, s80, 1024")
    for r in range(8): a(f"v_or_b32 v{V1+r}, v17, v{V1+r}")
    a.nop(6)
    E(Sa, 0, 16)
    a("s_nop 1", f"{SM} {vr(Oa,16)}, {vr(V1,4)}, {vr(Sa,8)}, v{IDX}", f"{SM} {vr(Oa,16)}, {vr(V2,4)}, {vr(Sa+8,8)}, v{IDX}")
    a("s_add_u32 s79, s79, 1", "s_cmp_lt_u32 s79, 64", "s_cbranch_scc1 L_a_redo")
    a.nop(14)
    a("s_branch L_a_fin")

def gen_gwave(a):
    sF, sT = 54, 55
    a("s_getpc_b64 s[44:45]", "s_mov_b32 s46, 64", "s_mov_b32 s47, 0x20000", f"s_lshl_b32 s{sF}, s3, 2", f"s_add_u32 s{sF}, s{sF}, {CB}")
    a("s_add_u32 s80, s3, 4", "s_lshl_b32 s81, s80, 10", f"s_mul_i32 s80, s80, {VST}", f"s_add_u32 s80, s80, {VB}",
      "s_lshl_b32 s79, s6, 16", "s_add_u32 s79, s79, s81", f"s_add_u32 s79, s79, {KF:#x}", "s_mov_b32 s74, 0")
    with Ool(a):
        a.label("L_g_p0r")
        gpoll(a, 7, "s76", sleep=1)
        a("s_branch L_g_p0k")
    a("s_waitcnt vmcnt(0)", f"v_cmp_ne_u32 vcc, s{sN}, v{vPOLL}", "s_cbranch_vccnz L_g_p0r")
    a.label("L_g_p0k")
    a("s_mov_b64 exec, -1")
    trace(a, "p1")
    def kvpair():
        a("s_mov_b32 m0, s81", f"s_add_u32 s76, s79, {VF - KF:#x}", f"buffer_load_dwordx4 v2, {rWS}, s79 offen sc1 lds",
          "s_mov_b32 m0, s80", "s_add_u32 s77, s79, 0x8000", f"buffer_load_dwordx4 v2, {rWS}, s76 offen sc1 lds",
          "s_add_u32 m0, s81, 0x8000", "s_add_u32 s76, s76, 0x8000", f"buffer_load_dwordx4 v2, {rWS}, s77 offen sc1 lds",
          f"s_add_u32 m0, s80, {32*VST}", "s_add_u32 s79, s79, 4096", f"buffer_load_dwordx4 v2, {rWS}, s76 offen sc1 lds",
          "s_add_u32 s81, s81, 4096", f"s_add_u32 s80, s80, {4*VST}")
    def dflag(off):
        a(f"s_add_u32 m0, s{sF}, {off}", "s_mov_b64 exec, 1", "buffer_load_dword off, s[44:47], 0 lds", "s_mov_b64 exec, -1")
    a("s_barrier", "s_sleep 1")
    kvpair()
    vW, vT2, vG, vTH, vP1, vGA = 8, 9, 10, 69, 70, 13
    sH0, sW0, sW1, sR = 60, 62, 63, 64
    Wf = [12, 20]; HD = 5; H = [28 + 8*i for i in range(HD)]
    acc = [104 + 16*i for i in range(4)]
    WF = 40; OFR = 8
    NS = 3
    a("s_lshl_b32 s78, s6, 13", f"s_lshl_b32 s{sT}, s3, 11", f"s_add_u32 s78, s78, s{sT}", f"s_add_u32 s78, s78, {FP:#x}",
      f"s_lshl_b32 s{sT}, s6, 12", f"s_add_u32 s{sT}, s{sT}, {FH + 14*128:#x}", "v_cmp_gt_u32 vcc, 16, v1", f"v_mov_b32 v3, s{sT}", "v_mov_b32 v8, s78",
      "v_cndmask_b32 v3, v3, v8, vcc", f"v_add_u32 v{vP1}, v3, v7")
    a("v_bfe_u32 v3, v1, 2, 3", f"v_lshl_add_u32 v{vW}, v3, 10, v14")
    a(f"s_mul_i32 s{sH0}, s3, {22*65536}", "s_lshl_b32 s78, s6, 11", f"s_add_u32 s{sH0}, s{sH0}, s78")
    a(f"s_lshl_b32 s{sW0}, s3, 17", "s_lshl_b32 s78, s7, 7", f"s_add_u32 s{sW0}, s{sW0}, s78")
    a(f"s_mul_i32 s{sW1}, s3, {22*16384}", f"s_add_u32 s{sW1}, s{sW1}, s78")
    a(f"s_mul_i32 s{sR}, s3, 7680", f"s_add_u32 s{sR}, s{sR}, {RING}")
    a("v_lshrrev_b32 v3, 5, v1", "v_lshlrev_b32 v3, 2, v3", "v_bfe_u32 v9, v1, 2, 2", "v_add_u32 v3, v3, v9", "v_lshlrev_b32 v3, 6, v3",
      "v_bfe_u32 v9, v1, 4, 1", "v_lshl_add_u32 v3, v9, 5, v3", "v_and_b32 v9, 3, v1", "v_lshl_add_u32 v3, v9, 3, v3", f"v_add_u32 v{vT2}, s{sR}, v3")
    a("v_lshrrev_b32 v3, 4, v1", "v_lshlrev_b32 v3, 16, v3", "v_and_b32 v11, 15, v1", f"v_lshl_add_u32 v{vTH}, v11, 7, v3",
      f"v_and_b32 v{vGA}, 31, v1", f"v_lshlrev_b32 v{vGA}, 2, v{vGA}")
    a("s_lshr_b32 s57, s2, 3", "s_lshl2_add_u32 s57, s57, s3", "s_lshl_b32 s58, s57, 12", f"s_mul_i32 s57, s57, {86*128}")
    a("s_barrier")
    dflag(cB)
    a.label("L_g_kvl")
    kvpair()
    a("s_add_u32 s74, s74, 1", "s_cmp_lt_u32 s74, 6", "s_cbranch_scc1 L_g_kvl")
    dflag(cALL)
    stamp(a)
    a("s_lshr_b32 s78, s3, 1", "s_or_b32 s78, s78, s7", "s_cmp_eq_u32 s78, 0", "s_cbranch_scc1 L_g_gate")
    a.label("L_g_gater")
    with Ool(a):
        a.label("L_g_gate")
        a("v_lshrrev_b32 v3, 5, v1", "v_lshlrev_b32 v3, 4, v3", f"v_lshl_add_u32 v11, v{vGA}, 8, v3", "s_lshl1_add_u32 s81, s6, s3", "s_lshl_b32 s78, s81, 15", "s_mov_b32 s80, 0")
        for r in range(16): a(f"v_mov_b32 v{104+r}, 0")
        a.label("L_g_gloop")
        for e in range(8):
            a(f"buffer_load_dwordx4 {vr(16+4*e,4)}, v11, {rX}, s78 offen offset:{e*32}", f"buffer_load_dwordx4 {vr(72+4*e,4)}, v3, {rGW}, s80 offen offset:{e*32}")
        a("s_add_u32 s80, s80, 256", "s_add_u32 s78, s78, 256", "s_waitcnt vmcnt(0)")
        for e in range(8):
            a(f"{MFMA} {vr(104,16)}, {vr(72+4*e,4)}, {vr(16+4*e,4)}, {vr(104,16)}")
        a("s_cmp_lt_u32 s80, 1024", "s_cbranch_scc1 L_g_gloop")
        a.nop(12)
        a(f"s_mov_b32 s80, {fbits(-LOG2E):#x}", "v_mul_f32 v104, s80, v104", "v_exp_f32 v104, v104", "s_nop 0", "v_add_f32 v104, 1.0, v104",
          "v_rcp_f32 v104, v104", "s_lshl_b32 s80, s81, 7", f"s_add_u32 s80, s80, {GT:#x}",
          f"buffer_store_dword v104, v{vGA}, {rWS}, s80 offen sc1")
        a("s_lshl_b32 s81, s6, 5", "s_add_u32 s81, s81, s3", "s_lshl_b32 s81, s81, 7", f"s_add_u32 s81, s81, {FH + 30*128:#x}", "s_waitcnt vmcnt(0)")
        flag_store(a, "s81")
        a("s_branch L_g_gater")
    a(f"buffer_load_dword v71, v7, {rWD}, s57 offen", "s_add_u32 s57, s57, 8192", "s_mov_b64 exec, 0x3fffff", f"buffer_load_dword v71, v7, {rWD}, s57 offen",
      "s_mov_b32 exec_lo, -1", f"buffer_load_dword v71, v7, {rWO}, s58 offen", "s_mov_b64 exec, -1")
    q = VQ(a)
    def wload(k, o):
        slot = k % NS
        if k < 22:
            a(f"s_add_u32 m0, s{sR}, {slot*2048 + o*1024}", f"s_add_u32 s79, s{sW1}, {(k*16 + o*8)*1024}", f"buffer_load_dwordx4 v{vW}, {rWD}, s79 offen lds")
        else:
            a(f"s_add_u32 m0, s{sR}, {slot*2048 + o*1024}", f"s_add_u32 s79, s{sW0}, {((k-22)*16 + o*8)*1024}", f"buffer_load_dwordx4 v{vW}, {rWO}, s79 offen lds")
        q.issue(("W", k))
    def hload(k, rt):
        if rt == 0: a(f"s_add_u32 s78, s{sH0}, {k*65536}")
        a(f"buffer_load_dwordx4 {vr(H[k%HD]+4*rt,4)}, v2, {rHF}, s78 offen offset:{rt*1024} sc1")
        q.issue(("H", k))
    def wread(k):
        slot = k % NS
        dst = Wf[k & 1] if k < 22 else WF + 8*(k-22)
        for ct in range(2):
            a(f"ds_read_b64_tr_b16 {vr(dst+4*ct,2)}, v{vT2} offset:{slot*2048 + ct*512}",
              f"ds_read_b64_tr_b16 {vr(dst+4*ct+2,2)}, v{vT2} offset:{slot*2048 + ct*512 + 1024}")
    seq = [26, 27, 28, 29, 0, 1, 2]
    for k in seq[:3]:
        wload(k, 0); wload(k, 1)
    for n in range(4):
        q.wait(("W", seq[n]))
        wread(seq[n])
        a("s_waitcnt lgkmcnt(0)")
        wload(seq[n+3], 0); wload(seq[n+3], 1)
    trace(a, "e")
    gpoll(a, vP1, "0", sleep=8, nl=18)
    q.drain()
    stamp(a)
    a("s_lshl_b32 s79, s6, 8", f"s_add_u32 s79, s79, {GT:#x}",
      f"buffer_load_dword v{vG}, v{vGA}, {rWS}, s79 offen sc1", f"buffer_load_dword v{vG+1}, v{vGA}, {rWS}, s79 offen offset:128 sc1")
    q.issue("g"); q.issue("g")
    for k in range(HD-1):
        hload(k, 0); hload(k, 1)
    a("s_mul_i32 s79, s7, 0x30000", f"s_add_u32 s79, s79, s{sH0}", "s_mov_b32 exec_hi, 0xffff",
      f"buffer_load_dword v71, v{vTH}, {rHF}, s79 offen sc1", "s_mov_b64 exec, -1")
    q.issue("t")
    wread(0)
    a(f"s_setprio {OPT['dprio']}")
    if OPT["nod"]: a("s_branch L_g_dskip")
    for k in range(22):
        q.wait(("W", k+1), ("H", k))
        trace(a, "d")
        a("s_waitcnt lgkmcnt(0)")
        if k < 21: wread(k+1)
        extra = [lambda: wload(k+3, 0), lambda: wload(k+3, 1)]
        if k + HD - 1 < 22: extra += [lambda: hload(k+HD-1, 0), lambda: hload(k+HD-1, 1)]
        for i in range(4):
            ct, rt = i >> 1, i & 1
            C = "0" if k == 0 else vr(acc[i], 16)
            a(f"{MFMA} {vr(acc[i],16)}, {vr(Wf[k&1]+4*ct,4)}, {vr(H[k%HD]+4*rt,4)}, {C}")
            if i < len(extra): extra[i]()
    a.label("L_g_dskip")
    trace(a, "e")
    a("s_setprio 3")
    for k in range(22, 26):
        q.wait(("W", k))
        wread(k)
        if k == 22:
            a("s_waitcnt lgkmcnt(0)")
            wload(25, 0); wload(25, 1)
            a(f"v_sub_f32 v12, 1.0, v{vG}", f"v_sub_f32 v14, 1.0, v{vG+1}")
        t = k - 22
        for r in range(0, 16, 2):
            a(f"v_pk_mul_f32 {vr(acc[t]+r,2)}, {vr(acc[t]+r,2)}, {vr(12+2*(t&1),2)} op_sel_hi:[1,0]")
    stamp(a)
    a("v_lshlrev_b32 v7, 7, v1", "s_lshl_b32 s79, s6, 13", "s_lshl_b32 s80, s3, 11", "s_add_u32 s79, s79, s80", f"s_add_u32 s79, s79, {FO:#x}")
    a("s_lshl_b32 s75, s3, 19", "s_lshl_b32 s80, s6, 11", "s_add_u32 s75, s75, s80", f"s_add_u32 s75, s75, {OF:#x}")
    a("v_lshrrev_b32 v3, 4, v1", "v_lshlrev_b32 v3, 16, v3", "v_and_b32 v8, 15, v1", "v_lshl_add_u32 v3, v8, 7, v3", "s_add_u32 s80, s75, 0x40000")
    a("s_waitcnt lgkmcnt(0)")
    gpoll(a, 7, "s79", sleep=2, nl=16)
    trace(a, "t")
    q.drain()
    def oload(h):
        a(f"s_add_u32 s79, s75, {h*65536}")
        for rt in range(2):
            a(f"buffer_load_dwordx4 {vr(OFR+8*(h%4)+4*rt,4)}, v2, {rWS}, s79 offen offset:{rt*1024} sc1")
            q.issue(("O", h))
    for h in range(4): oload(h)
    a(f"buffer_load_dword v7, v3, {rWS}, s80 offen sc1"); q.issue("t")
    for h in range(8):
        q.wait(("O", h))
        for ct in range(2):
            for rt in range(2):
                a(f"{MFMA} {vr(acc[ct*2+rt],16)}, {vr(WF+8*h+4*ct,4)}, {vr(OFR+8*(h%4)+4*rt,4)}, {vr(acc[ct*2+rt],16)}")
        if h + 4 < 8: oload(h+4)
    a("s_lshl_b32 s79, s3, 14", "v_add_u32 v3, s79, v2", "s_lshl_b32 s79, s3, 12", "v_add_u32 v7, s79, v2")
    trace(a, "t")
    a("s_barrier")
    trace(a, "t")
    a.nop(8)
    for t in range(4):
        for qd in range(4):
            a(f"ds_write_b128 v3, {vr(acc[t]+4*qd,4)} offset:{t*4096 + qd*1024}")
    a("s_waitcnt lgkmcnt(0)", "s_barrier")
    trace(a, "t")
    for w in range(4):
        for qd in range(4):
            a(f"ds_read_b128 {vr(acc[w]+4*qd,4)}, v7 offset:{w*16384 + qd*1024}")
    a("v_and_b32 v3, 31, v1", "v_lshlrev_b32 v3, 10, v3", "v_lshrrev_b32 v7, 5, v1", "v_lshl_add_u32 v3, v7, 4, v3",
      "s_and_b32 s79, s3, 1", "s_lshl1_add_u32 s79, s6, s79", "s_lshl_b32 s79, s79, 15", "s_lshl_b32 s80, s7, 7", "s_add_u32 s79, s79, s80",
      "s_lshr_b32 s80, s3, 1", "s_lshl_b32 s80, s80, 6", "s_add_u32 s79, s79, s80")
    a("s_waitcnt lgkmcnt(8)")
    for r in range(0, 16, 2): a(f"v_pk_add_f32 {vr(acc[0]+r,2)}, {vr(acc[0]+r,2)}, {vr(acc[1]+r,2)}")
    a("s_waitcnt lgkmcnt(0)")
    for r in range(0, 16, 2): a(f"v_pk_add_f32 {vr(acc[2]+r,2)}, {vr(acc[2]+r,2)}, {vr(acc[3]+r,2)}")
    for r in range(0, 16, 2): a(f"v_pk_add_f32 {vr(acc[0]+r,2)}, {vr(acc[0]+r,2)}, {vr(acc[2]+r,2)}")
    for r in range(8): a(f"v_cvt_pk_bf16_f32 v{16+r}, v{acc[0]+2*r}, v{acc[0]+2*r+1}")
    a("s_nop 1")
    for p in range(2):
        b = 16 + 4*p
        a(f"v_permlane32_swap_b32 v{b}, v{b+2}", f"v_permlane32_swap_b32 v{b+1}, v{b+3}")
    a(f"buffer_store_dwordx4 v[16:19], v3, {rOUT}, s79 offen", f"buffer_store_dwordx4 v[20:23], v3, {rOUT}, s79 offen offset:32")
    trace(a, "t")
    a("s_or_b32 s79, s2, s3", "s_cmp_lg_u32 s79, 0", "s_cbranch_scc1 L_g_noep", f"s_mov_b32 s79, {EP:#x}")
    flag_store(a, "s79")
    a.label("L_g_noep")
    stamp_end(a, 1)

HEADER = open("gated_mix__mha_block__glu_gated_glu__prompt.s.ref").read().split("; Override launch")[0]
def build():
    a = Asm()
    txt = HEADER + "; @launch grid=(256,1,1) block=(768,1,1) lds=163840\n"
    txt += '.amdgcn_target "amdgcn-amd-amdhsa--gfx950"\n.text\n'
    d = gen(a)
    txt += a.text() + '.section .rodata,"a"\n' + d
    return txt
if __name__ == "__main__":
    for o in sys.argv[2:]:
        k, v = o.split("=")
        OPT[k] = set(v.split(",")) if k == "tr" else int(v)
    open(sys.argv[1], "w").write(build())
    print("wrote", sys.argv[1])
```

```python
import sys, math, struct
from asmlib import *

MB = 1 << 20
QF, KF, VF, OF, XF, GT, FL, ST, HF = 0, 2*MB, 4*MB, 6*MB, 8*MB, 12*MB, 13*MB, 14*MB, 16*MB
KST = 44032
EP = FL + 0xf0000
FQ, FX, FH, FO, FP = FL, FL + 0x8000, FL + 0x28000, FL + 0x48000, FL + 0x88000
HF_BYTES = 86 * 65536
QSCALE = 0.25 * math.log2(math.e)
LOG2E = math.log2(math.e)
def fbits(x): return struct.unpack("<I", struct.pack("<f", x))[0]
MFMA = "v_mfma_f32_32x32x16_bf16"
SM = "v_smfmac_f32_32x32x32_bf16"
NAME = "gated_mix__mha_block__glu_gated_glu__prompt_kernel"
rX, rWQ, rWS, rHF, rWG, rWD, rWO, rOUT, rGW = [f"s[{i}:{i+3}]" for i in range(8, 44, 4)]
P1X, P1W = 0, 65536
KB, VB, VST = 0, 65536, 1040
RING = VB + 64*VST
CB = RING + 30720
cPASS, cEX, cB, cALL = 20, 32, 64, 80
vCB, vONE, vPOLL = 4, 5, 6
sN, sBUD = 70, 83
OPT = dict(omode=0, drot=1, hd=2, osl=1, hs=6, hf=15, dbg=0, pre=1, ramp=1, sprio=1, kvx=2, unroll=1, l2=16, h2=22, l1=28, h1=31, early=1, tb=0, hg=3, ns=1, nd=4, tr=set(), vtr=0, cyc=0, noattn=0, nod=0, pr2=2, pr1=6, warm=0, wstep=8, dprio=0, hst=1)

def trace(a, grp):
    if grp not in OPT["tr"]: return
    v = OPT["vtr"]
    a("s_memtime s[84:85]" if OPT["cyc"] else "s_memrealtime s[84:85]", "s_mov_b32 s87, m0", "s_mov_b32 m0, s86", "s_waitcnt lgkmcnt(0)", f"v_writelane_b32 v{v}, s84, m0",
      "s_add_u32 s86, s86, 1", "s_mov_b32 m0, s87", "s_nop 0")
def trace2(a, grp):
    if grp not in OPT["tr"]: return
    a("s_cselect_b32 s98, 1, 0"); trace(a, grp); a("s_cmp_eq_u32 s98, 1")
def stamp(a, i=0): trace(a, "m")
def trace_init(a):
    if OPT["tr"]: a("s_mov_b32 s86, 0", f"v_mov_b32 v{OPT['vtr']}, 0")
def dbg_end(a, kidx):
    if not OPT["dbg"]: return
    lab = a.newlabel("dg")
    a("s_cmp_eq_u32 s59, 0", f"s_cbranch_scc1 {lab}", "s_lshl_b32 s79, s2, 16", "s_lshl_b32 s78, s3, 8", "s_or_b32 s79, s79, s78", f"s_or_b32 s79, s79, {0x1000*kidx + 0x80000000:#x}",
      "s_or_b32 s79, s79, s59", "v_mov_b32 v3, s79", "s_lshl_b32 s78, s59, 2", f"s_add_u32 s78, s78, {ST:#x}", "s_mov_b64 exec, 1", f"buffer_store_dword v3, off, {rWS}, s78 sc1", "s_mov_b64 exec, -1")
    a.label(lab)
def stamp_end(a, kidx):
    dbg_end(a, kidx)
    if not OPT["tr"]: return
    a("s_waitcnt vmcnt(0)")
    OPT["tr"].add("end"); trace(a, "end")
    a("s_mul_i32 s71, s2, 12", "s_add_u32 s71, s71, s3", f"s_add_u32 s71, s71, {4 if kidx == 0 else 0}", "s_lshl_b32 s71, s71, 8", f"s_add_u32 s71, s71, {ST:#x}",
      "v_lshlrev_b32 v7, 2, v1", f"buffer_store_dword v{OPT['vtr']}, v7, {rWS}, s71 offen")

def lds_arrive(a, off, vaddr=vCB):
    a("s_mov_b64 exec, 1", f"ds_add_u32 v{vaddr}, v{vONE} offset:{off}", "s_mov_b64 exec, -1")
OOL = []
def emit_ool(a):
    while OOL:
        blk = OOL.pop(0)
        for l in blk:
            if l.startswith("@") or l.startswith("."): a.raw(l)
            elif l.endswith(":"): a.label(l[:-1])
            else: a(l)
class Ool:
    def __init__(self, a): self.a = a
    def __enter__(self): self.sv = self.a.lines; self.a.lines = []
    def __exit__(self, *e):
        OOL.append([l.strip() for l in self.a.lines]); self.a.lines = self.sv
def retry(a, lp, dn, sleep):
    rt = a.newlabel("rt")
    OOL.append([rt + ":"] + ([f"s_sleep {sleep}"] if sleep else []) +
               [f"s_sub_u32 s{sBUD}, s{sBUD}, 1", f"s_cbranch_scc0 {lp}", f"s_mov_b32 s{sBUD}, 0", f"s_branch {dn}"])
    return rt
def lds_wait(a, off, target, vaddr=vCB, sleep=0):
    lp, dn = a.newlabel("lw"), a.newlabel("lwd")
    rt = retry(a, lp, dn, sleep)
    a.label(lp)
    a(f"ds_read_b32 v{vPOLL}, v{vaddr} offset:{off}", "s_waitcnt lgkmcnt(0)", f"v_readfirstlane_b32 s82, v{vPOLL}",
      f"s_cmp_ge_u32 s82, {target}", f"s_cbranch_scc0 {rt}")
    a.label(dn)
def pre_wait(a, off, target, vaddr=vCB):
    lp, dn, rt = a.newlabel("pw"), a.newlabel("pwd"), a.newlabel("pwr")
    OOL.append([rt + ":", f"ds_read_b32 v{vPOLL}, v{vaddr} offset:{off}", f"s_sub_u32 s{sBUD}, s{sBUD}, 1", "s_waitcnt lgkmcnt(0)",
                f"s_cbranch_scc0 {lp}", f"s_mov_b32 s{sBUD}, 0", f"s_branch {dn}"])
    a.label(lp)
    a(f"v_readfirstlane_b32 s82, v{vPOLL}", f"s_cmp_ge_u32 s82, {target}", f"s_cbranch_scc0 {rt}")
    a.label(dn)
def flag_wait(a, off, vaddr, sleep=0):
    lp, dn = a.newlabel("fw"), a.newlabel("fwd")
    rt = retry(a, lp, dn, sleep)
    a.label(lp)
    a(f"ds_read_b32 v{vPOLL}, v{vaddr} offset:{off}", "s_waitcnt lgkmcnt(0)", f"v_cmp_eq_u32 vcc, 0, v{vPOLL}", f"s_cbranch_vccnz {rt}")
    a.label(dn)
def gpoll(a, vaddr, soff, sleep=2, nl=64):
    lp, dn = a.newlabel("gp"), a.newlabel("gpd")
    rt = retry(a, lp, dn, sleep)
    if nl < 64: a(f"s_mov_b64 exec, {(1 << nl) - 1:#x}")
    a.label(lp)
    a(f"buffer_load_dword v{vPOLL}, v{vaddr}, {rWS}, {soff} offen sc1", "s_waitcnt vmcnt(0)",
      f"v_cmp_ne_u32 vcc, s{sN}, v{vPOLL}", f"s_cbranch_vccnz {rt}")
    a.label(dn)
    if nl < 64: a("s_mov_b64 exec, -1")
def flag_store(a, soff):
    a(f"v_mov_b32 v3, s{sN}", "s_mov_b64 exec, 1", f"buffer_store_dword v3, off, {rWS}, {soff} sc1", "s_mov_b64 exec, -1")
def skip_ool(a):
    pass

class VQ:
    def __init__(self, a): self.a = a; self.q = []
    def issue(self, tag): self.q.append(tag)
    def wait(self, *tags):
        idx = max([i for i, t in enumerate(self.q) if t in tags], default=-1)
        if idx < 0: return
        n = len(self.q) - 1 - idx
        assert n <= 63
        self.a(f"s_waitcnt vmcnt({n})")
        self.q = self.q[idx+1:]
    def drain(self): self.q = []

def won(a, role): a.raw(f"@W+ {role}")
def woff(a): a.raw("@W-")
def warm_call(a, role, nchain, sel, extra=None):
    if not OPT["warm"]: return
    a("s_mov_b64 exec, 0")
    for c in range(nchain):
        a(f"s_cmp_eq_u32 {sel}, {c}", f"s_cbranch_scc1 L_w{role}_{c}")
    if extra: a(f"s_cmp_eq_u32 {sel}, {extra[0]}", f"s_cbranch_scc1 {extra[1]}")
    a.label(f"L_wret_{role}")
    a("s_mov_b64 exec, -1")
def insert_hops(lines, nchain):
    out = []; role = None; cnt = 0; spots = {}
    for l in lines:
        if l.startswith("@W+"): role = l.split()[1]; cnt = OPT["wstep"]; continue
        if l.startswith("@W-"): role = None; continue
        isins = l.startswith("    ") and not l.strip().startswith(";")
        if role and isins and OPT["warm"]:
            if cnt >= OPT["wstep"]:
                spots.setdefault(role, []).append(len(out)); out.append(None); cnt = 0
            cnt += 1
        out.append(l)
    for role, sp in spots.items():
        n = nchain[role]; per = -(-len(sp) // n)
        for k, pos in enumerate(sp):
            c, first, last = k // per, k % per == 0, (k % per == per-1 or k == len(sp)-1)
            lab = f"L_w{role}_{c}" if first else f"L_h{role}_{k}"
            tgt = f"L_wret_{role}" if last else f"L_h{role}_{k+1}"
            out[pos] = f"{lab}:\n    s_cbranch_execz {tgt}"
        assert -(-len(sp) // per) == n, (role, len(sp), per, n)
    return out

def gen(a):
    kernel_header(a, NAME)
    a("s_cmp_ge_u32 s2, 256", "s_cbranch_scc1 L_end")
    a("s_load_dwordx16 s[48:63], s[0:1], 0", "s_load_dwordx4 s[64:67], s[0:1], 64", "s_load_dwordx2 s[68:69], s[0:1], 80")
    a("v_lshrrev_b32 v2, 6, v0", "v_and_b32 v1, 63, v0")
    a("s_bfe_u32 s73, s2, 0x10003", "s_and_b32 s4, s2, 6", "s_add_u32 s4, s4, s73", "s_and_b32 s5, s2, 1")
    a("v_readfirstlane_b32 s3, v2")
    a("s_lshr_b32 s72, s2, 4", "s_lshl4_add_u32 s5, s5, s72")
    a("s_lshl2_add_u32 s72, s73, s5", "s_and_b32 s72, s72, 7")
    if OPT["tr"]:
        trace_init(a); OPT["tr"].add("start"); trace(a, "start")
    a("s_cmp_ge_u32 s3, 4", "s_cbranch_scc1 L_awave")
    gen_loader(a)
    gen_gwave(a)
    a.label("L_end")
    a("s_endpgm")
    emit_ool(a)
    a.raw(".p2align 6")
    a.label("L_awave")
    gen_awave(a)
    emit_ool(a)
    a.label("L_codeend")
    a.lines = insert_hops(a.lines, {"a": 3})
    if OPT["dbg"]:
        out = []; n = 0; last = ""
        for l in a.lines:
            if l.endswith(":"): last = l
            if l.strip() == f"s_mov_b32 s{sBUD}, 0":
                n += 1; print("wait id", n, "after", last)
                out += [f"    s_cmp_eq_u32 s59, 0", f"    s_cmov_b32 s59, {n}"]
            if l.strip() == f"s_mov_b32 s{sBUD}, 20000": out.append("    s_mov_b32 s82, 0")
            out.append(l)
        a.lines = out
    return kernel_desc(NAME, 168, 102)

def common(a):
    a("s_bfe_u32 s71, s2, 0x20003", "s_lshr_b32 s7, s2, 5", "s_and_b32 s6, s2, 7", "s_lshl2_add_u32 s6, s6, s71")
    a(f"v_mov_b32 v{vCB}, {CB}", f"v_mov_b32 v{vONE}, 1", f"s_mov_b32 s{sBUD}, 20000", "v_lshlrev_b32 v2, 4, v1")
def slicep(a):
    a("s_bfe_u32 s101, s5, 0x10003", "s_lshl1_add_u32 s101, s4, s101", "s_lshr_b32 s100, s101, 2", "s_mul_i32 s100, s100, 22", "s_and_b32 s97, s101, 3",
      "s_mul_i32 s78, s97, 6", "s_add_u32 s100, s100, s78", "s_min_u32 s100, s100, 82", "s_cmp_lg_u32 s97, 3", "s_cselect_b32 s97, 1, 0", "s_cmp_eq_u32 s4, 7", "s_cmov_b32 s97, 0")
def epoch(a): a(f"s_add_u32 s44, s68, {EP:#x}", "s_addc_u32 s45, s69, 0", f"s_load_dword s{sN}, s[44:45], 0")
SLOT = 24576

vWd, vT2, vG, vTH, vP1, vGA = 8, 9, 10, 69, 70, 13
sH0, sW0, sW1, sR = 60, 62, 63, 64
Wf = [12, 20]; HD = 5; H = [28 + 8*i for i in range(HD)]
accD = [104 + 16*i for i in range(4)]
WF = 40; OFR = 8
NS = 3
vR0, vR1 = 2, 5
sT = 55
def dconst(a):
    a("s_lshl_b32 s78, s6, 13", f"s_lshl_b32 s{sT}, s3, 11", f"s_add_u32 s78, s78, s{sT}", f"s_add_u32 s78, s78, {FP:#x}",
      f"s_lshl_b32 s{sT}, s6, 12", f"s_add_u32 s{sT}, s{sT}, {FH + 14*128:#x}", "v_cmp_gt_u32 vcc, 16, v1", f"v_mov_b32 v3, s{sT}", "v_mov_b32 v8, s78",
      "v_cndmask_b32 v3, v3, v8, vcc", f"v_add_u32 v{vP1}, v3, v7")
    a("v_bfe_u32 v3, v1, 2, 3", f"v_lshl_add_u32 v{vWd}, v3, 10, v14", "s_lshr_b32 s78, s3, 1", "s_lshl_b32 s78, s78, 6", f"v_xor_b32 v{vWd}, s78, v{vWd}")
    a("v_subrev_u32 v3, 18, v1", "v_bfe_u32 v9, v3, 1, 1", "v_lshlrev_b32 v9, 3, v9",
      "v_bfe_u32 v11, v3, 2, 1", "v_lshl_add_u32 v9, v11, 6, v9", "v_bfe_u32 v11, v3, 3, 1", "v_lshl_add_u32 v9, v11, 10, v9",
      "s_lshr_b32 s78, s6, 2", "s_lshl_b32 s78, s78, 7", f"s_lshl4_add_u32 s78, s3, s78", "s_add_u32 s78, s78, s71",
      f"s_lshr_b32 s{sT}, s6, 4", f"s_lshl2_add_u32 s78, s{sT}, s78", "v_add_u32 v9, s78, v9", "v_and_b32 v11, 1, v3", "v_lshlrev_b32 v11, 9, v11", "v_xor_b32 v9, v9, v11",
      "v_cmp_gt_u32 vcc, 18, v1", "v_lshlrev_b32 v9, 7, v9", f"v_add_u32 v9, {FP:#x}, v9",
      f"v_cndmask_b32 v{vP1}, v9, v{vP1}, vcc")
    a(f"s_mul_i32 s{sH0}, s3, {22*65536}", "s_lshl_b32 s78, s6, 11", f"s_add_u32 s{sH0}, s{sH0}, s78")
    a(f"s_lshl_b32 s{sW0}, s3, 17", "s_lshl_b32 s78, s7, 7", f"s_add_u32 s{sW0}, s{sW0}, s78")
    a(f"s_mul_i32 s{sW1}, s3, {22*16384}", f"s_add_u32 s{sW1}, s{sW1}, s78")
    a(f"s_mul_i32 s{sR}, s3, 7680", f"s_add_u32 s{sR}, s{sR}, {RING}")
    a("v_lshrrev_b32 v3, 5, v1", "v_lshlrev_b32 v3, 2, v3", "v_bfe_u32 v9, v1, 2, 2", "v_add_u32 v3, v3, v9", "v_lshlrev_b32 v3, 6, v3",
      "v_bfe_u32 v9, v1, 4, 1", "v_lshl_add_u32 v3, v9, 5, v3", "v_and_b32 v9, 3, v1", "v_lshl_add_u32 v3, v9, 3, v3", f"v_add_u32 v{vT2}, s{sR}, v3")
    a("v_lshrrev_b32 v3, 4, v1", "v_lshlrev_b32 v3, 16, v3", "v_and_b32 v11, 15, v1", f"v_lshl_add_u32 v{vTH}, v11, 7, v3",
      f"v_and_b32 v{vGA}, 31, v1", f"v_lshlrev_b32 v{vGA}, 2, v{vGA}")
    a("s_lshr_b32 s57, s2, 3", "s_lshl2_add_u32 s57, s57, s3", "s_lshl_b32 s58, s57, 12", f"s_mul_i32 s57, s57, {86*128}")


def gen_loader(a):
    vX0, vX1, vW, vW1, vG0, vG2 = 16, 17, 18, 19, 20, 21
    a("s_setprio 3")
    a("v_lshrrev_b32 v19, 3, v1", "v_lshrrev_b32 v3, 4, v1", "v_and_b32 v7, 7, v1", "v_xor_b32 v3, v3, v7",
      "v_lshlrev_b32 v3, 4, v3", f"v_lshl_add_u32 v{vX0}, v19, 10, v3",
      f"v_xor_b32 v{vX1}, 64, v{vX0}", f"v_add_u32 v{vX1}, {0x2000 - 1024}, v{vX1}")
    a("v_bfe_u32 v20, v1, 2, 3", "v_mul_u32_u24 v19, 3072, v20", "v_lshrrev_b32 v3, 5, v1", "v_and_b32 v7, 3, v1", "v_lshlrev_b32 v7, 4, v7",
      "v_lshl_add_u32 v14, v3, 6, v7", f"v_add_u32 v{vW}, v19, v14", f"v_add_u32 v{vW1}, {8*3072 - 1024}, v{vW}")
    a("s_lshl_b32 s74, s5, 16", "s_lshl_b32 s78, s3, 14", "s_add_u32 s74, s74, s78")
    a("s_mul_i32 s75, s3, 49152", "s_lshl_b32 s78, s4, 7", "s_add_u32 s75, s75, s78")
    a("s_lshl_b32 s76, s3, 11", f"s_add_u32 s77, s76, {P1W}", "s_mov_b32 s73, s72")
    a("s_mov_b32 s10, 0x200000", "s_mov_b32 s11, 0x20000", "s_mov_b32 s14, 0x180000", "s_mov_b32 s15, 0x20000")
    def xunit():
        a("s_lshl_b32 s78, s72, 7", "s_mov_b32 m0, s76", "s_add_u32 s78, s78, s74",
          f"buffer_load_dwordx4 v{vX0}, {rX}, s78 offen lds", f"buffer_load_dwordx4 v{vX1}, {rX}, s78 offen offset:1024 lds",
          "s_add_u32 s76, s76, 8192", "s_add_u32 s72, s72, 1", "s_and_b32 s72, s72, 7")
    def wblock():
        a("s_mul_i32 s79, s73, 196608", "s_mov_b32 m0, s77", "s_add_u32 s79, s79, s75")
        for mat in range(3):
            if mat: a(f"s_add_u32 m0, s77, {mat*(8192 - 1024)}", "s_add_u32 s73, s73, 1" if mat == 1 else "s_and_b32 s73, s73, 7")
            a(f"buffer_load_dwordx4 v{vW}, {rWQ}, s79 offen offset:{mat*1024} lds", f"buffer_load_dwordx4 v{vW1}, {rWQ}, s79 offen offset:{mat*1024 + 1024} lds")
    def nslot(): a(f"s_add_u32 s77, s77, {SLOT}", "s_cmp_eq_u32 s77, s81", "s_cmov_b32 s77, s80")
    a("s_waitcnt lgkmcnt(0)")
    a("s_mov_b64 s[8:9], s[48:49]", "s_mov_b64 s[12:13], s[50:51]")
    stamp(a)
    xunit(); wblock()
    epoch(a); common(a)
    a("s_mov_b32 s80, s77", f"s_add_u32 s81, s77, {4*SLOT}")
    a("s_cmp_lt_u32 s3, 2", "s_cselect_b32 s24, s56, s58", "s_cselect_b32 s25, s57, s59", f"s_mov_b32 s26, {512*1376*2:#x}", "s_mov_b32 s27, 0x20000",
      "s_cselect_b32 s78, 0, 32")
    a("v_lshrrev_b32 v3, 2, v1", "v_mul_u32_u24 v3, 2752, v3", "v_add_u32 v3, v3, v7", f"v_xor_b32 v{vG0}, s78, v3")
    slicep(a)
    a("s_cmp_eq_u32 s97, 0", "s_cselect_b32 s78, 0x40000000, 0", f"v_add_u32 v{vG2}, s78, v{vG0}")
    a.srd(16, 68, 69, 16*MB)
    a.srd(20, 68, 69, HF_BYTES, add=HF)
    a.srd(28, 60, 61, 1376*512*2)
    a.srd(32, 52, 53, 512*512*2)
    a.srd(36, 64, 65, 2048*512*2)
    a.srd(40, 62, 63, 1024)
    a("v_lshlrev_b32 v7, 7, v1")
    if OPT["dbg"]: a("s_mov_b32 s59, 0")
    dconst(a)
    a("s_lshr_b32 s78, s3, 1", "s_xor_b32 s66, s4, 7", "s_or_b32 s66, s66, s78", "s_mov_b32 s46, s73")
    xunit(); xunit(); xunit()
    def sig(n):
        a(f"s_waitcnt vmcnt({n})", "s_barrier"); trace(a, "ld")
    def item(x):
        nslot(); wblock()
        if x: xunit()
    sig(6)
    if OPT["early"]:
        nslot(); wblock(); nslot(); wblock(); sig(6)
        nslot(); wblock(); sig(6)
        xunit(); nslot(); wblock(); xunit(); sig(10)
        nslot(); wblock(); xunit(); nslot(); wblock(); sig(16)
        xunit(); nslot(); wblock(); sig(16)
    else:
        item(1); item(1); sig(10)
        item(1); item(1); sig(18)
        item(0); sig(16)
        item(0); sig(14)
        item(0); sig(12)
    a("s_lshl_b32 s75, s100, 5", "s_and_b32 s78, s3, 1", f"s_mul_i32 s77, s78, {KST}", "s_add_u32 s75, s75, s77",
      "s_mul_i32 s77, s78, 6144", "s_lshr_b32 s78, s3, 1", "s_mul_i32 s78, s78, 3072", "s_add_u32 s77, s77, s78",
      "s_xor_b32 s74, s74, 0x80000", "s_lshl_b32 s80, s3, 11")
    def gw(m):
        base = P1W + [0, 2, 3][m % 3]*SLOT
        a(f"s_mul_i32 s79, s73, {4*KST}", f"s_add_u32 m0, s77, {base}", "s_add_u32 s79, s79, s75")
        for e in range(2):
            for t in range(3):
                if e or t: a(f"s_add_u32 m0, s77, {base + e*12288 + t*(1024 - 64)}", {(0,1): "s_add_u32 s73, s73, 1", (0,2): "s_and_b32 s73, s73, 7", (1,0): f"s_add_u32 s79, s79, {2*KST}"}.get((e, t), "s_nop 0"))
                a(f"buffer_load_dwordx4 v{vG2 if t == 2 else vG0}, {rWG}, s79 offen offset:{t*64} lds")
    def gx(m):
        a(f"s_add_u32 s76, s80, {P1W + SLOT + ((m+2) % 3)*8192}")
        xunit()
    gw(0); sig(14 if OPT["early"] else 12)
    gx(0); sig(8)
    a("s_waitcnt lgkmcnt(0)", f"s_add_u32 s{sN}, s{sN}, 1")
    if OPT["sprio"]: a("s_setprio 2")
    def gate(m):
        p = m - 1
        with Ool(a):
            a.label(f"L_gt{m}")
            if p == 0:
                a("v_and_b32 v15, 31, v1", "v_lshrrev_b32 v26, 5, v1", "v_bfe_u32 v22, v1, 1, 3", "v_xor_b32 v3, v26, v22",
                  "v_lshlrev_b32 v3, 4, v3", "v_lshl_add_u32 v22, v15, 7, v3", "s_lshl_b32 s78, s3, 12", "v_add_u32 v22, s78, v22",
                  "v_xor_b32 v23, 32, v22", "v_xor_b32 v24, 64, v22", "v_xor_b32 v25, 96, v22")
            if 1 <= p <= 4:
                q = p - 1
                rdx = lambda n: f"ds_read_b128 {vr(152+4*(n&3),4)}, v{22+(n&3)} offset:{(2*q + (n>>2))*8192}"
                a(*[rdx(n) for n in range(4)])
                for n in range(8):
                    a(f"s_waitcnt lgkmcnt({min(3, 7-n)})", f"{MFMA} {vr(136,16)}, {vr(72+32*(q&1)+4*n,4)}, {vr(152+4*(n&3),4)}, {'0' if (q == 0 and n == 0) else vr(136,16)}")
                    if n + 4 < 8: a(rdx(n+4))
            if p < 4:
                a("v_lshrrev_b32 v26, 5, v1", "v_lshlrev_b32 v26, 4, v26")
                for i in range(2):
                    a(f"s_add_u32 s78, s46, {2*p+i+7}", "s_and_b32 s78, s78, 7", "s_lshl_b32 s78, s78, 7")
                    for ks in range(4): a(f"buffer_load_dwordx4 {vr(72+32*(p&1)+16*i+4*ks,4)}, v26, {rGW}, s78 offen offset:{ks*32}")
            if p == 5:
                a("s_lshl1_add_u32 s78, s5, s3", "s_lshl_b32 s78, s78, 7", f"s_add_u32 s78, s78, {GT:#x}", f"s_mov_b32 s79, {fbits(-LOG2E):#x}",
                  "v_mul_f32 v136, s79, v136", "v_exp_f32 v136, v136", "s_nop 0", "v_add_f32 v136, 1.0, v136", "v_rcp_f32 v136, v136", "s_nop 0",
                  f"buffer_store_dword v136, v{vGA}, {rWS}, s78 offen sc1")
            if p == 6:
                a("s_lshl_b32 s78, s5, 5", "s_add_u32 s78, s78, s3", "s_lshl_b32 s78, s78, 7", f"s_add_u32 s78, s78, {FH + 30*128:#x}")
                flag_store(a, "s78")
            a(f"s_branch L_gtr{m}")
        a("s_cmp_eq_u32 s66, 0", f"s_cbranch_scc1 L_gt{m}")
        a.label(f"L_gtr{m}")
    for m in range(1, 8):
        gate(m); gx(m); gw(m); sig(8)
    a("s_lshr_b32 s76, s6, 2", "s_lshl_b32 s76, s76, 12", f"s_add_u32 s76, s76, {FQ:#x}", "s_mov_b32 exec_hi, 0",
      f"buffer_load_dword v{vPOLL}, v7, {rWS}, s76 offen sc1")
    a("s_lshl_b32 s81, s3, 10", f"s_mul_i32 s80, s3, {VST}", f"s_add_u32 s80, s80, {VB}",
      "s_lshl_b32 s79, s6, 16", "s_add_u32 s79, s79, s81", f"s_add_u32 s79, s79, {KF:#x}", "s_mov_b32 s74, 0")
    with Ool(a):
        a.label("L_g_p0r")
        gpoll(a, 7, "s76", sleep=1)
        a("s_branch L_g_p0k")
    a("s_waitcnt vmcnt(0)", f"v_cmp_ne_u32 vcc, s{sN}, v{vPOLL}", "s_cbranch_vccnz L_g_p0r")
    a.label("L_g_p0k")
    a("s_mov_b64 exec, -1", "s_barrier")
    trace(a, "ld")
    kvpair(a); kvpair(a)
    a("s_barrier")
    a.label("L_ld_done")
    a("s_setprio 3")
    stamp(a)

def kvpair(a):
    a("s_mov_b32 m0, s81", f"s_add_u32 s76, s79, {VF - KF:#x}", f"buffer_load_dwordx4 v2, {rWS}, s79 offen sc1 lds",
      "s_mov_b32 m0, s80", "s_add_u32 s77, s79, 0x8000", f"buffer_load_dwordx4 v2, {rWS}, s76 offen sc1 lds",
      "s_add_u32 m0, s81, 0x8000", "s_add_u32 s76, s76, 0x8000", f"buffer_load_dwordx4 v2, {rWS}, s77 offen sc1 lds",
      f"s_add_u32 m0, s80, {32*VST}", "s_add_u32 s79, s79, 4096", f"buffer_load_dwordx4 v2, {rWS}, s76 offen sc1 lds",
      "s_add_u32 s81, s81, 4096", f"s_add_u32 s80, s80, {4*VST}")

Kf, Qa, Qb, V1, V2, Sa, Sb, Oa, Ob = 8, 16, 20, 24, 28, 32, 48, 64, 80
IDX, vK, vV0, vV1, vHC, vGT, vTC, vL4, vON, vST, vF4, vE0, vE1, vE2, vWg, vSK = range(152, 168)
HA = 104
def gen_awave(a):
    vXa = [8, 9, 10, 11]; vWb, vWa, vXb = 12, 13, 14
    a("s_sub_u32 s3, s3, 4", f"v_lshlrev_b32 v{vTC}, 7, v1")
    a("s_cmp_lg_u32 s3, 0", "s_cbranch_scc1 L_a_nocode")
    a("s_getpc_b64 s[40:41]")
    a.label("L_pc")
    a(f"s_sub_u32 s40, s40, L_pc-{NAME}", "s_subb_u32 s41, s41, 0", f"s_mov_b32 s42, L_codeend-{NAME}", "s_mov_b32 s43, 0x20000",
      "s_lshr_b32 s76, s2, 3", "s_lshl_b32 s76, s76, 10", "s_mov_b64 exec, 0xff", f"buffer_load_dword v{vGT}, v{vTC}, s[40:43], s76 offen", "s_mov_b64 exec, -1")
    a.label("L_a_nocode")
    common(a)
    a("s_bfe_u32 s73, s3, 0x10001", "s_and_b32 s74, s3, 1", "s_lshr_b32 s75, s3, 2")
    a("v_and_b32 v15, 31, v1", "v_lshrrev_b32 v3, 5, v1", "v_bfe_u32 v7, v1, 1, 3", "v_xor_b32 v3, v3, v7",
      "v_lshlrev_b32 v3, 4, v3", "v_lshl_add_u32 v15, v15, 7, v3",
      "s_lshl_b32 s76, s73, 12", f"v_add_u32 v{vXb}, s76, v15", f"v_mov_b32 v{vXa[0]}, v{vXb}")
    a("v_bfe_u32 v3, v1, 2, 2", "v_lshlrev_b32 v15, 6, v3", "v_and_b32 v3, 3, v1", "v_lshl_add_u32 v15, v3, 3, v15",
      "v_lshrrev_b32 v16, 5, v1", "v_bfe_u32 v3, v1, 4, 1",
      "v_lshl_add_u32 v7, v16, 10, v15", "v_lshl_add_u32 v7, v3, 5, v7",
      "s_lshl_b32 s76, s74, 9", f"s_add_u32 s76, s76, {P1W}", f"v_add_u32 v{vWb}, s76, v7")
    a("v_lshl_add_u32 v15, v16, 9, v15", "v_mul_u32_u24 v7, 3072, v3", "v_add_u32 v15, v15, v7", "v_xor_b32 v7, s74, v3", "v_lshl_add_u32 v15, v7, 5, v15",
      f"v_add_u32 v{vWg}, {P1W}, v15")
    a("s_waitcnt lgkmcnt(0)")
    epoch(a)
    a.srd(16, 68, 69, 16*MB)
    a.srd(20, 68, 69, HF_BYTES, add=HF)
    if OPT["dbg"]: a("s_mov_b32 s59, 0")
    a("s_lshl1_add_u32 s48, s5, s73")
    a("s_and_b32 s77, s3, 3")
    a("s_lshl_b32 s76, s75, 15", f"v_add_u32 v{vK}, s76, v2")
    a("v_and_b32 v3, 15, v1", "v_lshlrev_b32 v3, 4, v3", "v_lshrrev_b32 v7, 5, v1", "v_lshl_add_u32 v3, v7, 8, v3",
      "v_and_b32 v7, 27, v1", "v_cmp_eq_u32 vcc, 16, v7", "v_mov_b32 v16, 0x18000", "v_mov_b32 v15, 1024",
      "v_cndmask_b32 v16, v16, v15, vcc",
      "v_and_b32 v7, 16, v1", "v_cmp_eq_u32 vcc, 0, v7", "v_add_u32 v15, 512, v3",
      f"s_mul_i32 s76, s75, {32*VST}", f"s_add_u32 s76, s76, {VB}",
      f"v_cndmask_b32 v{vV0}, v16, v3, vcc", f"v_cndmask_b32 v{vV1}, v16, v15, vcc",
      f"v_add_u32 v{vV0}, s76, v{vV0}", f"v_add_u32 v{vV1}, s76, v{vV1}")
    a(f"v_lshl_add_u32 v{vST}, v7, 12, v3", f"v_mov_b32 v{IDX}, 0xdddd")
    a("v_and_b32 v7, 0x33, v1", "v_bfe_u32 v3, v1, 2, 1", "v_lshl_add_u32 v7, v3, 3, v7", "v_bfe_u32 v3, v1, 3, 1", "v_lshl_add_u32 v7, v3, 2, v7",
      f"v_lshlrev_b32 v{vSK}, 4, v7")
    a(f"v_and_b32 v{vL4}, 31, v1", f"v_lshlrev_b32 v{vL4}, 2, v{vL4}")
    a(f"v_mul_u32_u24 v{vON}, {VST//4}, v{vL4}", "s_add_u32 s76, s76, 1024", f"v_add_u32 v{vON}, s76, v{vON}")
    a("s_lshl_b32 s76, s75, 2", f"v_add_u32 v{vHC}, s76, v{vCB}")
    a("v_and_b32 v3, 3, v1", f"v_lshl_add_u32 v{vF4}, v3, 2, v{vCB}")
    a("s_mul_i32 s79, s77, 2304", "s_lshl_b32 s80, s75, 15", "s_add_u32 s79, s79, s80", f"v_add_u32 v{vE0}, s79, v2",
      f"v_lshrrev_b32 v{vE1}, 2, v2", f"v_add_u32 v{vE1}, s79, v{vE1}", "s_lshl_b32 s80, s3, 2", f"v_add_u32 v{vE2}, s80, v{vCB}")
    a("s_lshl_b32 s88, s7, 3", "s_lshl1_add_u32 s88, s77, s88", "s_add_u32 s88, s88, s75", "s_lshl_b32 s89, s6, 16")
    a("s_lshl_b32 s90, s88, 10", "s_add_u32 s90, s90, s89", "s_xor_b32 s91, s90, 1024")
    a("s_lshl_b32 s95, s75, 5", "s_add_u32 s95, s95, s77", "s_lshl_b32 s94, s95, 10", f"s_mul_i32 s95, s95, {VST}", f"s_add_u32 s95, s95, {VB}",
      "s_add_u32 s92, s89, s94", f"s_add_u32 s92, s92, {KF:#x}", f"s_add_u32 s93, s92, {VF - KF:#x}")
    a("s_lshl_b32 s96, s4, 5", "s_add_u32 s96, s96, s5", "s_lshl_b32 s96, s96, 7", f"s_add_u32 s96, s96, {FQ:#x}")
    slicep(a)
    a("s_lshl_b32 s76, s75, 3", "s_xor_b32 s76, s76, s5", "s_add_u32 s98, s100, s74", "s_lshl_b32 s98, s98, 16", "s_lshl1_add_u32 s79, s76, s73",
      "s_lshl_b32 s79, s79, 10", "s_add_u32 s98, s98, s79",
      "s_lshl4_add_u32 s99, s76, s101", "s_lshl2_add_u32 s99, s99, s77", "s_lshl_b32 s99, s99, 7", f"s_add_u32 s99, s99, {FP:#x}")
    a("s_lshl_b32 s49, s4, 2", "s_lshl1_add_u32 s49, s74, s49", "s_lshl_b32 s49, s49, 6", "s_add_u32 s49, s49, s48", "s_lshl_b32 s49, s49, 10")
    for r in range(16, 48): a(f"v_mov_b32 v{r}, 0")
    a("s_mov_b32 s79, 0", "s_mov_b32 s80, 0")
    def nslot(): a(f"s_add_u32 s80, s80, {SLOT}", f"s_cmp_eq_u32 s80, {4*SLOT}", "s_cmov_b32 s80, 0")
    def consumer(lab, steps, buf, nstage, adv, hook=None, pre=False, odd=True):
        per = 4 + 4*len(steps[0][1])
        nrd = 1 + 2*len(steps[0][1])
        tot = nrd*len(steps)
        def reads(b, i):
            f = buf[b] + per*i
            a(f"ds_read_b128 {vr(f,4)}, v{steps[i][0]}")
            for n, (wo, acc, sw) in enumerate(steps[i][1]):
                a(f"ds_read_b64_tr_b16 {vr(f+4+4*n,2)}, v{vWa} offset:{wo}", f"ds_read_b64_tr_b16 {vr(f+6+4*n,2)}, v{vWa} offset:{wo+256}")
        def mf(b, i, n):
            f = buf[b] + per*i
            wo, acc, sw = steps[i][1][n]
            A, B = (vr(f,4), vr(f+4+4*n,4)) if sw else (vr(f+4+4*n,4), vr(f,4))
            a(f"{MFMA} {vr(acc,16)}, {A}, {B}, {vr(acc,16)}")
        def readlist(b):
            sv = a.lines; a.lines = []
            for i in range(len(steps)): reads(b, i)
            r = [l.strip() for l in a.lines]; a.lines = sv
            return r
        mms = [(i, n) for i in range(len(steps)) for n in range(len(steps[i][1]))]
        def front(b):
            rl = readlist(1-b)
            ng = max(1, len(mms) - 2)
            per_gap = -(-len(rl) // ng)
            for g, (i, n) in enumerate(mms[:-1]):
                mf(b, i, n)
                a(*rl[g*per_gap:(g+1)*per_gap])
                if g == ng - 1: adv()
        def full(b):
            done = 0
            for i, n in mms:
                done += 3 if n == 0 else 2
                a(f"s_waitcnt lgkmcnt({min(15, tot - done)})")
                mf(b, i, n)
        a("s_barrier")
        trace(a, "p1")
        a(*readlist(0))
        adv()
        if pre:
            full(0)
            a("s_barrier")
            a(*readlist(1))
            adv()
            a(f"s_branch {lab}_in2")
        else:
            a(f"s_branch {lab}_in")
        emit_ool(a)
        a.label(lab)
        mf(1, *mms[-1])
        a.label(lab + "_in")
        a("s_waitcnt lgkmcnt(0)")
        if odd: a("s_barrier")
        trace(a, "p1")
        front(0)
        a(f"s_cmp_eq_u32 s79, {nstage - 2}", f"s_cbranch_scc1 {lab}_e")
        if hook: hook(lab, lambda: mf(0, *mms[-1]))
        else:
            mf(0, *mms[-1])
            a.label(lab + "_in2")
            a("s_waitcnt lgkmcnt(0)", "s_barrier")
        trace(a, "p1")
        a("s_add_u32 s79, s79, 2")
        front(1)
        a(f"s_branch {lab}")
        emit_ool(a)
        a.label(lab + "_e")
        mf(0, *mms[-1])
        full(1)
    def addr1():
        for ks in range(1, 4): a(f"v_xor_b32 v{vXa[ks]}, {32*ks}, v{vXa[0]}")
        a(f"v_add_u32 v{vWa}, s80, v{vWb}")
    def adv1():
        nslot()
        a(f"v_add_u32 v{vXa[0]}, 8192, v{vXa[0]}")
        addr1()
    addr1()
    a("s_waitcnt lgkmcnt(0)", f"s_add_u32 s{sN}, s{sN}, 1")
    stamp(a)
    a("s_cmp_lg_u32 s75, 0", "s_cbranch_scc1 L_p1q")
    a(f"s_add_u32 s54, s49, {VF:#x}", f"s_add_u32 s52, s49, {KF:#x}")
    consumer("L_p1kv", [(vXa[ks], [(8192 + ks*2048, 16, False), (16384 + ks*2048, 32, True)]) for ks in range(4)], [48, 96], 8, adv1, pre=OPT['pre'])
    a.nop(10)
    for r in range(8): a(f"v_cvt_pk_bf16_f32 v{16+r}, v{16+2*r}, v{17+2*r}")
    for r in range(8): a(f"v_cvt_pk_bf16_f32 v{24+r}, v{32+2*r}, v{33+2*r}")
    a("s_branch L_p1done")
    a.label("L_p1q")
    a(f"s_mov_b32 s50, {fbits(QSCALE):#x}", "s_mov_b32 s52, s49", "s_mov_b32 s54, 0x40000000", f"v_mov_b32 v{vSK}, v2")
    consumer("L_p1ql", [(vXa[ks], [(ks*2048, 16, False)]) for ks in range(4)], [48, 96], 8, adv1, pre=OPT['pre'])
    a.nop(12)
    for r in range(0, 16, 2): a(f"v_pk_mul_f32 {vr(16+r,2)}, {vr(16+r,2)}, s[50:51] op_sel_hi:[1,0]")
    for r in range(8): a(f"v_cvt_pk_bf16_f32 v{16+r}, v{16+2*r}, v{17+2*r}")
    a.label("L_p1done")
    a("s_add_u32 s53, s52, 0x10000")
    ST = [[f"buffer_store_dwordx4 v[16:19], v{vSK}, {rWS}, s52 offen sc1"], [f"buffer_store_dwordx4 v[20:23], v{vSK}, {rWS}, s53 offen sc1"],
          [f"buffer_store_dwordx4 v[24:27], v{vST}, {rWS}, s54 offen sc1", f"buffer_store_dwordx4 v[28:31], v{vST}, {rWS}, s54 offen offset:512 sc1"]]
    npre = {0: 0, 1: 1, -1: 3}[OPT["ns"]]
    for x in ST[:npre]: a(*x)
    stamp(a)
    for r in range(4): a(f"v_mov_b32 v{36+r}, 0")
    a("s_nop 1")
    for t in range(3): a(f"{MFMA} {vr(HA+16*t,16)}, v[36:39], v[36:39], 0")
    XR = P1W + SLOT
    a("s_mov_b32 s79, 0", "s_cmp_eq_u32 s75, 0", f"s_cselect_b32 s76, 0, {XR + 16384}", f"s_mov_b32 s77, {XR}", f"s_mov_b32 s78, {XR + 24576}",
      "s_mov_b32 s56, 0", f"s_mov_b32 s57, {2*SLOT}", f"s_mov_b32 s58, {3*SLOT}",
      "s_cmp_eq_u32 s3, 7", f"s_cselect_b32 s81, {OPT['nd']}, -1")
    def addr2():
        a(f"v_add_u32 v{vXa[0]}, s76, v{vXb}", f"v_add_u32 v{vWa}, s56, v{vWg}", f"v_xor_b32 v{vXa[1]}, 32, v{vXa[0]}")
    par = [0]
    def adv2():
        if par[0] == 0:
            a(f"v_xor_b32 v{vXa[0]}, 64, v{vXa[0]}", f"v_xor_b32 v{vXa[1]}, 64, v{vXa[1]}", f"v_add_u32 v{vWa}, 12288, v{vWa}",
              "s_add_u32 s76, s76, 8192", "s_cmp_eq_u32 s76, s78", "s_cmov_b32 s76, s77",
              "s_mov_b32 s80, s56", "s_mov_b32 s56, s57", "s_mov_b32 s57, s58", "s_mov_b32 s58, s80")
        else:
            addr2()
        par[0] ^= 1
    def hook(lab, last):
        ev = {2*n: x for n, x in enumerate(ST[npre:])}
        ev[12] = [f"buffer_load_dwordx4 {vr(Qa,4)}, v2, {rWS}, s90 offen sc1", f"buffer_load_dwordx4 {vr(Qb,4)}, v2, {rWS}, s91 offen sc1"]
        with Ool(a):
            a.label(lab + "_d")
            a(f"s_cmp_eq_u32 s79, {OPT['nd']}", f"s_cbranch_scc1 {lab}_f", "s_barrier")
            for n, x in ev.items():
                a(f"s_cmp_eq_u32 s79, {n}", f"s_cbranch_scc0 {lab}_s{n}")
                if OPT["sprio"]: a("s_setprio 3", *x, "s_setprio 0")
                else: a(*x)
                a(f"s_branch {lab}_r")
                a.label(f"{lab}_s{n}")
            a(f"s_branch {lab}_r")
            a.label(lab + "_f")
            trace(a, "h")
            a("s_waitcnt vmcnt(0)", "s_cmp_eq_u32 s79, s81", "s_barrier", f"s_cbranch_scc0 {lab}_r")
            flag_store(a, "s96")
            a(f"s_branch {lab}_r")
        a(f"s_bitcmp1_b32 {sum(1 << n for n in list(ev) + [OPT['nd']])}, s79")
        last()
        a("s_waitcnt lgkmcnt(0)", f"s_cbranch_scc1 {lab}_d", "s_barrier")
        a.label(lab + "_r")
    addr2()
    a("s_cmp_eq_u32 s97, 0", "s_cbranch_scc1 L_g2")
    consumer("L_g3l", [(vXa[e], [(e*6144 + t*1024, HA + 16*t, False) for t in range(3)]) for e in range(2)], [40, 72], 16, adv2, hook, odd=False)
    a("s_branch L_gdone")
    a.label("L_g2")
    par[0] = 0
    consumer("L_g2l", [(vXa[e], [(e*6144 + t*1024, HA + 16*t, False) for t in range(2)]) for e in range(2)], [40, 72], 16, adv2, hook, odd=False)
    a.label("L_gdone")
    a("s_setprio 3")
    stamp(a)
    a("s_barrier")
    stamp(a)
    for r in range(4): a(f"v_mov_b32 v{V1+r}, 0x3f803f80")
    for r in range(4): a(f"v_mov_b32 v{V2+r}, 0")
    a(f"ds_write_b128 v{vON}, {vr(V1,4)}", f"v_add_u32 v3, v{vL4}, v{vCB}", f"ds_write_b32 v3, v{V2}", f"s_mov_b32 s80, {fbits(-LOG2E):#x}")
    for r in (Sb, Oa, Ob): a(f"{MFMA} {vr(r,16)}, {vr(V2,4)}, {vr(V2,4)}, 0")
    for t in range(3):
        g = HA + 16*t
        if t == 2: a("s_cmp_eq_u32 s97, 0", "s_cbranch_scc1 L_a_e2")
        for r in range(0, 8, 2): a(f"v_pk_mul_f32 {vr(g+r,2)}, {vr(g+r,2)}, s[80:81] op_sel_hi:[1,0]")
        for r in range(8): a(f"v_exp_f32 v{g+r}, v{g+r}")
        for r in range(0, 8, 2): a(f"v_pk_add_f32 {vr(g+r,2)}, {vr(g+r,2)}, 1.0 op_sel_hi:[1,0]")
        for r in range(8): a(f"v_rcp_f32 v{g+r}, v{g+r}")
        for r in range(0, 8, 2): a(f"v_pk_mul_f32 {vr(g+r,2)}, {vr(g+r,2)}, {vr(g+8+r,2)}")
        for r in range(4): a(f"v_cvt_pk_bf16_f32 v{g+8+r}, v{g+2*r}, v{g+1+2*r}")
    a.label("L_a_e2")
    for r in range(4): a(f"v_mov_b32 v{HA+r}, -1")
    a("s_mov_b32 s77, s88", "s_mov_b32 s78, s89", "s_mov_b32 s48, s90")
    a("s_waitcnt vmcnt(0) lgkmcnt(0)", "s_barrier")
    stamp(a)
    a(f"ds_read_b128 {vr(Kf,4)}, v{vK}", f"ds_read_b128 {vr(V1,4)}, v{vV0}", "s_waitcnt lgkmcnt(1)",
      f"{MFMA} {vr(Sa,16)}, {vr(Kf,4)}, {vr(Qb,4)}, 0", "s_mov_b32 s76, 0x5f800000",
      f"v_xor_b32 v13, 16, v{vE2}", f"v_xor_b32 v14, 0x8000, v{vE0}", f"v_xor_b32 v12, 0x8000, v{vE1}")
    a.nop(12)
    woff(a)
    def h0(): flag_wait(a, cB, vF4)
    def h1(): flag_wait(a, cALL, vF4)
    def hs():
        a("s_add_u32 s79, s98, 0x20000", "s_add_u32 s80, s98, 0x40000", "s_cmp_eq_u32 s97, 0", "s_cmov_b32 s80, 0x40000000",
          f"buffer_store_dwordx4 {vr(HA+8,4)}, v2, {rHF}, s98 offen sc1", f"buffer_store_dwordx4 {vr(HA+24,4)}, v2, {rHF}, s79 offen sc1",
          f"buffer_store_dwordx4 {vr(HA+40,4)}, v2, {rHF}, s80 offen sc1")
        a(f"s_add_u32 s79, s48, {OF:#x}", f"buffer_store_dwordx4 {vr(HA,4)}, v2, {rWS}, s79 offen sc1")
    def hf():
        a("s_waitcnt vmcnt(0)")
        flag_store(a, "s99")
    def h6(): lds_wait(a, cPASS, 4, vaddr=vHC)
    def h3(): lds_arrive(a, cPASS, vHC)
    def h5():
        a("s_lshr_b32 s79, s77, 1", "s_lshl_b32 s79, s79, 5", "s_and_b32 s80, s77, 1", "s_add_u32 s79, s79, s80", "s_lshl_b32 s79, s79, 7",
          f"s_add_u32 s79, s79, {FH + 30*128:#x}")
        gpoll(a, vTC, "s79", nl=1)
        a("s_lshl_b32 s79, s77, 7", f"s_add_u32 s79, s79, {GT:#x}", f"buffer_load_dword v{vGT}, v{vL4}, {rWS}, s79 offen sc1")
    def E(S, lo, hi):
        for i in range(lo, hi): a(f"v_exp_f32 v{S+i}, v{S+i}")
    def tile(t):
        E(Sa, 0, 2)
        a(f"{SM} {vr(Oa,16)}, {vr(V2,4)}, {vr(Sb+8,8)}, v{IDX}", f"ds_read_b128 {vr(V2,4)}, v{vV1} offset:{t*VST}")
        E(Sa, 2, 6)
        a(f"{MFMA} {vr(Sb,16)}, {vr(Kf,4)}, {vr(Qa,4)}, 0")
        if t < 31: a(f"ds_read_b128 {vr(Kf,4)}, v{vK} offset:{(t+1)*1024}")
        E(Sa, 6, 12)
        a(f"s_waitcnt lgkmcnt({2 if t < 31 else 1})", f"{SM} {vr(Ob,16)}, {vr(V1,4)}, {vr(Sa,8)}, v{IDX}")
        E(Sa, 12, 16)
        E(Sb, 0, 2)
        a("s_waitcnt lgkmcnt(0)", f"{SM} {vr(Ob,16)}, {vr(V2,4)}, {vr(Sa+8,8)}, v{IDX}")
        E(Sb, 2, 6)
        if t < 31: a(f"{MFMA} {vr(Sa,16)}, {vr(Kf,4)}, {vr(Qb,4)}, 0")
        E(Sb, 6, 12)
        a(f"{SM} {vr(Oa,16)}, {vr(V1,4)}, {vr(Sb,8)}, v{IDX}")
        if t < 31: a(f"ds_read_b128 {vr(V1,4)}, v{vV0} offset:{(t+1)*VST}")
        else:
            a(f"s_add_u32 s74, s48, {OF:#x}", f"ds_write_b128 v{vE0}, {vr(Ob,4)}", f"ds_write_b128 v{vE0}, {vr(Ob+4,4)} offset:1024",
              f"ds_write_b32 v{vE1}, v{Ob+8} offset:2048", f"ds_write_b32 v{vE2}, v{vONE} offset:{cEX}")
        E(Sb, 12, 16)
    def g1():
        a("s_lshr_b32 s79, s77, 1", "s_lshl_b32 s79, s79, 5", "s_and_b32 s80, s77, 1", "s_add_u32 s79, s79, s80", "s_lshl_b32 s79, s79, 7",
          f"s_add_u32 s79, s79, {FH + 30*128:#x}", f"buffer_load_dword v3, off, {rWS}, s79 sc1")
    def g2():
        with Ool(a):
            a.label("L_a_gr")
            gpoll(a, vTC, "s79", nl=1)
            a("s_branch L_a_gk")
        a("s_waitcnt vmcnt(0)", f"v_cmp_ne_u32 vcc, s{sN}, v3", "s_lshl_b32 s80, s77, 7", f"s_add_u32 s80, s80, {GT:#x}", "s_cbranch_vccnz L_a_gr")
        a.label("L_a_gk")
        a(f"buffer_load_dword v{vGT}, v{vL4}, {rWS}, s80 offen sc1")
    if OPT["unroll"]:
        hs_t = OPT["hs"]
        ta = {7: [h1], 12: [h3], 27: [h6], 21: [g1], 25: [g2]}
        hsl = [[f"buffer_store_dwordx4 {vr(HA+8,4)}, v2, {rHF}, s98 offen sc1"],
               ["s_add_u32 s79, s98, 0x20000", f"buffer_store_dwordx4 {vr(HA+24,4)}, v2, {rHF}, s79 offen sc1"],
               ["s_add_u32 s80, s98, 0x40000", "s_cmp_eq_u32 s97, 0", "s_cmov_b32 s80, 0x40000000", f"buffer_store_dwordx4 {vr(HA+40,4)}, v2, {rHF}, s80 offen sc1"],
               [f"s_add_u32 s79, s48, {OF:#x}", f"buffer_store_dwordx4 {vr(HA,4)}, v2, {rWS}, s79 offen sc1"]]
        for n, x in enumerate(hsl):
            ta.setdefault(hs_t + n*OPT["hd"], []).append(lambda x=x: a(*x))
        pass; ta.setdefault(OPT['hf'], []).append(hf)
        def pr(kh, p):
            def f():
                lab = a.newlabel("pr")
                with Ool(a):
                    a.label(lab); a(f"s_setprio {p}", f"s_branch {lab}_r")
                a(f"s_cmp_eq_u32 s75, {kh}", f"s_cbranch_scc1 {lab}")
                a.label(lab + "_r")
            return f
        for nm, kh, p in (("l2", 0, 2), ("h2", 1, 2), ("l1", 0, 1), ("h1", 1, 1)):
            ta.setdefault(OPT[nm], []).insert(0, pr(kh, p))
        for t in range(32):
            for f in ta.get(t, []): f()
            tile(t)
            if t % 4 == 3: trace(a, "a")
        a("s_nop 1")
    else:
        a.raw(".p2align 6")
        a.label("L_a_loop")
        for t in range(4):
            if t == 3:
                a("s_cmp_lt_u32 s76, 7", "s_cbranch_scc1 L_a_hook")
                a.label("L_a_hookret")
            tile(t)
        a(f"v_add_u32 v{vK}, 4096, v{vK}", f"v_add_u32 v{vV0}, {4*VST}, v{vV0}", f"v_add_u32 v{vV1}, {4*VST}, v{vV1}")
        trace(a, "a")
        a("s_add_u32 s76, s76, 1", "s_cmp_lt_u32 s76, 8", "s_cbranch_scc1 L_a_loop")
    won(a, "a")
    a(f"{SM} {vr(Oa,16)}, {vr(V2,4)}, {vr(Sb+8,8)}, v{IDX}", "s_setprio 3")
    stamp(a)
    lp, dn = a.newlabel("xw"), a.newlabel("xwd")
    rt = retry(a, lp, dn, 1)
    a.label(lp)
    a(f"ds_read_b32 v{vPOLL}, v13 offset:{cEX}", f"ds_read_b128 {vr(Sa,4)}, v14", f"ds_read_b128 {vr(Sa+4,4)}, v14 offset:1024", f"ds_read_b32 v{Sa+8}, v12 offset:2048",
      "s_nop 3", "s_waitcnt lgkmcnt(0)", f"v_cmp_eq_u32 vcc, 0, v{vPOLL}", f"s_cbranch_vccnz {rt}")
    a.label(dn)
    a(f"v_add_f32 v{Oa+8}, v{Oa+8}, v{Sa+8}")
    for r in range(0, 8, 2): a(f"v_pk_add_f32 {vr(Oa+r,2)}, {vr(Oa+r,2)}, {vr(Sa+r,2)}")
    O = Oa
    a(f"v_pk_add_f32 v[8:9], {vr(O,2)}, {vr(O+2,2)}", f"v_pk_add_f32 v[10:11], {vr(O+4,2)}, {vr(O+6,2)}", "v_pk_add_f32 v[8:9], v[8:9], v[10:11]",
      "v_add_f32 v8, v8, v9", f"v_fma_f32 v8, v8, 0, v{O+8}")
    a("v_cmp_nle_f32 s[80:81], 1.0, v8", "v_cmp_nge_f32 vcc, s76, v8", "s_or_b64 vcc, vcc, s[80:81]", "s_cbranch_scc1 L_a_slow")
    a.label("L_a_fin")
    trace(a, "t")
    a(f"v_rcp_f32 v8, v{O+8}", "s_waitcnt vmcnt(0)", f"v_mul_f32 v8, v8, v{vGT}")
    for r in range(0, 8, 2): a(f"v_pk_mul_f32 {vr(O+r,2)}, {vr(O+r,2)}, v[8:9] op_sel_hi:[1,0]")
    for r in range(4): a(f"v_cvt_pk_bf16_f32 v{Qb+r}, v{O+2*r}, v{O+2*r+1}")
    for r in range(4): a(f"v_min_u32 v{Qb+r}, -2, v{Qb+r}")
    a(f"buffer_store_dwordx4 {vr(Qb,4)}, v2, {rWS}, s74 offen sc1")
    trace(a, "t")
    a("s_barrier")
    stamp_end(a, 0)
    a("s_endpgm")
    if not OPT['unroll']:
        a.label("L_a_hook")
        acts = {0: [h0], 1: [h1], 3: [h3], 6: [h6]}
        acts.setdefault(OPT["hg"], []).append(h5)
        acts.setdefault(OPT["hst"], []).append(hs)
        acts.setdefault(OPT["hst"] + 1, []).append(hf)
        acts.setdefault(OPT["pr2"], []).insert(0, lambda: a("s_setprio 2"))
        acts.setdefault(OPT["pr1"], []).insert(0, lambda: a("s_setprio 1"))
        its = sorted(acts)
        for it in its:
            a(f"s_cmp_eq_u32 s76, {it}", f"s_cbranch_scc1 L_a_hk_{it}")
        a("s_branch L_a_hookret")
        for it in its:
            a.label(f"L_a_hk_{it}")
            for f in acts[it]: f()
            a("s_branch L_a_hookret")
    emit_ool(a)
    woff(a)
    a.label("L_a_slow")
    NM = 96
    a("v_mov_b32 v3, 0xff800000", f"s_add_u32 s76, s78, {KF:#x}", "s_mov_b32 s79, 0")
    a.label("L_a_max")
    a(f"buffer_load_dwordx4 {vr(V1,4)}, v2, {rWS}, s76 offen sc1", "s_waitcnt vmcnt(0)",
      f"{MFMA} {vr(Sa,16)}, {vr(V1,4)}, {vr(Qa,4)}, 0", "s_add_u32 s76, s76, 1024")
    a.nop(14)
    for r in range(0, 16, 2): a(f"v_max3_f32 v3, v{Sa+r}, v{Sa+r+1}, v3")
    a("s_add_u32 s79, s79, 1", "s_cmp_lt_u32 s79, 64", "s_cbranch_scc1 L_a_max")
    a("v_mov_b32 v12, v3", "s_nop 1", "v_permlane32_swap_b32 v12, v3", "s_nop 1", "v_max_f32 v3, v12, v3")
    for r in range(16): a(f"v_sub_f32 v{NM+r}, 0, v3")
    for r in range(16): a(f"v_mov_b32 v{Oa+r}, 0")
    a("v_and_b32 v3, 15, v1", "v_lshlrev_b32 v3, 4, v3", "v_lshrrev_b32 v12, 5, v1", "v_lshl_add_u32 v3, v12, 8, v3",
      "v_and_b32 v12, 16, v1", "v_cmp_eq_u32 vcc, 0, v12", "v_mov_b32 v12, 0x4000000", "v_mov_b32 v13, 0x3f803f80",
      "v_cndmask_b32 v3, v12, v3, vcc", "v_cndmask_b32 v13, v13, 0, vcc")
    a(f"s_add_u32 s76, s78, {KF:#x}", f"s_add_u32 s80, s78, {VF:#x}", "s_mov_b32 s79, 0")
    a.label("L_a_redo")
    a(f"buffer_load_dwordx4 {vr(Sb,4)}, v2, {rWS}, s76 offen sc1", f"buffer_load_dwordx4 {vr(V1,4)}, v3, {rWS}, s80 offen sc1",
      f"buffer_load_dwordx4 {vr(V2,4)}, v3, {rWS}, s80 offen offset:512 sc1", "s_waitcnt vmcnt(0)",
      f"{MFMA} {vr(Sa,16)}, {vr(Sb,4)}, {vr(Qa,4)}, {vr(NM,16)}", "s_add_u32 s76, s76, 1024", "s_add_u32 s80, s80, 1024")
    for r in range(8): a(f"v_or_b32 v{V1+r}, v13, v{V1+r}")
    a.nop(6)
    E(Sa, 0, 16)
    a("s_nop 1", f"{SM} {vr(Oa,16)}, {vr(V1,4)}, {vr(Sa,8)}, v{IDX}", f"{SM} {vr(Oa,16)}, {vr(V2,4)}, {vr(Sa+8,8)}, v{IDX}")
    a("s_add_u32 s79, s79, 1", "s_cmp_lt_u32 s79, 64", "s_cbranch_scc1 L_a_redo")
    a.nop(14)
    a("s_branch L_a_fin")

def gen_gwave(a):
    sF, sT = 54, 55
    a("s_getpc_b64 s[44:45]", "s_mov_b32 s46, 64", "s_mov_b32 s47, 0x20000", f"s_lshl_b32 s{sF}, s3, 2", f"s_add_u32 s{sF}, s{sF}, {CB}")
    def dflag(off):
        a(f"s_add_u32 m0, s{sF}, {off}", "s_mov_b64 exec, 1", "buffer_load_dword off, s[44:47], 0 lds", "s_mov_b64 exec, -1")
    for n in range(OPT["kvx"]): kvpair(a)
    acc = accD; vW = vWd
    a(f"s_waitcnt vmcnt({4*OPT['kvx']})", "s_barrier")
    a.label("L_g_kvl")
    kvpair(a)
    a("s_add_u32 s74, s74, 1", f"s_cmp_lt_u32 s74, {6 - OPT['kvx']}", "s_cbranch_scc1 L_g_kvl")
    dflag(cALL)
    stamp(a)
    nb = OPT["tb"]
    if nb:
        a(f"s_mov_b64 exec, {(1 << nb) - 1:#x}")
        for o in range(0, 32, nb): a(f"buffer_load_dword v71, v7, {rWO}, s58 offen", f"s_add_u32 s58, s58, {nb*128}", "s_waitcnt vmcnt(0)")
        for o in range(0, 86, nb): a(f"buffer_load_dword v71, v7, {rWD}, s57 offen", f"s_add_u32 s57, s57, {nb*128}", "s_waitcnt vmcnt(0)")
        a("s_mov_b64 exec, -1")
    a("s_and_b32 s78, s3, 1", "s_lshl_b32 s78, s78, 10", f"v_add_u32 v{vR0}, s78, v2", f"v_xor_b32 v{vR1}, 1024, v{vR0}")
    q = VQ(a)
    if OPT["drot"]:
        a("s_mul_i32 s78, s71, 11", "s_lshr_b32 s78, s78, 1", "s_lshl_b32 s48, s78, 14", f"s_add_u32 s48, s48, s{sW1}", "s_lshl_b32 s49, s78, 16", f"s_add_u32 s49, s49, s{sH0}",
          f"s_add_u32 s50, s{sW1}, {22*16384}", f"s_add_u32 s51, s{sH0}, {22*65536}")
    def wload(k, o):
        slot = k % NS
        if k < 22 and OPT["drot"]:
            a(f"s_add_u32 m0, s{sR}, {slot*2048 + o*1024}", "s_nop 0", f"buffer_load_dwordx4 v{vW}, {rWD}, s48 offen lds", "s_add_u32 s48, s48, 8192")
            if o: a("s_cmp_eq_u32 s48, s50", f"s_cmov_b32 s48, s{sW1}")
        elif k < 22:
            a(f"s_add_u32 m0, s{sR}, {slot*2048 + o*1024}", f"s_add_u32 s79, s{sW1}, {(k*16 + o*8)*1024}", f"buffer_load_dwordx4 v{vW}, {rWD}, s79 offen lds")
        else:
            a(f"s_add_u32 m0, s{sR}, {slot*2048 + o*1024}", f"s_add_u32 s79, s{sW0}, {((k-22)*16 + o*8)*1024}", f"buffer_load_dwordx4 v{vW}, {rWO}, s79 offen lds")
        q.issue(("W", k))
    def hload(k, rt):
        if OPT["drot"]:
            a(f"buffer_load_dwordx4 {vr(H[k%HD]+4*rt,4)}, v{[vR0, vR1][rt]}, {rHF}, s49 offen sc1")
            if rt: a("s_add_u32 s49, s49, 0x10000", "s_cmp_eq_u32 s49, s51", f"s_cmov_b32 s49, s{sH0}")
        else:
            if rt == 0: a(f"s_add_u32 s78, s{sH0}, {k*65536}")
            a(f"buffer_load_dwordx4 {vr(H[k%HD]+4*rt,4)}, v{[vR0, vR1][rt]}, {rHF}, s78 offen sc1")
        q.issue(("H", k))
    def wread(k):
        slot = k % NS
        dst = Wf[k & 1] if k < 22 else WF + 8*(k-22)
        for ct in range(2):
            a(f"ds_read_b64_tr_b16 {vr(dst+4*ct,2)}, v{vT2} offset:{slot*2048 + ct*512}",
              f"ds_read_b64_tr_b16 {vr(dst+4*ct+2,2)}, v{vT2} offset:{slot*2048 + ct*512 + 1024}")
    seq = [26, 27, 28, 29, 0, 1, 2]
    for k in seq[:3]:
        wload(k, 0); wload(k, 1)
    for n in range(4):
        q.wait(("W", seq[n]))
        wread(seq[n])
        a("s_waitcnt lgkmcnt(0)")
        wload(seq[n+3], 0); wload(seq[n+3], 1)
    trace(a, "e")
    a("s_mov_b32 exec_hi, 3")
    gpoll(a, vP1, "0", sleep=8)
    a("s_mov_b32 exec_hi, -1")
    q.drain()
    stamp(a)
    a("s_and_b32 s79, s3, 1", "s_lshl1_add_u32 s79, s6, s79", "s_lshl_b32 s79, s79, 7", f"s_add_u32 s79, s79, {GT:#x}", "s_xor_b32 s78, s79, 128",
      f"buffer_load_dword v{vG}, v{vGA}, {rWS}, s79 offen sc1", f"buffer_load_dword v{vG+1}, v{vGA}, {rWS}, s78 offen sc1")
    q.issue("g"); q.issue("g")
    for k in range(HD-1):
        hload(k, 0); hload(k, 1)
    a("s_mul_i32 s79, s7, 0x30000", f"s_add_u32 s79, s79, s{sH0}", "s_mov_b32 exec_hi, 0xffff",
      f"buffer_load_dword v71, v{vTH}, {rHF}, s79 offen sc1", "s_mov_b64 exec, -1")
    q.issue("t")
    wread(0)
    a(f"s_setprio {OPT['dprio']}")
    if OPT["nod"]: a("s_branch L_g_dskip")
    for k in range(22):
        q.wait(("W", k+1), ("H", k))
        trace(a, "d")
        a("s_waitcnt lgkmcnt(0)")
        if k < 21: wread(k+1)
        extra = [lambda: wload(k+3, 0), lambda: wload(k+3, 1)]
        if k + HD - 1 < 22: extra += [lambda: hload(k+HD-1, 0), lambda: hload(k+HD-1, 1)]
        for i in range(4):
            ct, rt = i >> 1, i & 1
            C = "0" if k == 0 else vr(acc[i], 16)
            a(f"{MFMA} {vr(acc[i],16)}, {vr(Wf[k&1]+4*ct,4)}, {vr(H[k%HD]+4*rt,4)}, {C}")
            if i < len(extra): extra[i]()
    a.label("L_g_dskip")
    trace(a, "e")
    a("s_setprio 3")
    for k in range(22, 26):
        q.wait(("W", k))
        wread(k)
        if k == 22:
            a("s_waitcnt lgkmcnt(0)")
            wload(25, 0); wload(25, 1)
            a(f"v_sub_f32 v12, 1.0, v{vG}", f"v_sub_f32 v14, 1.0, v{vG+1}")
        t = k - 22
        for r in range(0, 16, 2):
            a(f"v_pk_mul_f32 {vr(acc[t]+r,2)}, {vr(acc[t]+r,2)}, {vr(12+2*(t&1),2)} op_sel_hi:[1,0]")
    stamp(a)
    a("s_lshl_b32 s75, s3, 19", "s_lshl_b32 s80, s6, 11", "s_add_u32 s75, s75, s80", f"s_add_u32 s75, s75, {OF:#x}")
    a("v_lshlrev_b32 v4, 4, v1", "s_lshl_b32 s79, s3, 14", "v_add_u32 v4, s79, v4")
    a("v_and_b32 v3, 31, v1", "v_lshlrev_b32 v3, 10, v3", "v_lshrrev_b32 v7, 5, v1", "v_lshl_add_u32 v3, v7, 4, v3",
      "s_and_b32 s74, s3, 1", "s_lshl1_add_u32 s74, s6, s74", "s_lshl_b32 s74, s74, 15", "s_lshl_b32 s80, s7, 7", "s_add_u32 s74, s74, s80",
      "s_lshr_b32 s80, s3, 1", "s_lshl_b32 s80, s80, 6", "s_add_u32 s74, s74, s80")
    a("s_waitcnt lgkmcnt(0)", "s_barrier")
    trace(a, "t")
    order = [1, 3, 5, 7, 0, 2, 4, 6]
    def oload(n):
        a(f"s_add_u32 s79, s75, {order[n]*65536}")
        for rt in range(2):
            a(f"buffer_load_dwordx4 {vr(OFR+8*(n%4)+4*rt,4)}, v{[vR0, vR1][rt]}, {rWS}, s79 offen sc1")
    for n in range(4): oload(n)
    for n in range(8):
        h, f = order[n], OFR + 8*(n % 4)
        last = min(n + 3, 7)
        with Ool(a):
            a.label(f"L_o_r{n}")
            chk = [f"v_max3_u32 v6, v{f}, v{f+1}, v{f+2}", f"v_max3_u32 v7, v{f+3}, v{f+4}, v{f+5}", f"v_max3_u32 v6, v6, v{f+6}, v{f+7}",
                   "v_max_u32 v6, v6, v7", "v_cmp_eq_u32 vcc, -1, v6"]
            if OPT["omode"] == 0:
                a("s_waitcnt vmcnt(0)", f"s_sub_u32 s{sBUD}, s{sBUD}, 1", f"s_cbranch_scc1 L_o_x{n}", f"s_sleep {OPT['osl']}")
                for m in range(n, last + 1): oload(m)
                a(f"s_branch L_o_w{n}")
            elif OPT["omode"] == 1:
                a(f"s_sub_u32 s{sBUD}, s{sBUD}, 1", f"s_cbranch_scc1 L_o_x{n}")
                for m in range(n, last + 1): oload(m)
                a(f"s_branch L_o_w{n}")
            else:
                a(f"s_sub_u32 s{sBUD}, s{sBUD}, 1", f"s_cbranch_scc1 L_o_x{n}")
                oload(n)
                a("s_waitcnt vmcnt(0)", *chk, f"s_cbranch_vccnz L_o_r{n}")
                for m in range(n + 1, last + 1): oload(m)
                a(f"s_branch L_o_k{n}")
            a.label(f"L_o_x{n}")
            a(f"s_mov_b32 s{sBUD}, 0", f"s_branch L_o_k{n}")
        a.label(f"L_o_w{n}")
        a(f"s_waitcnt vmcnt({2*(last - n)})", f"v_max3_u32 v6, v{f}, v{f+1}, v{f+2}", f"v_max3_u32 v7, v{f+3}, v{f+4}, v{f+5}", f"v_max3_u32 v6, v6, v{f+6}, v{f+7}",
          "v_max_u32 v6, v6, v7", "v_cmp_eq_u32 vcc, -1, v6", f"s_cbranch_vccnz L_o_r{n}")
        a.label(f"L_o_k{n}")
        for i in (1, 2, 3, 0):
            ct, rt = i >> 1, i & 1
            a(f"{MFMA} {vr(acc[i],16)}, {vr(WF+8*h+4*ct,4)}, {vr(f+4*rt,4)}, {vr(acc[i],16)}")
        if n + 4 < 8: oload(n + 4)
        if n == 3: trace(a, "t")
    trace(a, "t")
    a("v_xor_b32 v8, 0x4000, v4", "v_xor_b32 v9, 0x8000, v4", "v_xor_b32 v10, 0xc000, v4")
    a.nop(6)
    for i in (1, 2, 3):
        for qd in range(4):
            a(f"ds_write_b128 v4, {vr(acc[i]+4*qd,4)} offset:{i*4096 + qd*1024}")
    a("s_waitcnt lgkmcnt(0)", "s_barrier")
    trace(a, "t")
    for i in (1, 2, 3):
        for qd in range(4):
            a(f"ds_read_b128 {vr(acc[i]+4*qd,4)}, v{7+i} offset:{i*4096 + qd*1024}")
    for i in (1, 2, 3):
        a(f"s_waitcnt lgkmcnt({12 - 4*i})")
        for r in range(0, 16, 2): a(f"v_pk_add_f32 {vr(acc[0]+r,2)}, {vr(acc[0]+r,2)}, {vr(acc[i]+r,2)}")
    for r in range(8): a(f"v_cvt_pk_bf16_f32 v{16+r}, v{acc[0]+2*r}, v{acc[0]+2*r+1}")
    a("s_nop 1")
    for p in range(2):
        b = 16 + 4*p
        a(f"v_permlane32_swap_b32 v{b}, v{b+2}", f"v_permlane32_swap_b32 v{b+1}, v{b+3}")
    a(f"buffer_store_dwordx4 v[16:19], v3, {rOUT}, s74 offen", f"buffer_store_dwordx4 v[20:23], v3, {rOUT}, s74 offen offset:32")
    trace(a, "t")
    a("s_or_b32 s79, s2, s3", "s_cmp_lg_u32 s79, 0", "s_cbranch_scc1 L_g_noep", f"s_mov_b32 s79, {EP:#x}")
    flag_store(a, "s79")
    a.label("L_g_noep")
    stamp_end(a, 1)

HEADER = open("gated_mix__mha_block__glu_gated_glu__prompt.s.ref").read().split("; Override launch")[0]
def build():
    a = Asm()
    txt = HEADER + "; @launch grid=(256,1,1) block=(768,1,1) lds=163840\n"
    txt += '.amdgcn_target "amdgcn-amd-amdhsa--gfx950"\n.text\n'
    d = gen(a)
    txt += a.text() + '.section .rodata,"a"\n' + d
    return txt
if __name__ == "__main__":
    for o in sys.argv[2:]:
        k, v = o.split("=")
        OPT[k] = set(v.split(",")) if k == "tr" else int(v)
    open(sys.argv[1], "w").write(build())
    print("wrote", sys.argv[1])
```

```python
import sys, math, struct
from asmlib import *

MB = 1 << 20
QF, KF, VF, OF, XF, GT, FL, ST, HF = 0, 2*MB, 4*MB, 6*MB, 8*MB, 12*MB, 13*MB, 14*MB, 16*MB
KST = 44032
EP = FL + 0xf0000
FQ, FX, FH, FO, FP = FL, FL + 0x8000, FL + 0x28000, FL + 0x48000, FL + 0x88000
HF_BYTES = 86 * 65536
QSCALE = 0.25 * math.log2(math.e)
LOG2E = math.log2(math.e)
def fbits(x): return struct.unpack("<I", struct.pack("<f", x))[0]
MFMA = "v_mfma_f32_32x32x16_bf16"
SM = "v_smfmac_f32_32x32x32_bf16"
NAME = "gated_mix__mha_block__glu_gated_glu__prompt_kernel"
rX, rWQ, rWS, rHF, rWG, rWD, rWO, rOUT, rGW = [f"s[{i}:{i+3}]" for i in range(8, 44, 4)]
P1X, P1W = 0, 65536
KB, VB, VST = 0, 65536, 1040
RING = VB + 64*VST
CB = RING + 30720
cPASS, cEX, cB, cALL = 20, 32, 64, 80
vCB, vONE, vPOLL = 4, 5, 6
sN, sBUD = 70, 83
OPT = dict(probe=0, prs=1, psl=8, bk=99, otouch=99, rowred=1, ofl=1, fs=3, tlb=0, omode=0, drot=1, hd=2, osl=3, hs=6, hf=15, dbg=0, pre=2, ramp=1, sprio=1, kvx=2, unroll=1, l2=16, h2=22, l1=28, h1=31, early=1, tb=0, hg=3, ns=1, nd=4, tr=set(), vtr=0, cyc=0, noattn=0, nod=0, pr2=2, pr1=6, warm=0, wstep=8, dprio=0, hst=1)

def trace(a, grp):
    if grp not in OPT["tr"]: return
    v = OPT["vtr"]
    a("s_memtime s[84:85]" if OPT["cyc"] else "s_memrealtime s[84:85]", "s_mov_b32 s87, m0", "s_mov_b32 m0, s86", "s_waitcnt lgkmcnt(0)", f"v_writelane_b32 v{v}, s84, m0",
      "s_add_u32 s86, s86, 1", "s_mov_b32 m0, s87", "s_nop 0")
def trace2(a, grp):
    if grp not in OPT["tr"]: return
    a("s_cselect_b32 s98, 1, 0"); trace(a, grp); a("s_cmp_eq_u32 s98, 1")
def stamp(a, i=0): trace(a, "m")
def trace_init(a):
    if OPT["tr"]: a("s_mov_b32 s86, 0", f"v_mov_b32 v{OPT['vtr']}, 0")
def dbg_end(a, kidx):
    if not OPT["dbg"]: return
    lab = a.newlabel("dg")
    a("s_cmp_eq_u32 s59, 0", f"s_cbranch_scc1 {lab}", "s_lshl_b32 s79, s2, 16", "s_lshl_b32 s78, s3, 8", "s_or_b32 s79, s79, s78", f"s_or_b32 s79, s79, {0x1000*kidx + 0x80000000:#x}",
      "s_or_b32 s79, s79, s59", "v_mov_b32 v3, s79", "s_lshl_b32 s78, s59, 2", f"s_add_u32 s78, s78, {ST:#x}", "s_mov_b64 exec, 1", f"buffer_store_dword v3, off, {rWS}, s78 sc1", "s_mov_b64 exec, -1")
    a.label(lab)
def stamp_end(a, kidx):
    dbg_end(a, kidx)
    if not OPT["tr"]: return
    a("s_waitcnt vmcnt(0)")
    OPT["tr"].add("end"); trace(a, "end")
    a("s_mul_i32 s71, s2, 12", "s_add_u32 s71, s71, s3", f"s_add_u32 s71, s71, {4 if kidx == 0 else 0}", "s_lshl_b32 s71, s71, 8", f"s_add_u32 s71, s71, {ST:#x}",
      "v_lshlrev_b32 v7, 2, v1", f"buffer_store_dword v{OPT['vtr']}, v7, {rWS}, s71 offen")

def lds_arrive(a, off, vaddr=vCB):
    a("s_mov_b64 exec, 1", f"ds_add_u32 v{vaddr}, v{vONE} offset:{off}", "s_mov_b64 exec, -1")
OOL = []
def emit_ool(a):
    while OOL:
        blk = OOL.pop(0)
        for l in blk:
            if l.startswith("@") or l.startswith("."): a.raw(l)
            elif l.endswith(":"): a.label(l[:-1])
            else: a(l)
class Ool:
    def __init__(self, a): self.a = a
    def __enter__(self): self.sv = self.a.lines; self.a.lines = []
    def __exit__(self, *e):
        OOL.append([l.strip() for l in self.a.lines]); self.a.lines = self.sv
def retry(a, lp, dn, sleep):
    rt = a.newlabel("rt")
    OOL.append([rt + ":"] + ([f"s_sleep {sleep}"] if sleep else []) +
               [f"s_sub_u32 s{sBUD}, s{sBUD}, 1", f"s_cbranch_scc0 {lp}", f"s_mov_b32 s{sBUD}, 0", f"s_branch {dn}"])
    return rt
def lds_wait(a, off, target, vaddr=vCB, sleep=0):
    lp, dn = a.newlabel("lw"), a.newlabel("lwd")
    rt = retry(a, lp, dn, sleep)
    a.label(lp)
    a(f"ds_read_b32 v{vPOLL}, v{vaddr} offset:{off}", "s_waitcnt lgkmcnt(0)", f"v_readfirstlane_b32 s82, v{vPOLL}",
      f"s_cmp_ge_u32 s82, {target}", f"s_cbranch_scc0 {rt}")
    a.label(dn)
def pre_wait(a, off, target, vaddr=vCB):
    lp, dn, rt = a.newlabel("pw"), a.newlabel("pwd"), a.newlabel("pwr")
    OOL.append([rt + ":", f"ds_read_b32 v{vPOLL}, v{vaddr} offset:{off}", f"s_sub_u32 s{sBUD}, s{sBUD}, 1", "s_waitcnt lgkmcnt(0)",
                f"s_cbranch_scc0 {lp}", f"s_mov_b32 s{sBUD}, 0", f"s_branch {dn}"])
    a.label(lp)
    a(f"v_readfirstlane_b32 s82, v{vPOLL}", f"s_cmp_ge_u32 s82, {target}", f"s_cbranch_scc0 {rt}")
    a.label(dn)
def flag_wait(a, off, vaddr, sleep=0):
    lp, dn = a.newlabel("fw"), a.newlabel("fwd")
    rt = retry(a, lp, dn, sleep)
    a.label(lp)
    a(f"ds_read_b32 v{vPOLL}, v{vaddr} offset:{off}", "s_waitcnt lgkmcnt(0)", f"v_cmp_eq_u32 vcc, 0, v{vPOLL}", f"s_cbranch_vccnz {rt}")
    a.label(dn)
def gpoll(a, vaddr, soff, sleep=2, nl=64):
    lp, dn = a.newlabel("gp"), a.newlabel("gpd")
    rt = retry(a, lp, dn, sleep)
    if nl < 64: a(f"s_mov_b64 exec, {(1 << nl) - 1:#x}")
    a.label(lp)
    a(f"buffer_load_dword v{vPOLL}, v{vaddr}, {rWS}, {soff} offen sc1", "s_waitcnt vmcnt(0)",
      f"v_cmp_ne_u32 vcc, s{sN}, v{vPOLL}", f"s_cbranch_vccnz {rt}")
    a.label(dn)
    if nl < 64: a("s_mov_b64 exec, -1")
def flag_store(a, soff):
    a(f"v_mov_b32 v3, s{sN}", "s_mov_b64 exec, 1", f"buffer_store_dword v3, off, {rWS}, {soff} sc1", "s_mov_b64 exec, -1")
def skip_ool(a):
    pass

class VQ:
    def __init__(self, a): self.a = a; self.q = []
    def issue(self, tag): self.q.append(tag)
    def wait(self, *tags):
        idx = max([i for i, t in enumerate(self.q) if t in tags], default=-1)
        if idx < 0: return
        n = len(self.q) - 1 - idx
        assert n <= 63
        self.a(f"s_waitcnt vmcnt({n})")
        self.q = self.q[idx+1:]
    def drain(self): self.q = []

def won(a, role): a.raw(f"@W+ {role}")
def woff(a): a.raw("@W-")
def warm_call(a, role, nchain, sel, extra=None):
    if not OPT["warm"]: return
    a("s_mov_b64 exec, 0")
    for c in range(nchain):
        a(f"s_cmp_eq_u32 {sel}, {c}", f"s_cbranch_scc1 L_w{role}_{c}")
    if extra: a(f"s_cmp_eq_u32 {sel}, {extra[0]}", f"s_cbranch_scc1 {extra[1]}")
    a.label(f"L_wret_{role}")
    a("s_mov_b64 exec, -1")
def insert_hops(lines, nchain):
    out = []; role = None; cnt = 0; spots = {}
    for l in lines:
        if l.startswith("@W+"): role = l.split()[1]; cnt = OPT["wstep"]; continue
        if l.startswith("@W-"): role = None; continue
        isins = l.startswith("    ") and not l.strip().startswith(";")
        if role and isins and OPT["warm"]:
            if cnt >= OPT["wstep"]:
                spots.setdefault(role, []).append(len(out)); out.append(None); cnt = 0
            cnt += 1
        out.append(l)
    for role, sp in spots.items():
        n = nchain[role]; per = -(-len(sp) // n)
        for k, pos in enumerate(sp):
            c, first, last = k // per, k % per == 0, (k % per == per-1 or k == len(sp)-1)
            lab = f"L_w{role}_{c}" if first else f"L_h{role}_{k}"
            tgt = f"L_wret_{role}" if last else f"L_h{role}_{k+1}"
            out[pos] = f"{lab}:\n    s_cbranch_execz {tgt}"
        assert -(-len(sp) // per) == n, (role, len(sp), per, n)
    return out

def gen(a):
    kernel_header(a, NAME)
    a("s_cmp_ge_u32 s2, 256", "s_cbranch_scc1 L_end")
    a("s_load_dwordx16 s[48:63], s[0:1], 0", "s_load_dwordx4 s[64:67], s[0:1], 64", "s_load_dwordx2 s[68:69], s[0:1], 80")
    a("v_lshrrev_b32 v2, 6, v0", "v_and_b32 v1, 63, v0")
    a("s_bfe_u32 s73, s2, 0x10003", "s_and_b32 s4, s2, 3", "s_lshl1_add_u32 s4, s4, s73", "s_bfe_u32 s5, s2, 0x10002")
    a("v_readfirstlane_b32 s3, v2")
    a("s_lshr_b32 s72, s2, 4", "s_lshl4_add_u32 s5, s5, s72")
    a("s_lshl2_add_u32 s72, s73, s5", "s_and_b32 s72, s72, 7")
    if OPT["tr"]:
        trace_init(a); OPT["tr"].add("start"); trace(a, "start")
    a("s_cmp_ge_u32 s3, 4", "s_cbranch_scc1 L_awave")
    gen_loader(a)
    gen_gwave(a)
    a.label("L_end")
    a("s_endpgm")
    emit_ool(a)
    a.raw(".p2align 6")
    a.label("L_awave")
    gen_awave(a)
    emit_ool(a)
    a.label("L_codeend")
    a.lines = insert_hops(a.lines, {"a": 3})
    if OPT["dbg"]:
        out = []; n = 0; last = ""
        for l in a.lines:
            if l.endswith(":"): last = l
            if l.strip() == f"s_mov_b32 s{sBUD}, 0":
                n += 1; print("wait id", n, "after", last)
                out += [f"    s_cmp_eq_u32 s59, 0", f"    s_cmov_b32 s59, {n}"]
            if l.strip() == f"s_mov_b32 s{sBUD}, 20000": out.append("    s_mov_b32 s82, 0")
            out.append(l)
        a.lines = out
    return kernel_desc(NAME, 168, 102)

def common(a):
    a("s_bfe_u32 s71, s2, 0x20003", "s_lshr_b32 s7, s2, 5", "s_and_b32 s6, s2, 7", "s_lshl2_add_u32 s6, s6, s71")
    a(f"v_mov_b32 v{vCB}, {CB}", f"v_mov_b32 v{vONE}, 1", f"s_mov_b32 s{sBUD}, 20000", "v_lshlrev_b32 v2, 4, v1")
def slicep(a):
    a("s_bfe_u32 s101, s5, 0x10003", "s_lshl1_add_u32 s101, s4, s101", "s_and_b32 s78, s2, 3",
      "s_mov_b32 s100, 0x120c0600", "s_cmp_eq_u32 s78, 1", "s_cmov_b32 s100, 0x26211c17", "s_cmp_eq_u32 s78, 2", "s_cmov_b32 s100, 0x3c36302b",
      "s_cmp_eq_u32 s78, 3", "s_cmov_b32 s100, 0x514c4742", "s_lshl_b32 s78, s101, 3", "s_lshr_b32 s100, s100, s78", "s_and_b32 s100, s100, 0xff",
      "s_lshr_b32 s97, 0xe07, s101", "s_and_b32 s97, s97, 1")
def epoch(a): a(f"s_add_u32 s44, s68, {EP:#x}", "s_addc_u32 s45, s69, 0", f"s_load_dword s{sN}, s[44:45], 0")
SLOT = 24576

vWd, vT2, vG, vTH, vP1, vGA = 8, 9, 10, 60, 61, 13
sH0, sW0, sW1, sR = 60, 62, 63, 64
Wf = [12, 20]; HD = 4; H = [28 + 8*i for i in range(HD)]
accD = [104 + 16*i for i in range(4)]
WF = 40; OFR = 8
NS = 3
vR0, vR1 = 2, 5
sT = 55
def dconst(a):
    a(f"s_lshl_b32 s{sT}, s6, 12", f"s_add_u32 s{sT}, s{sT}, {FH + 14*128:#x}", f"v_add_u32 v{vP1}, s{sT}, v7")
    a("v_bfe_u32 v3, v1, 2, 3", f"v_lshl_add_u32 v{vWd}, v3, 10, v14", "s_lshr_b32 s78, s3, 1", "s_lshl_b32 s78, s78, 6", f"v_xor_b32 v{vWd}, s78, v{vWd}")
    a("v_bfe_u32 v9, v1, 1, 2", "v_lshlrev_b32 v9, 3, v9", "v_bfe_u32 v11, v1, 3, 1", "v_lshl_add_u32 v9, v11, 6, v9",
      "s_lshr_b32 s78, s6, 2", "s_lshl_b32 s78, s78, 7", f"s_lshr_b32 s{sT}, s3, 1", f"s_lshl_b32 s{sT}, s{sT}, 10", f"s_add_u32 s78, s78, s{sT}",
      f"s_and_b32 s{sT}, s3, 1", f"s_lshl_b32 s{sT}, s{sT}, 5", f"s_add_u32 s78, s78, s{sT}", "s_add_u32 s78, s78, s71",
      f"s_lshr_b32 s{sT}, s6, 4", f"s_lshl2_add_u32 s78, s{sT}, s78", "v_add_u32 v9, s78, v9", "v_and_b32 v11, 1, v1", "v_lshlrev_b32 v11, 9, v11", "v_xor_b32 v9, v9, v11",
      "v_cmp_gt_u32 vcc, 16, v1", "v_lshlrev_b32 v9, 7, v9", f"v_add_u32 v9, {FP:#x}, v9",
      f"v_cndmask_b32 v{vP1}, v{vP1}, v9, vcc")
    a(f"s_mul_i32 s{sH0}, s3, {22*65536}", "s_lshl_b32 s78, s6, 11", f"s_add_u32 s{sH0}, s{sH0}, s78")
    a(f"s_lshl_b32 s{sW0}, s3, 17", "s_lshl_b32 s78, s7, 7", f"s_add_u32 s{sW0}, s{sW0}, s78")
    a(f"s_mul_i32 s{sW1}, s3, {22*16384}", f"s_add_u32 s{sW1}, s{sW1}, s78")
    a(f"s_mul_i32 s{sR}, s3, 7680", f"s_add_u32 s{sR}, s{sR}, {RING}")
    a("v_lshrrev_b32 v3, 5, v1", "v_lshlrev_b32 v3, 2, v3", "v_bfe_u32 v9, v1, 2, 2", "v_add_u32 v3, v3, v9", "v_lshlrev_b32 v3, 6, v3",
      "v_bfe_u32 v9, v1, 4, 1", "v_lshl_add_u32 v3, v9, 5, v3", "v_and_b32 v9, 3, v1", "v_lshl_add_u32 v3, v9, 3, v3", f"v_add_u32 v{vT2}, s{sR}, v3")
    a("v_lshrrev_b32 v3, 4, v1", "v_lshlrev_b32 v3, 16, v3", "v_and_b32 v11, 15, v1", f"v_lshl_add_u32 v{vTH}, v11, 7, v3",
      f"v_and_b32 v{vGA}, 31, v1", f"v_lshlrev_b32 v{vGA}, 2, v{vGA}")
    a("s_lshr_b32 s57, s2, 3", "s_lshl2_add_u32 s57, s57, s3", "s_lshl_b32 s58, s57, 12", f"s_mul_i32 s57, s57, {86*128}")


def gen_loader(a):
    vX0, vX1, vW, vW1, vG0, vG2 = 16, 17, 18, 19, 20, 21
    a("s_setprio 3")
    a("v_lshrrev_b32 v19, 3, v1", "v_lshrrev_b32 v3, 4, v1", "v_and_b32 v7, 7, v1", "v_xor_b32 v3, v3, v7",
      "v_lshlrev_b32 v3, 4, v3", f"v_lshl_add_u32 v{vX0}, v19, 10, v3",
      f"v_xor_b32 v{vX1}, 64, v{vX0}", f"v_add_u32 v{vX1}, {0x2000 - 1024}, v{vX1}")
    a("v_bfe_u32 v20, v1, 2, 3", "v_mul_u32_u24 v19, 3072, v20", "v_lshrrev_b32 v3, 5, v1", "v_and_b32 v7, 3, v1", "v_lshlrev_b32 v7, 4, v7",
      "v_lshl_add_u32 v14, v3, 6, v7", f"v_add_u32 v{vW}, v19, v14", f"v_add_u32 v{vW1}, {8*3072 - 1024}, v{vW}")
    a("s_lshl_b32 s74, s5, 16", "s_lshl_b32 s78, s3, 14", "s_add_u32 s74, s74, s78")
    a("s_mul_i32 s75, s3, 49152", "s_lshl_b32 s78, s4, 7", "s_add_u32 s75, s75, s78")
    a("s_lshl_b32 s76, s3, 11", f"s_add_u32 s77, s76, {P1W}", "s_mov_b32 s73, s72")
    a("s_mov_b32 s10, 0x200000", "s_mov_b32 s11, 0x20000", "s_mov_b32 s14, 0x180000", "s_mov_b32 s15, 0x20000")
    def xunit():
        a("s_lshl_b32 s78, s72, 7", "s_mov_b32 m0, s76", "s_add_u32 s78, s78, s74",
          f"buffer_load_dwordx4 v{vX0}, {rX}, s78 offen lds", f"buffer_load_dwordx4 v{vX1}, {rX}, s78 offen offset:1024 lds",
          "s_add_u32 s76, s76, 8192", "s_add_u32 s72, s72, 1", "s_and_b32 s72, s72, 7")
    def wblock():
        a("s_mul_i32 s79, s73, 196608", "s_mov_b32 m0, s77", "s_add_u32 s79, s79, s75")
        for mat in range(3):
            if mat: a(f"s_add_u32 m0, s77, {mat*(8192 - 1024)}", "s_add_u32 s73, s73, 1" if mat == 1 else "s_and_b32 s73, s73, 7")
            a(f"buffer_load_dwordx4 v{vW}, {rWQ}, s79 offen offset:{mat*1024} lds", f"buffer_load_dwordx4 v{vW1}, {rWQ}, s79 offen offset:{mat*1024 + 1024} lds")
    def nslot(): a(f"s_add_u32 s77, s77, {SLOT}", "s_cmp_eq_u32 s77, s81", "s_cmov_b32 s77, s80")
    def whalf(second):
        a("s_bfe_u32 s78, s5, 0x10003")
        if second: a("s_xor_b32 s78, s78, 1")
        a("s_mul_i32 s79, s73, 196608", "s_add_u32 s79, s79, s75", f"s_mul_i32 s47, s78, {8*3072}", "s_add_u32 s79, s79, s47", "s_lshl_b32 s78, s78, 10", "s_add_u32 s78, s78, s77")
        for mat in range(3):
            a(f"s_add_u32 m0, s78, {mat*(8192 - 1024)}", "s_nop 0", f"buffer_load_dwordx4 v{vW}, {rWQ}, s79 offen offset:{mat*1024} lds")
        if second: a("s_add_u32 s73, s73, 1", "s_and_b32 s73, s73, 7")
    a("s_waitcnt lgkmcnt(0)")
    a("s_mov_b64 s[8:9], s[48:49]", "s_mov_b64 s[12:13], s[50:51]")
    stamp(a)
    if OPT["fs"]:
        xunit(); whalf(0); xunit()
    else:
        xunit(); wblock()
    epoch(a); common(a)
    a("s_mov_b32 s80, s77", f"s_add_u32 s81, s77, {4*SLOT}")
    a("s_cmp_lt_u32 s3, 2", "s_cselect_b32 s24, s56, s58", "s_cselect_b32 s25, s57, s59", f"s_mov_b32 s26, {512*1376*2:#x}", "s_mov_b32 s27, 0x20000",
      "s_cselect_b32 s78, 0, 32")
    a("v_lshrrev_b32 v3, 2, v1", "v_mul_u32_u24 v3, 2752, v3", "v_add_u32 v3, v3, v7", f"v_xor_b32 v{vG0}, s78, v3")
    slicep(a)
    a("s_and_b32 s100, s100, -2")
    a.srd(16, 68, 69, 16*MB)
    a.srd(20, 68, 69, HF_BYTES, add=HF)
    a.srd(28, 60, 61, 1376*512*2)
    a.srd(32, 52, 53, 512*512*2)
    a.srd(36, 64, 65, 2048*512*2)
    a.srd(40, 62, 63, 1024)
    a("v_lshlrev_b32 v7, 7, v1")
    if OPT["dbg"]: a("s_mov_b32 s59, 0")
    dconst(a)
    a("s_lshr_b32 s78, s3, 1", "s_lshr_b32 s66, 0xfef7, s101", "s_and_b32 s66, s66, 1", "s_or_b32 s66, s66, s78", f"s_add_u32 s46, s73, {1 if OPT['fs'] else 0}")
    def sig(n):
        a(f"s_waitcnt vmcnt({n})", "s_barrier"); trace(a, "ld")
    def wb():
        nslot(); wblock()
    if OPT["fs"] == 1:
        whalf(1); wb(); sig(6)
        xunit(); xunit(); sig(4)
        wb(); wb(); sig(6)
        xunit(); wb(); sig(8)
        xunit(); wb(); xunit(); sig(10)
        wb(); xunit(); wb(); sig(16)
    elif OPT["fs"] == 2:
        whalf(1); wb(); sig(6)
        wb(); xunit(); xunit(); sig(10)
        wb(); sig(8)
        xunit(); wb(); xunit(); sig(10)
        wb(); xunit(); wb(); sig(16)
        xunit(); wb(); sig(16)
    elif OPT["fs"] in (3, 4):
        whalf(1); wb(); sig(6)
        if OPT["fs"] == 3:
            wb(); xunit(); xunit(); sig(10)
            wb(); sig(8)
        else:
            xunit(); xunit(); sig(4)
            wb(); wb(); sig(6)
        for n in range(3):
            xunit(); wb(); sig(8)
        xunit(); wb()
    else:
        xunit(); xunit(); xunit()
        sig(6)
        wb(); wb(); sig(6)
        wb(); sig(6)
        xunit(); wb(); xunit(); sig(10)
        wb(); xunit(); wb(); sig(16)
        xunit(); wb(); sig(16)
    a("s_lshl_b32 s75, s100, 5", "s_and_b32 s78, s3, 1", f"s_mul_i32 s77, s78, {KST}", "s_add_u32 s75, s75, s77",
      "s_mul_i32 s77, s78, 6144", "s_lshr_b32 s78, s3, 1", "s_mul_i32 s78, s78, 3072", "s_add_u32 s77, s77, s78",
      "s_xor_b32 s74, s74, 0x80000", "s_lshl_b32 s80, s3, 11")
    def gw(m):
        base = P1W + [0, 2, 3][m % 3]*SLOT
        a(f"s_mul_i32 s79, s73, {4*KST}", f"s_add_u32 m0, s77, {base}", "s_add_u32 s79, s79, s75")
        for e in range(2):
            for t in range(3):
                if e or t: a(f"s_add_u32 m0, s77, {base + e*12288 + t*(1024 - 64)}", {(0,1): "s_add_u32 s73, s73, 1", (0,2): "s_and_b32 s73, s73, 7", (1,0): f"s_add_u32 s79, s79, {2*KST}"}.get((e, t), "s_nop 0"))
                a(f"buffer_load_dwordx4 v{vG0}, {rWG}, s79 offen offset:{t*64} lds")
    def gx(m):
        a(f"s_add_u32 s76, s80, {P1W + SLOT + ((m+2) % 3)*8192}")
        xunit()
    if OPT["fs"] >= 3:
        sig(8); gw(0); gx(0); sig(8)
    else:
        gw(0); sig(14); gx(0); sig(8)
    a("s_waitcnt lgkmcnt(0)", f"s_add_u32 s{sN}, s{sN}, 1")
    if OPT["sprio"]: a("s_setprio 2")
    def gate(m):
        p = m - 1
        with Ool(a):
            a.label(f"L_gt{m}")
            if p == 0:
                a("v_and_b32 v15, 31, v1", "v_lshrrev_b32 v26, 5, v1", "v_bfe_u32 v22, v1, 1, 3", "v_xor_b32 v3, v26, v22",
                  "v_lshlrev_b32 v3, 4, v3", "v_lshl_add_u32 v22, v15, 7, v3", "s_lshl_b32 s78, s3, 12", "v_add_u32 v22, s78, v22",
                  "v_xor_b32 v23, 32, v22", "v_xor_b32 v24, 64, v22", "v_xor_b32 v25, 96, v22")
            if 1 <= p <= 4:
                q = p - 1
                rdx = lambda n: f"ds_read_b128 {vr(152+4*(n&3),4)}, v{22+(n&3)} offset:{(2*q + (n>>2))*8192}"
                a(*[rdx(n) for n in range(4)])
                for n in range(8):
                    a(f"s_waitcnt lgkmcnt({min(3, 7-n)})", f"{MFMA} {vr(136,16)}, {vr(72+32*(q&1)+4*n,4)}, {vr(152+4*(n&3),4)}, {'0' if (q == 0 and n == 0) else vr(136,16)}")
                    if n + 4 < 8: a(rdx(n+4))
            if p < 4:
                a("v_lshrrev_b32 v26, 5, v1", "v_lshlrev_b32 v26, 4, v26")
                for i in range(2):
                    a(f"s_add_u32 s78, s46, {2*p+i+7}", "s_and_b32 s78, s78, 7", "s_lshl_b32 s78, s78, 7")
                    for ks in range(4): a(f"buffer_load_dwordx4 {vr(72+32*(p&1)+16*i+4*ks,4)}, v26, {rGW}, s78 offen offset:{ks*32}")
            if p == 5:
                a("s_lshl1_add_u32 s78, s5, s3", "s_lshl_b32 s78, s78, 7", f"s_add_u32 s78, s78, {GT:#x}", f"s_mov_b32 s79, {fbits(-LOG2E):#x}",
                  "v_mul_f32 v136, s79, v136", "v_exp_f32 v136, v136", "s_nop 0", "v_add_f32 v136, 1.0, v136", "v_rcp_f32 v136, v136", "s_nop 0",
                  f"buffer_store_dword v136, v{vGA}, {rWS}, s78 offen sc1")
            if p == 6:
                a("s_lshl_b32 s78, s5, 5", "s_add_u32 s78, s78, s3", "s_lshl_b32 s78, s78, 7", f"s_add_u32 s78, s78, {FH + 30*128:#x}")
                flag_store(a, "s78")
            a(f"s_branch L_gtr{m}")
        a("s_cmp_eq_u32 s66, 0", f"s_cbranch_scc1 L_gt{m}")
        a.label(f"L_gtr{m}")
    for m in range(1, 8):
        gate(m); gx(m); gw(m); sig(8)
    a("s_lshr_b32 s76, s6, 2", "s_lshl_b32 s76, s76, 12", f"s_add_u32 s76, s76, {FQ:#x}", "s_mov_b32 exec_hi, 0",
      f"buffer_load_dword v{vPOLL}, v7, {rWS}, s76 offen sc1")
    a("s_lshl_b32 s81, s3, 10", f"s_mul_i32 s80, s3, {VST}", f"s_add_u32 s80, s80, {VB}",
      "s_lshl_b32 s79, s6, 16", "s_add_u32 s79, s79, s81", f"s_add_u32 s79, s79, {KF:#x}", "s_mov_b32 s74, 0")
    with Ool(a):
        a.label("L_g_p0r")
        gpoll(a, 7, "s76", sleep=1)
        a("s_branch L_g_p0k")
    a("s_waitcnt vmcnt(0)", f"v_cmp_ne_u32 vcc, s{sN}, v{vPOLL}", "s_cbranch_vccnz L_g_p0r")
    a.label("L_g_p0k")
    a("s_mov_b64 exec, -1", "s_barrier")
    trace(a, "ld")
    kvpair(a); kvpair(a)
    a("s_barrier")
    a.label("L_ld_done")
    a("s_setprio 3")
    stamp(a)

def kvpair(a):
    a("s_mov_b32 m0, s81", f"s_add_u32 s76, s79, {VF - KF:#x}", f"buffer_load_dwordx4 v2, {rWS}, s79 offen sc1 lds",
      "s_mov_b32 m0, s80", "s_add_u32 s77, s79, 0x8000", f"buffer_load_dwordx4 v2, {rWS}, s76 offen sc1 lds",
      "s_add_u32 m0, s81, 0x8000", "s_add_u32 s76, s76, 0x8000", f"buffer_load_dwordx4 v2, {rWS}, s77 offen sc1 lds",
      f"s_add_u32 m0, s80, {32*VST}", "s_add_u32 s79, s79, 4096", f"buffer_load_dwordx4 v2, {rWS}, s76 offen sc1 lds",
      "s_add_u32 s81, s81, 4096", f"s_add_u32 s80, s80, {4*VST}")

Kf, Qa, Qb, V1, V2, Sa, Sb, Oa, Ob = 8, 16, 20, 24, 28, 32, 48, 64, 80
IDX, vK, vV0, vV1, vHC, vGT, vTC, vL4, vON, vST, vF4, vE0, vE1, vE2, vWg, vSK = range(152, 168)
HA = 104
def gen_awave(a):
    vXa = [8, 9, 10, 11]; vWb, vWa, vXb = 12, 13, 14
    a("s_sub_u32 s3, s3, 4", f"v_lshlrev_b32 v{vTC}, 7, v1")
    a("s_cmp_lg_u32 s3, 0", "s_cbranch_scc1 L_a_nocode")
    a("s_getpc_b64 s[40:41]")
    a.label("L_pc")
    a(f"s_sub_u32 s40, s40, L_pc-{NAME}", "s_subb_u32 s41, s41, 0", f"s_mov_b32 s42, L_codeend-{NAME}", "s_mov_b32 s43, 0x20000",
      "s_lshr_b32 s76, s2, 3", "s_lshl_b32 s76, s76, 10", "s_mov_b64 exec, 0xff", f"buffer_load_dword v{vGT}, v{vTC}, s[40:43], s76 offen", "s_mov_b64 exec, -1")
    a.label("L_a_nocode")
    common(a)
    a("s_bfe_u32 s73, s3, 0x10001", "s_and_b32 s74, s3, 1", "s_lshr_b32 s75, s3, 2")
    a("v_and_b32 v15, 31, v1", "v_lshrrev_b32 v3, 5, v1", "v_bfe_u32 v7, v1, 1, 3", "v_xor_b32 v3, v3, v7",
      "v_lshlrev_b32 v3, 4, v3", "v_lshl_add_u32 v15, v15, 7, v3",
      "s_lshl_b32 s76, s73, 12", f"v_add_u32 v{vXb}, s76, v15", f"v_mov_b32 v{vXa[0]}, v{vXb}")
    a("v_bfe_u32 v3, v1, 2, 2", "v_lshlrev_b32 v15, 6, v3", "v_and_b32 v3, 3, v1", "v_lshl_add_u32 v15, v3, 3, v15",
      "v_lshrrev_b32 v16, 5, v1", "v_bfe_u32 v3, v1, 4, 1",
      "v_lshl_add_u32 v7, v16, 10, v15", "v_lshl_add_u32 v7, v3, 5, v7",
      "s_lshl_b32 s76, s74, 9", f"s_add_u32 s76, s76, {P1W}", f"v_add_u32 v{vWb}, s76, v7")
    a("v_lshl_add_u32 v15, v16, 9, v15", "v_mul_u32_u24 v7, 3072, v3", "v_add_u32 v15, v15, v7", "s_xor_b32 s72, s74, s75", "v_xor_b32 v7, s72, v3", "v_lshl_add_u32 v15, v7, 5, v15",
      f"v_add_u32 v{vWg}, {P1W}, v15")
    a("s_waitcnt lgkmcnt(0)")
    epoch(a)
    a.srd(16, 68, 69, 16*MB)
    a.srd(20, 68, 69, HF_BYTES, add=HF)
    if OPT["tlb"]:
        with Ool(a):
            a.label("L_a_tlb")
            a("v_lshlrev_b32 v3, 20, v1", "s_mov_b64 exec, 0xffff", f"buffer_load_dword v{vGT}, v3, {rWS}, 0 offen", f"buffer_load_dword v{vGT}, v3, {rHF}, 0 offen",
              "s_mov_b64 exec, 3", "s_mov_b32 s27, 0x20000")
            for p, n in ((56, 512*1376*2), (58, 512*1376*2), (60, 512*1376*2), (52, 512*512*2), (64, 2048*512*2), (62, 1024)):
                a(f"s_mov_b64 s[24:25], s[{p}:{p+1}]", f"s_mov_b32 s26, {n:#x}", f"buffer_load_dword v{vGT}, v3, s[24:27], 0 offen")
            a("s_mov_b64 exec, -1", "s_branch L_a_tlbr")
        a("s_cmp_eq_u32 s3, 1", "s_cbranch_scc1 L_a_tlb")
        a.label("L_a_tlbr")
    if OPT["dbg"]: a("s_mov_b32 s59, 0")
    a("s_lshl1_add_u32 s48, s5, s73")
    a("s_and_b32 s77, s3, 3")
    a("s_lshl_b32 s76, s75, 15", f"v_add_u32 v{vK}, s76, v2")
    a("v_and_b32 v3, 15, v1", "v_lshlrev_b32 v3, 4, v3", "v_lshrrev_b32 v7, 5, v1", "v_lshl_add_u32 v3, v7, 8, v3",
      "v_and_b32 v7, 27, v1", "v_cmp_eq_u32 vcc, 16, v7", "v_mov_b32 v16, 0x18000", "v_mov_b32 v15, 1024",
      "v_cndmask_b32 v16, v16, v15, vcc",
      "v_and_b32 v7, 16, v1", "v_cmp_eq_u32 vcc, 0, v7", "v_add_u32 v15, 512, v3",
      f"s_mul_i32 s76, s75, {32*VST}", f"s_add_u32 s76, s76, {VB}",
      f"v_cndmask_b32 v{vV0}, v16, v3, vcc", f"v_cndmask_b32 v{vV1}, v16, v15, vcc",
      f"v_add_u32 v{vV0}, s76, v{vV0}", f"v_add_u32 v{vV1}, s76, v{vV1}")
    a(f"v_lshl_add_u32 v{vST}, v7, 12, v3", f"v_mov_b32 v{IDX}, 0xdddd")
    a("v_and_b32 v7, 0x33, v1", "v_bfe_u32 v3, v1, 2, 1", "v_lshl_add_u32 v7, v3, 3, v7", "v_bfe_u32 v3, v1, 3, 1", "v_lshl_add_u32 v7, v3, 2, v7",
      f"v_lshlrev_b32 v{vSK}, 4, v7")
    a(f"v_and_b32 v{vL4}, 31, v1", f"v_lshlrev_b32 v{vL4}, 2, v{vL4}")
    a(f"v_mul_u32_u24 v{vON}, {VST//4}, v{vL4}", "s_add_u32 s76, s76, 1024", f"v_add_u32 v{vON}, s76, v{vON}")
    a("s_lshl_b32 s76, s75, 2", f"v_add_u32 v{vHC}, s76, v{vCB}")
    a("v_and_b32 v3, 3, v1", f"v_lshl_add_u32 v{vF4}, v3, 2, v{vCB}")
    a("s_mul_i32 s79, s77, 2304", "s_lshl_b32 s80, s75, 15", "s_add_u32 s79, s79, s80", f"v_add_u32 v{vE0}, s79, v2",
      f"v_lshrrev_b32 v{vE1}, 2, v2", f"v_add_u32 v{vE1}, s79, v{vE1}", "s_lshl_b32 s80, s3, 2", f"v_add_u32 v{vE2}, s80, v{vCB}")
    a("s_lshl_b32 s88, s7, 3", "s_lshl1_add_u32 s88, s77, s88", "s_add_u32 s88, s88, s75", "s_lshl_b32 s89, s6, 16")
    a("s_lshl_b32 s90, s88, 10", "s_add_u32 s90, s90, s89", "s_xor_b32 s91, s90, 1024")
    a("s_lshl_b32 s95, s75, 5", "s_add_u32 s95, s95, s77", "s_lshl_b32 s94, s95, 10", f"s_mul_i32 s95, s95, {VST}", f"s_add_u32 s95, s95, {VB}",
      "s_add_u32 s92, s89, s94", f"s_add_u32 s92, s92, {KF:#x}", f"s_add_u32 s93, s92, {VF - KF:#x}")
    a("s_lshl_b32 s96, s4, 5", "s_add_u32 s96, s96, s5", "s_lshl_b32 s96, s96, 7", f"s_add_u32 s96, s96, {FQ:#x}")
    slicep(a)
    a("s_xor_b32 s76, s100, s72", "s_and_b32 s76, s76, 1", "s_add_u32 s98, s100, s76", "s_xor_b32 s79, s76, 1", "s_or_b32 s97, s97, s79",
      "s_and_b32 s76, s76, s100", "s_lshl_b32 s76, s76, 10", f"v_add_u32 v{vWg}, s76, v{vWg}")
    a("s_lshl_b32 s76, s75, 3", "s_xor_b32 s76, s76, s5", "s_lshl_b32 s98, s98, 16", "s_lshl1_add_u32 s79, s76, s73",
      "s_lshl_b32 s79, s79, 10", "s_add_u32 s98, s98, s79",
      "s_lshl4_add_u32 s99, s76, s101", "s_lshl2_add_u32 s99, s99, s77", "s_lshl_b32 s99, s99, 7", f"s_add_u32 s99, s99, {FP:#x}")
    a("s_lshl_b32 s49, s4, 2", "s_lshl1_add_u32 s49, s74, s49", "s_lshl_b32 s49, s49, 6", "s_add_u32 s49, s49, s48", "s_lshl_b32 s49, s49, 10")
    for r in range(16, 48): a(f"v_mov_b32 v{r}, 0")
    a("s_mov_b32 s79, 0", "s_mov_b32 s80, 0")
    def nslot(): a(f"s_add_u32 s80, s80, {SLOT}", f"s_cmp_eq_u32 s80, {4*SLOT}", "s_cmov_b32 s80, 0")
    def consumer(lab, steps, buf, nstage, adv, hook=None, pre=False, odd=True):
        per = 4 + 4*len(steps[0][1])
        nrd = 1 + 2*len(steps[0][1])
        tot = nrd*len(steps)
        def reads(b, i):
            f = buf[b] + per*i
            a(f"ds_read_b128 {vr(f,4)}, v{steps[i][0]}")
            for n, (wo, acc, sw) in enumerate(steps[i][1]):
                a(f"ds_read_b64_tr_b16 {vr(f+4+4*n,2)}, v{vWa} offset:{wo}", f"ds_read_b64_tr_b16 {vr(f+6+4*n,2)}, v{vWa} offset:{wo+256}")
        def mf(b, i, n):
            f = buf[b] + per*i
            wo, acc, sw = steps[i][1][n]
            A, B = (vr(f,4), vr(f+4+4*n,4)) if sw else (vr(f+4+4*n,4), vr(f,4))
            a(f"{MFMA} {vr(acc,16)}, {A}, {B}, {vr(acc,16)}")
        def readlist(b):
            sv = a.lines; a.lines = []
            for i in range(len(steps)): reads(b, i)
            r = [l.strip() for l in a.lines]; a.lines = sv
            return r
        mms = [(i, n) for i in range(len(steps)) for n in range(len(steps[i][1]))]
        def front(b):
            rl = readlist(1-b)
            ng = max(1, len(mms) - 2)
            per_gap = -(-len(rl) // ng)
            for g, (i, n) in enumerate(mms[:-1]):
                mf(b, i, n)
                a(*rl[g*per_gap:(g+1)*per_gap])
                if g == ng - 1: adv()
        def full(b):
            done = 0
            for i, n in mms:
                done += 3 if n == 0 else 2
                a(f"s_waitcnt lgkmcnt({min(15, tot - done)})")
                mf(b, i, n)
        a("s_barrier")
        trace(a, "p1")
        a(*readlist(0))
        adv()
        if pre == 1:
            full(0)
            a("s_barrier")
            a(*readlist(1))
            adv()
            a(f"s_branch {lab}_in2")
        elif pre == 2:
            a("s_waitcnt lgkmcnt(0)", "s_barrier")
            front(0)
            mf(0, *mms[-1])
            full(1)
            a("s_barrier")
            a(*readlist(0))
            adv()
            a("s_mov_b32 s79, 2", f"s_branch {lab}_in")
        else:
            a(f"s_branch {lab}_in")
        emit_ool(a)
        a.label(lab)
        mf(1, *mms[-1])
        a.label(lab + "_in")
        a("s_waitcnt lgkmcnt(0)")
        if odd: a("s_barrier")
        trace(a, "p1")
        front(0)
        a(f"s_cmp_eq_u32 s79, {nstage - 2}", f"s_cbranch_scc1 {lab}_e")
        if hook: hook(lab, lambda: mf(0, *mms[-1]))
        else:
            mf(0, *mms[-1])
            a.label(lab + "_in2")
            a("s_waitcnt lgkmcnt(0)", "s_barrier")
        trace(a, "p1")
        a("s_add_u32 s79, s79, 2")
        front(1)
        a(f"s_branch {lab}")
        emit_ool(a)
        a.label(lab + "_e")
        mf(0, *mms[-1])
        full(1)
    def addr1():
        for ks in range(1, 4): a(f"v_xor_b32 v{vXa[ks]}, {32*ks}, v{vXa[0]}")
        a(f"v_add_u32 v{vWa}, s80, v{vWb}")
    def adv1():
        nslot()
        a(f"v_add_u32 v{vXa[0]}, 8192, v{vXa[0]}")
        addr1()
    addr1()
    a("s_waitcnt lgkmcnt(0)", f"s_add_u32 s{sN}, s{sN}, 1")
    stamp(a)
    a("s_cmp_lg_u32 s75, 0", "s_cbranch_scc1 L_p1q")
    a(f"s_add_u32 s54, s49, {VF:#x}", f"s_add_u32 s52, s49, {KF:#x}")
    consumer("L_p1kv", [(vXa[ks], [(8192 + ks*2048, 16, False), (16384 + ks*2048, 32, True)]) for ks in range(4)], [48, 96], 8, adv1, pre=OPT['pre'])
    a.nop(10)
    for r in range(8): a(f"v_cvt_pk_bf16_f32 v{16+r}, v{16+2*r}, v{17+2*r}")
    for r in range(8): a(f"v_cvt_pk_bf16_f32 v{24+r}, v{32+2*r}, v{33+2*r}")
    a("s_branch L_p1done")
    a.label("L_p1q")
    a(f"s_mov_b32 s50, {fbits(QSCALE):#x}", "s_mov_b32 s52, s49", "s_mov_b32 s54, 0x40000000", f"v_mov_b32 v{vSK}, v2")
    consumer("L_p1ql", [(vXa[ks], [(ks*2048, 16, False)]) for ks in range(4)], [48, 96], 8, adv1, pre=OPT['pre'])
    a.nop(12)
    for r in range(0, 16, 2): a(f"v_pk_mul_f32 {vr(16+r,2)}, {vr(16+r,2)}, s[50:51] op_sel_hi:[1,0]")
    for r in range(8): a(f"v_cvt_pk_bf16_f32 v{16+r}, v{16+2*r}, v{17+2*r}")
    a.label("L_p1done")
    a("s_add_u32 s53, s52, 0x10000")
    ST = [[f"buffer_store_dwordx4 v[16:19], v{vSK}, {rWS}, s52 offen sc1"], [f"buffer_store_dwordx4 v[20:23], v{vSK}, {rWS}, s53 offen sc1"],
          [f"buffer_store_dwordx4 v[24:27], v{vST}, {rWS}, s54 offen sc1", f"buffer_store_dwordx4 v[28:31], v{vST}, {rWS}, s54 offen offset:512 sc1"]]
    npre = {0: 0, 1: 1, -1: 3}[OPT["ns"]]
    for x in ST[:npre]: a(*x)
    stamp(a)
    for r in range(4): a(f"v_mov_b32 v{36+r}, 0")
    a("s_nop 1")
    for t in range(3): a(f"{MFMA} {vr(HA+16*t,16)}, v[36:39], v[36:39], 0")
    XR = P1W + SLOT
    a("s_mov_b32 s79, 0", "s_cmp_eq_u32 s75, 0", f"s_cselect_b32 s76, 0, {XR + 16384}", f"s_mov_b32 s77, {XR}", f"s_mov_b32 s78, {XR + 24576}",
      "s_mov_b32 s56, 0", f"s_mov_b32 s57, {2*SLOT}", f"s_mov_b32 s58, {3*SLOT}",
      "s_cmp_eq_u32 s3, 7", f"s_cselect_b32 s81, {OPT['nd']}, -1")
    def addr2():
        a(f"v_add_u32 v{vXa[0]}, s76, v{vXb}", f"v_add_u32 v{vWa}, s56, v{vWg}", f"v_xor_b32 v{vXa[1]}, 32, v{vXa[0]}")
    par = [0]
    def adv2():
        if par[0] == 0:
            a(f"v_xor_b32 v{vXa[0]}, 64, v{vXa[0]}", f"v_xor_b32 v{vXa[1]}, 64, v{vXa[1]}", f"v_add_u32 v{vWa}, 12288, v{vWa}",
              "s_add_u32 s76, s76, 8192", "s_cmp_eq_u32 s76, s78", "s_cmov_b32 s76, s77",
              "s_mov_b32 s80, s56", "s_mov_b32 s56, s57", "s_mov_b32 s57, s58", "s_mov_b32 s58, s80")
        else:
            addr2()
        par[0] ^= 1
    def hook(lab, last):
        ev = {2*n: x for n, x in enumerate(ST[npre:])}
        ev[12] = [f"buffer_load_dwordx4 {vr(Qa,4)}, v2, {rWS}, s90 offen sc1", f"buffer_load_dwordx4 {vr(Qb,4)}, v2, {rWS}, s91 offen sc1"]
        with Ool(a):
            a.label(lab + "_d")
            a(f"s_cmp_eq_u32 s79, {OPT['nd']}", f"s_cbranch_scc1 {lab}_f", "s_barrier")
            for n, x in ev.items():
                a(f"s_cmp_eq_u32 s79, {n}", f"s_cbranch_scc0 {lab}_s{n}")
                if OPT["sprio"]: a("s_setprio 3", *x, "s_setprio 0")
                else: a(*x)
                a(f"s_branch {lab}_r")
                a.label(f"{lab}_s{n}")
            a(f"s_branch {lab}_r")
            a.label(lab + "_f")
            trace(a, "h")
            a("s_waitcnt vmcnt(0)", "s_cmp_eq_u32 s79, s81", "s_barrier", f"s_cbranch_scc0 {lab}_r")
            flag_store(a, "s96")
            a(f"s_branch {lab}_r")
        a(f"s_bitcmp1_b32 {sum(1 << n for n in list(ev) + [OPT['nd']])}, s79")
        last()
        a("s_waitcnt lgkmcnt(0)", f"s_cbranch_scc1 {lab}_d", "s_barrier")
        a.label(lab + "_r")
    addr2()
    a("s_cmp_eq_u32 s97, 0", "s_cbranch_scc1 L_g2")
    consumer("L_g3l", [(vXa[e], [(e*6144 + t*1024, HA + 16*t, False) for t in range(3)]) for e in range(2)], [40, 72], 16, adv2, hook, odd=False)
    a("s_branch L_gdone")
    a.label("L_g2")
    par[0] = 0
    consumer("L_g2l", [(vXa[e], [(e*6144 + t*1024, HA + 16*t, False) for t in range(2)]) for e in range(2)], [40, 72], 16, adv2, hook, odd=False)
    a.label("L_gdone")
    a("s_setprio 3")
    stamp(a)
    a("s_barrier")
    stamp(a)
    for r in range(4): a(f"v_mov_b32 v{V1+r}, 0x3f803f80")
    for r in range(4): a(f"v_mov_b32 v{V2+r}, 0")
    a(f"ds_write_b128 v{vON}, {vr(V1,4)}", f"v_add_u32 v3, v{vL4}, v{vCB}", f"ds_write_b32 v3, v{V2}", f"s_mov_b32 s80, {fbits(-LOG2E):#x}")
    for r in (Sb, Oa, Ob): a(f"{MFMA} {vr(r,16)}, {vr(V2,4)}, {vr(V2,4)}, 0")
    for t in range(3):
        g = HA + 16*t
        if t == 2: a("s_cmp_eq_u32 s97, 0", "s_cbranch_scc1 L_a_e2")
        for r in range(0, 8, 2): a(f"v_pk_mul_f32 {vr(g+r,2)}, {vr(g+r,2)}, s[80:81] op_sel_hi:[1,0]")
        for r in range(8): a(f"v_exp_f32 v{g+r}, v{g+r}")
        for r in range(0, 8, 2): a(f"v_pk_add_f32 {vr(g+r,2)}, {vr(g+r,2)}, 1.0 op_sel_hi:[1,0]")
        for r in range(8): a(f"v_rcp_f32 v{g+r}, v{g+r}")
        for r in range(0, 8, 2): a(f"v_pk_mul_f32 {vr(g+r,2)}, {vr(g+r,2)}, {vr(g+8+r,2)}")
        for r in range(4): a(f"v_cvt_pk_bf16_f32 v{g+8+r}, v{g+2*r}, v{g+1+2*r}")
    a.label("L_a_e2")
    for r in range(4): a(f"v_mov_b32 v{HA+r}, -1")
    a("s_mov_b32 s77, s88", "s_mov_b32 s78, s89", "s_mov_b32 s48, s90")
    a("s_waitcnt vmcnt(0) lgkmcnt(0)", "s_barrier")
    stamp(a)
    a(f"ds_read_b128 {vr(Kf,4)}, v{vK}", f"ds_read_b128 {vr(V1,4)}, v{vV0}", "s_waitcnt lgkmcnt(1)",
      f"{MFMA} {vr(Sa,16)}, {vr(Kf,4)}, {vr(Qb,4)}, 0", "s_mov_b32 s76, 0x5f800000",
      f"v_xor_b32 v13, 16, v{vE2}", f"v_xor_b32 v14, 0x8000, v{vE0}", f"v_xor_b32 v12, 0x8000, v{vE1}")
    a.nop(12)
    woff(a)
    def h0(): flag_wait(a, cB, vF4)
    def h1(): flag_wait(a, cALL, vF4)
    def hs():
        a("s_add_u32 s79, s98, 0x20000", "s_add_u32 s80, s98, 0x40000", "s_cmp_eq_u32 s97, 0", "s_cmov_b32 s80, 0x40000000",
          f"buffer_store_dwordx4 {vr(HA+8,4)}, v2, {rHF}, s98 offen sc1", f"buffer_store_dwordx4 {vr(HA+24,4)}, v2, {rHF}, s79 offen sc1",
          f"buffer_store_dwordx4 {vr(HA+40,4)}, v2, {rHF}, s80 offen sc1")
        a(f"s_add_u32 s79, s48, {OF:#x}", f"buffer_store_dwordx4 {vr(HA,4)}, v2, {rWS}, s79 offen sc1")
    def hf():
        a("s_waitcnt vmcnt(0)")
        flag_store(a, "s99")
    def h6(): lds_wait(a, cPASS, 4, vaddr=vHC)
    def h3(): lds_arrive(a, cPASS, vHC)
    def h5():
        a("s_lshr_b32 s79, s77, 1", "s_lshl_b32 s79, s79, 5", "s_and_b32 s80, s77, 1", "s_add_u32 s79, s79, s80", "s_lshl_b32 s79, s79, 7",
          f"s_add_u32 s79, s79, {FH + 30*128:#x}")
        gpoll(a, vTC, "s79", nl=1)
        a("s_lshl_b32 s79, s77, 7", f"s_add_u32 s79, s79, {GT:#x}", f"buffer_load_dword v{vGT}, v{vL4}, {rWS}, s79 offen sc1")
    def E(S, lo, hi):
        for i in range(lo, hi): a(f"v_exp_f32 v{S+i}, v{S+i}")
    def tile(t):
        E(Sa, 0, 2)
        a(f"{SM} {vr(Oa,16)}, {vr(V2,4)}, {vr(Sb+8,8)}, v{IDX}", f"ds_read_b128 {vr(V2,4)}, v{vV1} offset:{t*VST}")
        E(Sa, 2, 6)
        a(f"{MFMA} {vr(Sb,16)}, {vr(Kf,4)}, {vr(Qa,4)}, 0")
        if t < 31: a(f"ds_read_b128 {vr(Kf,4)}, v{vK} offset:{(t+1)*1024}")
        E(Sa, 6, 12)
        a(f"s_waitcnt lgkmcnt({2 if t < 31 else 1})", f"{SM} {vr(Ob,16)}, {vr(V1,4)}, {vr(Sa,8)}, v{IDX}")
        E(Sa, 12, 16)
        E(Sb, 0, 2)
        a("s_waitcnt lgkmcnt(0)", f"{SM} {vr(Ob,16)}, {vr(V2,4)}, {vr(Sa+8,8)}, v{IDX}")
        E(Sb, 2, 6)
        if t < 31: a(f"{MFMA} {vr(Sa,16)}, {vr(Kf,4)}, {vr(Qb,4)}, 0")
        E(Sb, 6, 12)
        a(f"{SM} {vr(Oa,16)}, {vr(V1,4)}, {vr(Sb,8)}, v{IDX}")
        if t < 31: a(f"ds_read_b128 {vr(V1,4)}, v{vV0} offset:{(t+1)*VST}")
        else:
            a(f"s_add_u32 s74, s48, {OF:#x}", f"ds_write_b128 v{vE0}, {vr(Ob,4)}", f"ds_write_b128 v{vE0}, {vr(Ob+4,4)} offset:1024",
              f"ds_write_b32 v{vE1}, v{Ob+8} offset:2048", f"ds_write_b32 v{vE2}, v{vONE} offset:{cEX}")
        E(Sb, 12, 16)
    def g1():
        a("s_lshr_b32 s79, s77, 1", "s_lshl_b32 s79, s79, 5", "s_and_b32 s80, s77, 1", "s_add_u32 s79, s79, s80", "s_lshl_b32 s79, s79, 7",
          f"s_add_u32 s79, s79, {FH + 30*128:#x}", f"buffer_load_dword v3, off, {rWS}, s79 sc1")
    def g2():
        with Ool(a):
            a.label("L_a_gr")
            gpoll(a, vTC, "s79", nl=1)
            a("s_branch L_a_gk")
        a("s_waitcnt vmcnt(0)", f"v_cmp_ne_u32 vcc, s{sN}, v3", "s_lshl_b32 s80, s77, 7", f"s_add_u32 s80, s80, {GT:#x}", "s_cbranch_vccnz L_a_gr")
        a.label("L_a_gk")
        a(f"buffer_load_dword v{vGT}, v{vL4}, {rWS}, s80 offen sc1")
    if OPT["unroll"]:
        hs_t = OPT["hs"]
        ta = {7: [h1], 12: [h3], 27: [h6], 21: [g1], 25: [g2]}
        hsl = [[f"buffer_store_dwordx4 {vr(HA+8,4)}, v2, {rHF}, s98 offen sc1"],
               ["s_add_u32 s79, s98, 0x20000", f"buffer_store_dwordx4 {vr(HA+24,4)}, v2, {rHF}, s79 offen sc1"],
               ["s_add_u32 s80, s98, 0x40000", "s_cmp_eq_u32 s97, 0", "s_cmov_b32 s80, 0x40000000", f"buffer_store_dwordx4 {vr(HA+40,4)}, v2, {rHF}, s80 offen sc1"],
               [f"s_add_u32 s79, s48, {OF:#x}", f"buffer_store_dwordx4 {vr(HA,4)}, v2, {rWS}, s79 offen sc1"]]
        for n, x in enumerate(hsl):
            ta.setdefault(hs_t + n*OPT["hd"], []).append(lambda x=x: a(*x))
        pass; ta.setdefault(OPT['hf'], []).append(hf)
        def pr(kh, p):
            def f():
                lab = a.newlabel("pr")
                with Ool(a):
                    a.label(lab); a(f"s_setprio {p}", f"s_branch {lab}_r")
                a(f"s_cmp_eq_u32 s75, {kh}", f"s_cbranch_scc1 {lab}")
                a.label(lab + "_r")
            return f
        for nm, kh, p in (("l2", 0, 2), ("h2", 1, 2), ("l1", 0, 1), ("h1", 1, 1)):
            ta.setdefault(OPT[nm], []).insert(0, pr(kh, p))
        for t in range(32):
            for f in ta.get(t, []): f()
            tile(t)
            if t % 4 == 3: trace(a, "a")
        a("s_nop 1")
    else:
        a.raw(".p2align 6")
        a.label("L_a_loop")
        for t in range(4):
            if t == 3:
                a("s_cmp_lt_u32 s76, 7", "s_cbranch_scc1 L_a_hook")
                a.label("L_a_hookret")
            tile(t)
        a(f"v_add_u32 v{vK}, 4096, v{vK}", f"v_add_u32 v{vV0}, {4*VST}, v{vV0}", f"v_add_u32 v{vV1}, {4*VST}, v{vV1}")
        trace(a, "a")
        a("s_add_u32 s76, s76, 1", "s_cmp_lt_u32 s76, 8", "s_cbranch_scc1 L_a_loop")
    won(a, "a")
    a(f"{SM} {vr(Oa,16)}, {vr(V2,4)}, {vr(Sb+8,8)}, v{IDX}", "s_setprio 3")
    stamp(a)
    lp, dn = a.newlabel("xw"), a.newlabel("xwd")
    rt = retry(a, lp, dn, 1)
    a.label(lp)
    a(f"ds_read_b32 v{vPOLL}, v13 offset:{cEX}", f"ds_read_b128 {vr(Sa,4)}, v14", f"ds_read_b128 {vr(Sa+4,4)}, v14 offset:1024", f"ds_read_b32 v{Sa+8}, v12 offset:2048",
      "s_nop 3", "s_waitcnt lgkmcnt(0)", f"v_cmp_eq_u32 vcc, 0, v{vPOLL}", f"s_cbranch_vccnz {rt}")
    a.label(dn)
    a(f"v_add_f32 v{Oa+8}, v{Oa+8}, v{Sa+8}")
    for r in range(0, 8, 2): a(f"v_pk_add_f32 {vr(Oa+r,2)}, {vr(Oa+r,2)}, {vr(Sa+r,2)}")
    O = Oa
    a(f"v_pk_add_f32 v[8:9], {vr(O,2)}, {vr(O+2,2)}", f"v_pk_add_f32 v[10:11], {vr(O+4,2)}, {vr(O+6,2)}", "v_pk_add_f32 v[8:9], v[8:9], v[10:11]",
      "v_add_f32 v8, v8, v9", f"v_fma_f32 v8, v8, 0, v{O+8}")
    a("v_cmp_nle_f32 s[80:81], 1.0, v8", "v_cmp_nge_f32 vcc, s76, v8", "s_or_b64 vcc, vcc, s[80:81]", "s_cbranch_scc1 L_a_slow")
    a.label("L_a_fin")
    trace(a, "t")
    a(f"v_rcp_f32 v8, v{O+8}", "s_waitcnt vmcnt(0)", f"v_mul_f32 v8, v8, v{vGT}")
    for r in range(0, 8, 2): a(f"v_pk_mul_f32 {vr(O+r,2)}, {vr(O+r,2)}, v[8:9] op_sel_hi:[1,0]")
    for r in range(4): a(f"v_cvt_pk_bf16_f32 v{Qb+r}, v{O+2*r}, v{O+2*r+1}")
    for r in range(4): a(f"v_min_u32 v{Qb+r}, -2, v{Qb+r}")
    a(f"buffer_store_dwordx4 {vr(Qb,4)}, v2, {rWS}, s74 offen sc1")
    trace(a, "t")
    a("s_barrier")
    stamp_end(a, 0)
    a("s_endpgm")
    if not OPT['unroll']:
        a.label("L_a_hook")
        acts = {0: [h0], 1: [h1], 3: [h3], 6: [h6]}
        acts.setdefault(OPT["hg"], []).append(h5)
        acts.setdefault(OPT["hst"], []).append(hs)
        acts.setdefault(OPT["hst"] + 1, []).append(hf)
        acts.setdefault(OPT["pr2"], []).insert(0, lambda: a("s_setprio 2"))
        acts.setdefault(OPT["pr1"], []).insert(0, lambda: a("s_setprio 1"))
        its = sorted(acts)
        for it in its:
            a(f"s_cmp_eq_u32 s76, {it}", f"s_cbranch_scc1 L_a_hk_{it}")
        a("s_branch L_a_hookret")
        for it in its:
            a.label(f"L_a_hk_{it}")
            for f in acts[it]: f()
            a("s_branch L_a_hookret")
    emit_ool(a)
    woff(a)
    a.label("L_a_slow")
    NM = 96
    a("v_mov_b32 v3, 0xff800000", f"s_add_u32 s76, s78, {KF:#x}", "s_mov_b32 s79, 0")
    a.label("L_a_max")
    a(f"buffer_load_dwordx4 {vr(V1,4)}, v2, {rWS}, s76 offen sc1", "s_waitcnt vmcnt(0)",
      f"{MFMA} {vr(Sa,16)}, {vr(V1,4)}, {vr(Qa,4)}, 0", "s_add_u32 s76, s76, 1024")
    a.nop(14)
    for r in range(0, 16, 2): a(f"v_max3_f32 v3, v{Sa+r}, v{Sa+r+1}, v3")
    a("s_add_u32 s79, s79, 1", "s_cmp_lt_u32 s79, 64", "s_cbranch_scc1 L_a_max")
    a("v_mov_b32 v12, v3", "s_nop 1", "v_permlane32_swap_b32 v12, v3", "s_nop 1", "v_max_f32 v3, v12, v3")
    for r in range(16): a(f"v_sub_f32 v{NM+r}, 0, v3")
    for r in range(16): a(f"v_mov_b32 v{Oa+r}, 0")
    a("v_and_b32 v3, 15, v1", "v_lshlrev_b32 v3, 4, v3", "v_lshrrev_b32 v12, 5, v1", "v_lshl_add_u32 v3, v12, 8, v3",
      "v_and_b32 v12, 16, v1", "v_cmp_eq_u32 vcc, 0, v12", "v_mov_b32 v12, 0x4000000", "v_mov_b32 v13, 0x3f803f80",
      "v_cndmask_b32 v3, v12, v3, vcc", "v_cndmask_b32 v13, v13, 0, vcc")
    a(f"s_add_u32 s76, s78, {KF:#x}", f"s_add_u32 s80, s78, {VF:#x}", "s_mov_b32 s79, 0")
    a.label("L_a_redo")
    a(f"buffer_load_dwordx4 {vr(Sb,4)}, v2, {rWS}, s76 offen sc1", f"buffer_load_dwordx4 {vr(V1,4)}, v3, {rWS}, s80 offen sc1",
      f"buffer_load_dwordx4 {vr(V2,4)}, v3, {rWS}, s80 offen offset:512 sc1", "s_waitcnt vmcnt(0)",
      f"{MFMA} {vr(Sa,16)}, {vr(Sb,4)}, {vr(Qa,4)}, {vr(NM,16)}", "s_add_u32 s76, s76, 1024", "s_add_u32 s80, s80, 1024")
    for r in range(8): a(f"v_or_b32 v{V1+r}, v13, v{V1+r}")
    a.nop(6)
    E(Sa, 0, 16)
    a("s_nop 1", f"{SM} {vr(Oa,16)}, {vr(V1,4)}, {vr(Sa,8)}, v{IDX}", f"{SM} {vr(Oa,16)}, {vr(V2,4)}, {vr(Sa+8,8)}, v{IDX}")
    a("s_add_u32 s79, s79, 1", "s_cmp_lt_u32 s79, 64", "s_cbranch_scc1 L_a_redo")
    a.nop(14)
    a("s_branch L_a_fin")

def gen_gwave(a):
    sF, sT = 54, 55
    a("s_getpc_b64 s[44:45]", "s_mov_b32 s46, 64", "s_mov_b32 s47, 0x20000", f"s_lshl_b32 s{sF}, s3, 2", f"s_add_u32 s{sF}, s{sF}, {CB}")
    def dflag(off):
        a(f"s_add_u32 m0, s{sF}, {off}", "s_mov_b64 exec, 1", "buffer_load_dword off, s[44:47], 0 lds", "s_mov_b64 exec, -1")
    for n in range(OPT["kvx"]): kvpair(a)
    acc = accD; vW = vWd
    a(f"s_waitcnt vmcnt({4*OPT['kvx']})", "s_barrier")
    a.label("L_g_kvl")
    kvpair(a)
    a("s_add_u32 s74, s74, 1", f"s_cmp_lt_u32 s74, {6 - OPT['kvx']}", "s_cbranch_scc1 L_g_kvl")
    dflag(cALL)
    stamp(a)
    nb = OPT["tb"]
    if nb:
        a(f"s_mov_b64 exec, {(1 << nb) - 1:#x}")
        for o in range(0, 32, nb): a(f"buffer_load_dword v62, v7, {rWO}, s58 offen", f"s_add_u32 s58, s58, {nb*128}", "s_waitcnt vmcnt(0)")
        for o in range(0, 86, nb): a(f"buffer_load_dword v62, v7, {rWD}, s57 offen", f"s_add_u32 s57, s57, {nb*128}", "s_waitcnt vmcnt(0)")
        a("s_mov_b64 exec, -1")
    a("s_and_b32 s78, s3, 1", "s_lshl_b32 s78, s78, 10", f"v_add_u32 v{vR0}, s78, v2", f"v_xor_b32 v{vR1}, 1024, v{vR0}")
    q = VQ(a)
    if OPT["drot"]:
        a("s_mul_i32 s78, s71, 11", "s_lshr_b32 s78, s78, 1", "s_lshl_b32 s48, s78, 14", f"s_add_u32 s48, s48, s{sW1}", "s_lshl_b32 s49, s78, 16", f"s_add_u32 s49, s49, s{sH0}",
          f"s_add_u32 s50, s{sW1}, {22*16384}", f"s_add_u32 s51, s{sH0}, {22*65536}")
    def wload(k, o):
        slot = k % NS
        if k < 22 and OPT["drot"]:
            a(f"s_add_u32 m0, s{sR}, {slot*2048 + o*1024}", "s_nop 0", f"buffer_load_dwordx4 v{vW}, {rWD}, s48 offen lds", "s_add_u32 s48, s48, 8192")
            if o: a("s_cmp_eq_u32 s48, s50", f"s_cmov_b32 s48, s{sW1}")
        elif k < 22:
            a(f"s_add_u32 m0, s{sR}, {slot*2048 + o*1024}", f"s_add_u32 s79, s{sW1}, {(k*16 + o*8)*1024}", f"buffer_load_dwordx4 v{vW}, {rWD}, s79 offen lds")
        else:
            a(f"s_add_u32 m0, s{sR}, {slot*2048 + o*1024}", f"s_add_u32 s79, s{sW0}, {((k-22)*16 + o*8)*1024}", f"buffer_load_dwordx4 v{vW}, {rWO}, s79 offen lds")
        q.issue(("W", k))
    def hload(k, rt):
        if OPT["drot"]:
            a(f"buffer_load_dwordx4 {vr(H[k%HD]+4*rt,4)}, v{[vR0, vR1][rt]}, {rHF}, s49 offen sc1")
            if rt: a("s_add_u32 s49, s49, 0x10000", "s_cmp_eq_u32 s49, s51", f"s_cmov_b32 s49, s{sH0}")
        else:
            if rt == 0: a(f"s_add_u32 s78, s{sH0}, {k*65536}")
            a(f"buffer_load_dwordx4 {vr(H[k%HD]+4*rt,4)}, v{[vR0, vR1][rt]}, {rHF}, s78 offen sc1")
        q.issue(("H", k))
    def wread(k):
        slot = k % NS
        dst = Wf[k & 1] if k < 22 else WF + 8*(k-22)
        for ct in range(2):
            a(f"ds_read_b64_tr_b16 {vr(dst+4*ct,2)}, v{vT2} offset:{slot*2048 + ct*512}",
              f"ds_read_b64_tr_b16 {vr(dst+4*ct+2,2)}, v{vT2} offset:{slot*2048 + ct*512 + 1024}")
    seq = [25, 26, 27, 28, 29, 0, 1, 2]
    for k in seq[:3]:
        wload(k, 0); wload(k, 1)
    for n in range(5):
        q.wait(("W", seq[n]))
        wread(seq[n])
        a("s_waitcnt lgkmcnt(0)")
        wload(seq[n+3], 0); wload(seq[n+3], 1)
    a("s_lshl_b32 s75, s3, 19", "s_lshl_b32 s80, s6, 11", "s_add_u32 s75, s75, s80", f"s_add_u32 s75, s75, {OF:#x}")
    trace(a, "e")
    gpoll(a, vP1, "0", sleep=OPT["psl"], nl=18)
    a("s_lshl_b32 s78, s3, 2", "s_cmp_eq_u32 s3, 1", "s_cmov_b32 s78, 3", "s_cselect_b32 exec_lo, 0xffffff, 0xffff" if False else "s_cselect_b32 s76, 24, 16",
      "s_lshl4_add_u32 s78, s6, s78", "s_lshl_b32 s78, s78, 9", f"s_add_u32 s78, s78, {FP:#x}", "s_bfm_b64 exec, s76, 0")
    gpoll(a, 7, "s78", sleep=4)
    a("s_mov_b64 exec, -1")
    q.drain()
    stamp(a)
    a("s_and_b32 s79, s3, 1", "s_lshl1_add_u32 s79, s6, s79", "s_lshl_b32 s79, s79, 7", f"s_add_u32 s79, s79, {GT:#x}", "s_xor_b32 s78, s79, 128",
      f"buffer_load_dword v{vG}, v{vGA}, {rWS}, s79 offen sc1", f"buffer_load_dword v{vG+1}, v{vGA}, {rWS}, s78 offen sc1")
    q.issue("g"); q.issue("g")
    for k in range(HD-1):
        hload(k, 0); hload(k, 1)
    a("s_mul_i32 s79, s7, 0x30000", f"s_add_u32 s79, s79, s{sH0}", "s_mov_b32 exec_hi, 0xffff",
      f"buffer_load_dword v62, v{vTH}, {rHF}, s79 offen sc1", "s_mov_b64 exec, -1")
    q.issue("t")
    wread(0)
    a(f"s_setprio {OPT['dprio']}")
    if OPT["nod"]: a("s_branch L_g_dskip")
    for k in range(22):
        q.wait(("W", k+1), ("H", k))
        if k == OPT["bk"]: a("s_barrier")
        if k == OPT["otouch"]:
            a("s_lshl_b32 s79, s7, 16", "s_add_u32 s79, s79, s75", "s_mov_b64 exec, 0xffff", f"buffer_load_dword v62, v7, {rWS}, s79 offen sc1", "s_mov_b64 exec, -1")
            q.issue("t")
        trace(a, "d")
        a("s_waitcnt lgkmcnt(0)")
        if k < 21: wread(k+1)
        extra = [lambda: wload(k+3, 0), lambda: wload(k+3, 1)]
        if k + HD - 1 < 22: extra += [lambda: hload(k+HD-1, 0), lambda: hload(k+HD-1, 1)]
        for i in range(4):
            ct, rt = i >> 1, i & 1
            C = "0" if k == 0 else vr(acc[i], 16)
            a(f"{MFMA} {vr(acc[i],16)}, {vr(Wf[k&1]+4*ct,4)}, {vr(H[k%HD]+4*rt,4)}, {C}")
            if i < len(extra): extra[i]()
    a.label("L_g_dskip")
    trace(a, "e")
    a("s_setprio 3")
    a(f"v_sub_f32 v6, 1.0, v{vG}", f"v_sub_f32 v7, 1.0, v{vG+1}")
    if OPT["probe"] == 2: a("v_and_b32 v10, 7, v1", f"v_lshl_add_u32 v10, v10, 2, v{vCB}", f"ds_read_b32 v10, v10 offset:{cEX}")
    for k in range(22, 25):
        q.wait(("W", k))
        wread(k)
    stamp(a)
    QS_ = 1024 + 32; TS_ = 4*QS_; WS_ = 4*TS_
    if OPT["rowred"]:
        vq = 0 if not OPT["tr"] else 3
        a("v_lshrrev_b32 v4, 1, v1", "v_lshlrev_b32 v4, 16, v4", f"v_and_b32 v{vq}, 1, v1", f"v_lshl_add_u32 v{vq}, v{vq}, 10, v4", f"v_add_u32 v{vq}, 1020, v{vq}")
        for i in range(4):
            a(f"s_xor_b32 s79, s3, {i}", "s_lshr_b32 s80, s79, 1", "s_and_b32 s79, s79, 1", "s_lshl1_add_u32 s79, s79, s80", "s_lshl2_add_u32 s79, s3, s79", f"s_mul_i32 s{48+i}, s79, {TS_}")
        a("s_lshl_b32 s74, s6, 16", "s_lshl_b32 s80, s3, 14", "s_add_u32 s74, s74, s80", "s_lshl_b32 s80, s7, 7", "s_add_u32 s74, s74, s80")
    else:
        a("v_lshlrev_b32 v4, 4, v1", "s_lshl_b32 s79, s3, 14", "v_add_u32 v4, s79, v4")
        a("v_and_b32 v3, 31, v1", "v_lshlrev_b32 v3, 10, v3", "v_lshrrev_b32 v7, 5, v1", "v_lshl_add_u32 v3, v7, 4, v3",
          "s_and_b32 s74, s3, 1", "s_lshl1_add_u32 s74, s6, s74", "s_lshl_b32 s74, s74, 15", "s_lshl_b32 s80, s7, 7", "s_add_u32 s74, s74, s80",
          "s_lshr_b32 s80, s3, 1", "s_lshl_b32 s80, s80, 6", "s_add_u32 s74, s74, s80")
    a("s_waitcnt lgkmcnt(0)")
    if OPT["probe"] == 2: a("v_cmp_eq_u32 vcc, 0, v10", "s_nop 0", "s_cmp_lg_u64 vcc, 0", "s_cselect_b32 s72, 0xffff, 0")
    if OPT["bk"] > 21: a("s_barrier")
    trace(a, "t")
    order = [1, 3, 5, 7, 0, 2, 4, 6]
    def oload(n):
        a(f"s_add_u32 s79, s75, {order[n]*65536}")
        for rt in range(2):
            a(f"buffer_load_dwordx4 {vr(OFR+8*(n%4)+4*rt,4)}, v{[vR0, vR1][rt]}, {rWS}, s79 offen sc1")
    vPA = 0 if not OPT["tr"] else 3
    def probe_issue(): a("s_mov_b64 exec, 0xffff", f"buffer_load_dword v4, v{vPA}, {rWS}, s75 offen sc1")
    def probe_eval(): a("s_waitcnt vmcnt(0)", "v_cmp_eq_u32 vcc, -1, v4", "s_mov_b64 exec, -1", "s_mov_b32 s72, vcc_lo")
    def need(n):
        if not OPT["probe"]: return
        m = 3 << (2*order[n])
        with Ool(a):
            a.label(f"L_p_r{n}")
            a(f"s_sub_u32 s{sBUD}, s{sBUD}, 1", f"s_cbranch_scc1 L_p_x{n}")
            if OPT["prs"]: a(f"s_sleep {OPT['prs']}")
            probe_issue(); probe_eval()
            a(f"s_and_b32 s79, s72, {m}", f"s_cbranch_scc1 L_p_r{n}", f"s_branch L_p_k{n}")
            a.label(f"L_p_x{n}")
            a(f"s_mov_b32 s{sBUD}, 0", f"s_branch L_p_k{n}")
        a(f"s_and_b32 s79, s72, {m}", f"s_cbranch_scc1 L_p_r{n}")
        a.label(f"L_p_k{n}")
    def scale():
        for t in range(4):
            for r in range(0, 16, 2):
                a(f"v_pk_mul_f32 {vr(acc[t]+r,2)}, {vr(acc[t]+r,2)}, v[6:7] " + ("op_sel:[0,1] op_sel_hi:[1,1]" if t & 1 else "op_sel_hi:[1,0]"))
    if OPT["probe"] == 2:
        scale()
        for n in range(4):
            need(n); oload(n)
    elif OPT["probe"]:
        probe_issue()
        a("s_mov_b64 exec, -1")
        scale()
        a("s_mov_b64 exec, 0xffff")
        probe_eval()
        for n in range(4):
            need(n); oload(n)
    else:
        for n in range(4): oload(n)
        scale()
    for n in range(8):
        h, f = order[n], OFR + 8*(n % 4)
        last = min(n + 3, 7)
        with Ool(a):
            a.label(f"L_o_r{n}")
            chk = [f"v_max3_u32 v6, v{f}, v{f+1}, v{f+2}", f"v_max3_u32 v7, v{f+3}, v{f+4}, v{f+5}", f"v_max3_u32 v6, v6, v{f+6}, v{f+7}",
                   "v_max_u32 v6, v6, v7", "v_cmp_eq_u32 vcc, -1, v6"]
            if OPT["omode"] == 0:
                a("s_waitcnt vmcnt(0)", f"s_sub_u32 s{sBUD}, s{sBUD}, 1", f"s_cbranch_scc1 L_o_x{n}", f"s_sleep {OPT['osl']}")
                for m in range(n, last + 1): oload(m)
                a(f"s_branch L_o_w{n}")
            elif OPT["omode"] == 1:
                a(f"s_sub_u32 s{sBUD}, s{sBUD}, 1", f"s_cbranch_scc1 L_o_x{n}")
                for m in range(n, last + 1): oload(m)
                a(f"s_branch L_o_w{n}")
            else:
                a(f"s_sub_u32 s{sBUD}, s{sBUD}, 1", f"s_cbranch_scc1 L_o_x{n}")
                oload(n)
                a("s_waitcnt vmcnt(0)", *chk, f"s_cbranch_vccnz L_o_r{n}")
                for m in range(n + 1, last + 1): oload(m)
                a(f"s_branch L_o_k{n}")
            a.label(f"L_o_x{n}")
            a(f"s_mov_b32 s{sBUD}, 0", f"s_branch L_o_k{n}")
        a.label(f"L_o_w{n}")
        a(f"s_waitcnt vmcnt({2*(last - n)})", f"v_max3_u32 v6, v{f}, v{f+1}, v{f+2}", f"v_max3_u32 v7, v{f+3}, v{f+4}, v{f+5}", f"v_max3_u32 v6, v6, v{f+6}, v{f+7}",
          "v_max_u32 v6, v6, v7", "v_cmp_eq_u32 vcc, -1, v6", f"s_cbranch_vccnz L_o_r{n}")
        a.label(f"L_o_k{n}")
        for i in (1, 2, 3, 0):
            ct, rt = i >> 1, i & 1
            a(f"{MFMA} {vr(acc[i],16)}, {vr(WF+8*h+4*ct,4)}, {vr(f+4*rt,4)}, {vr(acc[i],16)}")
        if n + 4 < 8:
            need(n + 4); oload(n + 4)
        if n == 3: trace(a, "t")
    trace(a, "t")
    if OPT["rowred"]:
        fl = ['', 'sc1', 'nt', 'sc0 sc1'][OPT['ofl']]
        a("v_lshlrev_b32 v4, 4, v1", "v_lshrrev_b32 v3, 3, v1")
        for i in (1, 2, 3, 0): a(f"v_add_u32 v{8+i}, s{48+i}, v4")
        a.nop(4)
        for i in (1, 2, 3, 0):
            for qd in range(4):
                a(f"ds_write_b128 v{8+i}, {vr(acc[i]+4*qd,4)} offset:{qd*QS_}")
        a("v_and_b32 v7, 7, v1", f"v_mul_u32_u24 v6, {QS_}, v7", "v_lshl_add_u32 v6, v3, 4, v6", "s_lshr_b32 s79, s3, 1", f"s_mul_i32 s79, s79, {2*TS_}", "s_and_b32 s80, s3, 1",
          "s_lshl_b32 s80, s80, 8", "s_add_u32 s79, s79, s80", "v_add_u32 v6, s79, v6", "v_lshlrev_b32 v3, 10, v3", "v_lshl_add_u32 v3, v7, 4, v3", "s_add_u32 s75, s74, 8192")
        a("s_waitcnt lgkmcnt(0)", "s_barrier")
        trace(a, "t")
        for i in range(2):
            for w in range(4):
                for hb in range(2):
                    a(f"ds_read_b128 {vr(104+32*i+8*w+4*hb,4)}, v6 offset:{w*WS_ + hb*512 + i*128}")
        for i in range(2):
            b = 104 + 32*i
            a(f"s_waitcnt lgkmcnt({12 - 8*i})")
            for r in range(0, 8, 2): a(f"v_pk_add_f32 {vr(b+r,2)}, {vr(b+r,2)}, {vr(b+8+r,2)}")
            a(f"s_waitcnt lgkmcnt({8 - 8*i})")
            for r in range(0, 8, 2): a(f"v_pk_add_f32 {vr(b+16+r,2)}, {vr(b+16+r,2)}, {vr(b+24+r,2)}")
            for r in range(0, 8, 2): a(f"v_pk_add_f32 {vr(b+r,2)}, {vr(b+r,2)}, {vr(b+16+r,2)}")
            for r in range(4): a(f"v_cvt_pk_bf16_f32 v{16+4*i+r}, v{b+2*r}, v{b+2*r+1}")
            a(f"buffer_store_dwordx4 {vr(16+4*i,4)}, v3, {rOUT}, s{74+i} offen {fl}")
    else:
        a("v_xor_b32 v8, 0x4000, v4", "v_xor_b32 v9, 0x8000, v4", "v_xor_b32 v10, 0xc000, v4")
        a.nop(6)
        for i in (1, 2, 3):
            for qd in range(4):
                a(f"ds_write_b128 v4, {vr(acc[i]+4*qd,4)} offset:{i*4096 + qd*1024}")
        a("s_waitcnt lgkmcnt(0)", "s_barrier")
        trace(a, "t")
        for i in (1, 2, 3):
            for qd in range(4):
                a(f"ds_read_b128 {vr(acc[i]+4*qd,4)}, v{7+i} offset:{i*4096 + qd*1024}")
        for i in (1, 2, 3):
            a(f"s_waitcnt lgkmcnt({12 - 4*i})")
            for r in range(0, 16, 2): a(f"v_pk_add_f32 {vr(acc[0]+r,2)}, {vr(acc[0]+r,2)}, {vr(acc[i]+r,2)}")
        for r in range(8): a(f"v_cvt_pk_bf16_f32 v{16+r}, v{acc[0]+2*r}, v{acc[0]+2*r+1}")
        a("s_nop 1")
        for p in range(2):
            b = 16 + 4*p
            a(f"v_permlane32_swap_b32 v{b}, v{b+2}", f"v_permlane32_swap_b32 v{b+1}, v{b+3}")
        a(f"buffer_store_dwordx4 v[16:19], v3, {rOUT}, s74 offen {['', 'sc1', 'nt', 'sc0 sc1'][OPT['ofl']]}", f"buffer_store_dwordx4 v[20:23], v3, {rOUT}, s74 offen offset:32 {['', 'sc1', 'nt', 'sc0 sc1'][OPT['ofl']]}")
    trace(a, "t")
    a("s_or_b32 s79, s2, s3", "s_cmp_lg_u32 s79, 0", "s_cbranch_scc1 L_g_noep", f"s_mov_b32 s79, {EP:#x}")
    flag_store(a, "s79")
    a.label("L_g_noep")
    stamp_end(a, 1)

HEADER = open("gated_mix__mha_block__glu_gated_glu__prompt.s.ref").read().split("; Override launch")[0]
def build():
    a = Asm()
    txt = HEADER + "; @launch grid=(256,1,1) block=(768,1,1) lds=163840\n"
    txt += '.amdgcn_target "amdgcn-amd-amdhsa--gfx950"\n.text\n'
    d = gen(a)
    txt += a.text() + '.section .rodata,"a"\n' + d
    return txt
if __name__ == "__main__":
    for o in sys.argv[2:]:
        k, v = o.split("=")
        OPT[k] = set(v.split(",")) if k == "tr" else int(v)
    open(sys.argv[1], "w").write(build())
    print("wrote", sys.argv[1])
```

```python
import sys, math, struct
from asmlib import *

MB = 1 << 20
QF, KF, VF, OF, XF, GT, FL, ST, HF = 0, 2*MB, 4*MB, 6*MB, 8*MB, 12*MB, 13*MB, 14*MB, 16*MB
KST = 44032
EP = FL + 0xf0000
FQ, FX, FH, FO, FP = FL, FL + 0x8000, FL + 0x28000, FL + 0x48000, FL + 0x88000
HF_BYTES = 86 * 65536
QSCALE = 0.25 * math.log2(math.e)
LOG2E = math.log2(math.e)
def fbits(x): return struct.unpack("<I", struct.pack("<f", x))[0]
MFMA = "v_mfma_f32_32x32x16_bf16"
SM = "v_smfmac_f32_32x32x32_bf16"
M16 = "v_mfma_f32_16x16x32_bf16"
NAME = "gated_mix__mha_block__glu_gated_glu__prompt_kernel"
rX, rWQ, rWS, rHF, rWG, rWD, rWO, rOUT, rGW = [f"s[{i}:{i+3}]" for i in range(8, 44, 4)]
P1X, P1W = 0, 65536
KB, VB, VST = 0, 65536, 1040
RING = VB + 64*VST
CB = RING + 30720
cPASS, cEX, cB, cALL = 20, 32, 64, 80
vCB, vONE, vPOLL = 4, 5, 6
sN, sBUD = 70, 83
OPT = dict(e1=6, e5=6, rot=4, spr=84, probe=0, prs=1, psl=8, bk=99, otouch=99, rowred=1, ofl=1, fs=3, tlb=0, omode=0, drot=1, hd=2, osl=3, hs=5, hf=14, dbg=0, pre=2, ramp=1, sprio=1, kvx=2, unroll=1, l2=15, h2=21, l1=28, h1=31, early=1, tb=0, hg=3, ns=2, nd=2, tr=set(), vtr=0, cyc=0, noattn=0, nod=0, pr2=2, pr1=6, warm=0, wstep=8, dprio=0, hst=1)

def trace(a, grp):
    if grp not in OPT["tr"]: return
    v = OPT["vtr"]
    a("s_memtime s[84:85]" if OPT["cyc"] else "s_memrealtime s[84:85]", "s_mov_b32 s87, m0", "s_mov_b32 m0, s86", "s_waitcnt lgkmcnt(0)", f"v_writelane_b32 v{v}, s84, m0",
      "s_add_u32 s86, s86, 1", "s_mov_b32 m0, s87", "s_nop 0")
def trace2(a, grp):
    if grp not in OPT["tr"]: return
    a("s_cselect_b32 s98, 1, 0"); trace(a, grp); a("s_cmp_eq_u32 s98, 1")
def stamp(a, i=0): trace(a, "m")
def trace_init(a):
    if OPT["tr"]: a("s_mov_b32 s86, 0", f"v_mov_b32 v{OPT['vtr']}, 0")
def dbg_end(a, kidx):
    if not OPT["dbg"]: return
    lab = a.newlabel("dg")
    a("s_cmp_eq_u32 s59, 0", f"s_cbranch_scc1 {lab}", "s_lshl_b32 s79, s2, 16", "s_lshl_b32 s78, s3, 8", "s_or_b32 s79, s79, s78", f"s_or_b32 s79, s79, {0x1000*kidx + 0x80000000:#x}",
      "s_or_b32 s79, s79, s59", "v_mov_b32 v3, s79", "s_lshl_b32 s78, s59, 2", f"s_add_u32 s78, s78, {ST:#x}", "s_mov_b64 exec, 1", f"buffer_store_dword v3, off, {rWS}, s78 sc1", "s_mov_b64 exec, -1")
    a.label(lab)
def stamp_end(a, kidx):
    dbg_end(a, kidx)
    if not OPT["tr"]: return
    a("s_waitcnt vmcnt(0)")
    OPT["tr"].add("end"); trace(a, "end")
    a("s_mul_i32 s71, s2, 12", "s_add_u32 s71, s71, s3", f"s_add_u32 s71, s71, {4 if kidx == 0 else 0}", "s_lshl_b32 s71, s71, 8", f"s_add_u32 s71, s71, {ST:#x}",
      "v_lshlrev_b32 v7, 2, v1", f"buffer_store_dword v{OPT['vtr']}, v7, {rWS}, s71 offen")

def lds_arrive(a, off, vaddr=vCB):
    a("s_mov_b64 exec, 1", f"ds_add_u32 v{vaddr}, v{vONE} offset:{off}", "s_mov_b64 exec, -1")
OOL = []
def emit_ool(a):
    while OOL:
        blk = OOL.pop(0)
        for l in blk:
            if l.startswith("@") or l.startswith("."): a.raw(l)
            elif l.endswith(":"): a.label(l[:-1])
            else: a(l)
class Ool:
    def __init__(self, a): self.a = a
    def __enter__(self): self.sv = self.a.lines; self.a.lines = []
    def __exit__(self, *e):
        OOL.append([l.strip() for l in self.a.lines]); self.a.lines = self.sv
def retry(a, lp, dn, sleep):
    rt = a.newlabel("rt")
    OOL.append([rt + ":"] + ([f"s_sleep {sleep}"] if sleep else []) +
               [f"s_sub_u32 s{sBUD}, s{sBUD}, 1", f"s_cbranch_scc0 {lp}", f"s_mov_b32 s{sBUD}, 0", f"s_branch {dn}"])
    return rt
def lds_wait(a, off, target, vaddr=vCB, sleep=0):
    lp, dn = a.newlabel("lw"), a.newlabel("lwd")
    rt = retry(a, lp, dn, sleep)
    a.label(lp)
    a(f"ds_read_b32 v{vPOLL}, v{vaddr} offset:{off}", "s_waitcnt lgkmcnt(0)", f"v_readfirstlane_b32 s82, v{vPOLL}",
      f"s_cmp_ge_u32 s82, {target}", f"s_cbranch_scc0 {rt}")
    a.label(dn)
def pre_wait(a, off, target, vaddr=vCB):
    lp, dn, rt = a.newlabel("pw"), a.newlabel("pwd"), a.newlabel("pwr")
    OOL.append([rt + ":", f"ds_read_b32 v{vPOLL}, v{vaddr} offset:{off}", f"s_sub_u32 s{sBUD}, s{sBUD}, 1", "s_waitcnt lgkmcnt(0)",
                f"s_cbranch_scc0 {lp}", f"s_mov_b32 s{sBUD}, 0", f"s_branch {dn}"])
    a.label(lp)
    a(f"v_readfirstlane_b32 s82, v{vPOLL}", f"s_cmp_ge_u32 s82, {target}", f"s_cbranch_scc0 {rt}")
    a.label(dn)
def flag_wait(a, off, vaddr, sleep=0):
    lp, dn = a.newlabel("fw"), a.newlabel("fwd")
    rt = retry(a, lp, dn, sleep)
    a.label(lp)
    a(f"ds_read_b32 v{vPOLL}, v{vaddr} offset:{off}", "s_waitcnt lgkmcnt(0)", f"v_cmp_eq_u32 vcc, 0, v{vPOLL}", f"s_cbranch_vccnz {rt}")
    a.label(dn)
def gpoll(a, vaddr, soff, sleep=2, nl=64):
    lp, dn = a.newlabel("gp"), a.newlabel("gpd")
    rt = retry(a, lp, dn, sleep)
    if nl < 64: a(f"s_mov_b64 exec, {(1 << nl) - 1:#x}")
    a.label(lp)
    a(f"buffer_load_dword v{vPOLL}, v{vaddr}, {rWS}, {soff} offen sc1", "s_waitcnt vmcnt(0)",
      f"v_cmp_ne_u32 vcc, s{sN}, v{vPOLL}", f"s_cbranch_vccnz {rt}")
    a.label(dn)
    if nl < 64: a("s_mov_b64 exec, -1")
def flag_store(a, soff):
    a(f"v_mov_b32 v3, s{sN}", "s_mov_b64 exec, 1", f"buffer_store_dword v3, off, {rWS}, {soff} sc1", "s_mov_b64 exec, -1")
def skip_ool(a):
    pass

class VQ:
    def __init__(self, a): self.a = a; self.q = []
    def issue(self, tag): self.q.append(tag)
    def wait(self, *tags):
        idx = max([i for i, t in enumerate(self.q) if t in tags], default=-1)
        if idx < 0: return
        n = len(self.q) - 1 - idx
        assert n <= 63
        self.a(f"s_waitcnt vmcnt({n})")
        self.q = self.q[idx+1:]
    def drain(self): self.q = []

def won(a, role): a.raw(f"@W+ {role}")
def woff(a): a.raw("@W-")
def warm_call(a, role, nchain, sel, extra=None):
    if not OPT["warm"]: return
    a("s_mov_b64 exec, 0")
    for c in range(nchain):
        a(f"s_cmp_eq_u32 {sel}, {c}", f"s_cbranch_scc1 L_w{role}_{c}")
    if extra: a(f"s_cmp_eq_u32 {sel}, {extra[0]}", f"s_cbranch_scc1 {extra[1]}")
    a.label(f"L_wret_{role}")
    a("s_mov_b64 exec, -1")
def insert_hops(lines, nchain):
    out = []; role = None; cnt = 0; spots = {}
    for l in lines:
        if l.startswith("@W+"): role = l.split()[1]; cnt = OPT["wstep"]; continue
        if l.startswith("@W-"): role = None; continue
        isins = l.startswith("    ") and not l.strip().startswith(";")
        if role and isins and OPT["warm"]:
            if cnt >= OPT["wstep"]:
                spots.setdefault(role, []).append(len(out)); out.append(None); cnt = 0
            cnt += 1
        out.append(l)
    for role, sp in spots.items():
        n = nchain[role]; per = -(-len(sp) // n)
        for k, pos in enumerate(sp):
            c, first, last = k // per, k % per == 0, (k % per == per-1 or k == len(sp)-1)
            lab = f"L_w{role}_{c}" if first else f"L_h{role}_{k}"
            tgt = f"L_wret_{role}" if last else f"L_h{role}_{k+1}"
            out[pos] = f"{lab}:\n    s_cbranch_execz {tgt}"
        assert -(-len(sp) // per) == n, (role, len(sp), per, n)
    return out

def gen(a):
    kernel_header(a, NAME)
    a("s_cmp_ge_u32 s2, 256", "s_cbranch_scc1 L_end")
    a("s_load_dwordx16 s[48:63], s[0:1], 0", "s_load_dwordx4 s[64:67], s[0:1], 64", "s_load_dwordx2 s[68:69], s[0:1], 80")
    a("v_lshrrev_b32 v2, 6, v0", "v_and_b32 v1, 63, v0")
    a("s_bfe_u32 s73, s2, 0x10003", "s_and_b32 s4, s2, 3", "s_lshl1_add_u32 s4, s4, s73", "s_bfe_u32 s5, s2, 0x10002")
    a("v_readfirstlane_b32 s3, v2")
    a("s_lshr_b32 s72, s2, 4", "s_lshl4_add_u32 s5, s5, s72")
    a("s_lshl2_add_u32 s72, s73, s5", "s_and_b32 s72, s72, 7")
    if OPT["tr"]:
        trace_init(a); OPT["tr"].add("start"); trace(a, "start")
    a("s_cmp_ge_u32 s3, 4", "s_cbranch_scc1 L_awave")
    gen_loader(a)
    gen_gwave(a)
    a.label("L_end")
    a("s_endpgm")
    emit_ool(a)
    a.raw(".p2align 6")
    a.label("L_awave")
    gen_awave(a)
    emit_ool(a)
    a.label("L_codeend")
    a.lines = insert_hops(a.lines, {"a": 3})
    if OPT["dbg"]:
        out = []; n = 0; last = ""
        for l in a.lines:
            if l.endswith(":"): last = l
            if l.strip() == f"s_mov_b32 s{sBUD}, 0":
                n += 1; print("wait id", n, "after", last)
                out += [f"    s_cmp_eq_u32 s59, 0", f"    s_cmov_b32 s59, {n}"]
            if l.strip() == f"s_mov_b32 s{sBUD}, 200000": out.append("    s_mov_b32 s82, 0")
            out.append(l)
        a.lines = out
    return kernel_desc(NAME, 168, 102)

def common(a):
    a("s_bfe_u32 s71, s2, 0x20003", "s_lshr_b32 s7, s2, 5", "s_and_b32 s6, s2, 7", "s_lshl2_add_u32 s6, s6, s71")
    a(f"v_mov_b32 v{vCB}, {CB}", f"v_mov_b32 v{vONE}, 1", f"s_mov_b32 s{sBUD}, 200000", "v_lshlrev_b32 v2, 4, v1")
def slicep(a):
    a("s_bfe_u32 s101, s5, 0x10003", "s_lshl1_add_u32 s101, s4, s101", "s_and_b32 s78, s2, 3",
      "s_mov_b32 s100, 0x120c0600", "s_cmp_eq_u32 s78, 1", "s_cmov_b32 s100, 0x26211c17", "s_cmp_eq_u32 s78, 2", "s_cmov_b32 s100, 0x3c36302b",
      "s_cmp_eq_u32 s78, 3", "s_cmov_b32 s100, 0x514c4742", "s_lshl_b32 s78, s101, 3", "s_lshr_b32 s100, s100, s78", "s_and_b32 s100, s100, 0xff",
      "s_lshr_b32 s97, 0xe07, s101", "s_and_b32 s97, s97, 1")
def epoch(a): a(f"s_add_u32 s44, s68, {EP:#x}", "s_addc_u32 s45, s69, 0", f"s_load_dword s{sN}, s[44:45], 0")
SLOT = 24576

vWd, vT2, vG, vTH, vP1, vGA = 8, 9, 10, 60, 61, 13
sH0, sW0, sW1, sR = 60, 62, 63, 64
Wf = [12, 20]; HD = 4; H = [28 + 8*i for i in range(HD)]
accD = [104 + 16*i for i in range(4)]
WF = 40; OFR = 8
NS = 3
vR0, vR1 = 2, 5
sT = 55
def dconst(a):
    a(f"s_lshl_b32 s{sT}, s6, 12", f"s_add_u32 s{sT}, s{sT}, {FH + 14*128:#x}", f"v_add_u32 v{vP1}, s{sT}, v7")
    a("v_bfe_u32 v3, v1, 2, 3", f"v_lshl_add_u32 v{vWd}, v3, 10, v14", "s_lshr_b32 s78, s3, 1", "s_lshl_b32 s78, s78, 6", f"v_xor_b32 v{vWd}, s78, v{vWd}")
    a("v_bfe_u32 v9, v1, 1, 2", "v_lshlrev_b32 v9, 3, v9", "v_bfe_u32 v11, v1, 3, 1", "v_lshl_add_u32 v9, v11, 6, v9",
      "s_lshr_b32 s78, s6, 2", "s_lshl_b32 s78, s78, 7", f"s_lshr_b32 s{sT}, s3, 1", f"s_lshl_b32 s{sT}, s{sT}, 10", f"s_add_u32 s78, s78, s{sT}",
      f"s_and_b32 s{sT}, s3, 1", f"s_lshl_b32 s{sT}, s{sT}, 5", f"s_add_u32 s78, s78, s{sT}", "s_add_u32 s78, s78, s71",
      f"s_lshr_b32 s{sT}, s6, 4", f"s_lshl2_add_u32 s78, s{sT}, s78", "v_add_u32 v9, s78, v9", "v_and_b32 v11, 1, v1", "v_lshlrev_b32 v11, 9, v11", "v_xor_b32 v9, v9, v11",
      "v_cmp_gt_u32 vcc, 16, v1", "v_lshlrev_b32 v9, 7, v9", f"v_add_u32 v9, {FP:#x}, v9",
      f"v_cndmask_b32 v{vP1}, v{vP1}, v9, vcc")
    a(f"s_mul_i32 s{sH0}, s3, {22*65536}", "s_lshl_b32 s78, s6, 11", f"s_add_u32 s{sH0}, s{sH0}, s78")
    a(f"s_lshl_b32 s{sW0}, s3, 17", "s_lshl_b32 s78, s7, 7", f"s_add_u32 s{sW0}, s{sW0}, s78")
    a(f"s_mul_i32 s{sW1}, s3, {22*16384}", f"s_add_u32 s{sW1}, s{sW1}, s78")
    a(f"s_mul_i32 s{sR}, s3, 7680", f"s_add_u32 s{sR}, s{sR}, {RING}")
    a("v_lshrrev_b32 v3, 5, v1", "v_lshlrev_b32 v3, 2, v3", "v_bfe_u32 v9, v1, 2, 2", "v_add_u32 v3, v3, v9", "v_lshlrev_b32 v3, 6, v3",
      "v_bfe_u32 v9, v1, 4, 1", "v_lshl_add_u32 v3, v9, 5, v3", "v_and_b32 v9, 3, v1", "v_lshl_add_u32 v3, v9, 3, v3", f"v_add_u32 v{vT2}, s{sR}, v3",
      "v_lshrrev_b32 v3, 5, v1", "v_mul_u32_u24 v3, 768, v3", f"v_add_u32 v63, v3, v{vT2}")
    a("v_lshrrev_b32 v3, 4, v1", "v_lshlrev_b32 v3, 16, v3", "v_and_b32 v11, 15, v1", f"v_lshl_add_u32 v{vTH}, v11, 7, v3",
      f"v_and_b32 v{vGA}, 31, v1", f"v_lshlrev_b32 v{vGA}, 2, v{vGA}")
    a("s_lshr_b32 s57, s2, 3", "s_lshl2_add_u32 s57, s57, s3", "s_lshl_b32 s58, s57, 12", f"s_mul_i32 s57, s57, {86*128}")


def gen_loader(a):
    vX0, vX1, vW, vW1, vG0, vG2 = 16, 17, 18, 19, 20, 21
    a("s_setprio 3")
    a("v_lshrrev_b32 v19, 3, v1", "v_lshrrev_b32 v3, 4, v1", "v_and_b32 v7, 7, v1", "v_xor_b32 v3, v3, v7",
      "v_lshlrev_b32 v3, 4, v3", f"v_lshl_add_u32 v{vX0}, v19, 10, v3",
      f"v_xor_b32 v{vX1}, 64, v{vX0}", f"v_add_u32 v{vX1}, {0x2000 - 1024}, v{vX1}")
    a("v_bfe_u32 v20, v1, 2, 3", "v_mul_u32_u24 v19, 3072, v20", "v_lshrrev_b32 v3, 5, v1", "v_and_b32 v7, 3, v1", "v_lshlrev_b32 v7, 4, v7",
      "v_lshl_add_u32 v14, v3, 6, v7", f"v_add_u32 v{vW}, v19, v14", f"v_add_u32 v{vW1}, {8*3072 - 1024}, v{vW}", f"v_xor_b32 v{vW1}, 32, v{vW1}")
    a("s_lshl_b32 s74, s5, 16", "s_lshl_b32 s78, s3, 14", "s_add_u32 s74, s74, s78")
    a("s_mul_i32 s75, s3, 49152", "s_lshl_b32 s78, s4, 7", "s_add_u32 s75, s75, s78")
    a("s_lshl_b32 s76, s3, 11", f"s_add_u32 s77, s76, {P1W}", "s_mov_b32 s73, s72")
    a("s_mov_b32 s10, 0x200000", "s_mov_b32 s11, 0x20000", "s_mov_b32 s14, 0x180000", "s_mov_b32 s15, 0x20000")
    def xunit():
        a("s_lshl_b32 s78, s72, 7", "s_mov_b32 m0, s76", "s_add_u32 s78, s78, s74",
          f"buffer_load_dwordx4 v{vX0}, {rX}, s78 offen lds", f"buffer_load_dwordx4 v{vX1}, {rX}, s78 offen offset:1024 lds",
          "s_add_u32 s76, s76, 8192", "s_add_u32 s72, s72, 1", "s_and_b32 s72, s72, 7")
    def wblock():
        a("s_mul_i32 s79, s73, 196608", "s_mov_b32 m0, s77", "s_add_u32 s79, s79, s75")
        for mat in range(3):
            if mat: a(f"s_add_u32 m0, s77, {mat*(8192 - 1024)}", "s_add_u32 s73, s73, 1" if mat == 1 else "s_and_b32 s73, s73, 7")
            a(f"buffer_load_dwordx4 v{vW}, {rWQ}, s79 offen offset:{mat*1024} lds", f"buffer_load_dwordx4 v{vW1}, {rWQ}, s79 offen offset:{mat*1024 + 1024} lds")
    def nslot(): a(f"s_add_u32 s77, s77, {SLOT}", "s_cmp_eq_u32 s77, s81", "s_cmov_b32 s77, s80")
    def whalf(second):
        a("s_bfe_u32 s78, s5, 0x10003")
        if second: a("s_xor_b32 s78, s78, 1")
        a("s_lshl_b32 s47, s78, 5", f"v_xor_b32 v27, s47, v{vW}")
        a("s_mul_i32 s79, s73, 196608", "s_add_u32 s79, s79, s75", f"s_mul_i32 s47, s78, {8*3072}", "s_add_u32 s79, s79, s47", "s_lshl_b32 s78, s78, 10", "s_add_u32 s78, s78, s77")
        for mat in range(3):
            a(f"s_add_u32 m0, s78, {mat*(8192 - 1024)}", "s_nop 0", f"buffer_load_dwordx4 v27, {rWQ}, s79 offen offset:{mat*1024} lds")
        if second: a("s_add_u32 s73, s73, 1", "s_and_b32 s73, s73, 7")
    a("s_waitcnt lgkmcnt(0)")
    a("s_mov_b64 s[8:9], s[48:49]", "s_mov_b64 s[12:13], s[50:51]")
    stamp(a)
    if OPT["fs"]:
        xunit(); whalf(0); xunit()
    else:
        xunit(); wblock()
    epoch(a); common(a)
    a("s_mov_b32 s80, s77", f"s_add_u32 s81, s77, {4*SLOT}")
    a("s_cmp_lt_u32 s3, 2", "s_cselect_b32 s24, s56, s58", "s_cselect_b32 s25, s57, s59", f"s_mov_b32 s26, {512*1376*2:#x}", "s_mov_b32 s27, 0x20000",
      "s_cselect_b32 s78, 0, 32")
    a("v_lshrrev_b32 v3, 2, v1", "v_mul_u32_u24 v3, 2752, v3", "v_add_u32 v3, v3, v7", f"v_and_b32 v{vG0}, 32, v1", f"v_xor_b32 v{vG0}, v{vG0}, v3")
    slicep(a)
    a("s_and_b32 s100, s100, -2")
    a.srd(16, 68, 69, 16*MB)
    a.srd(20, 68, 69, HF_BYTES, add=HF)
    a.srd(28, 60, 61, 1376*512*2)
    a.srd(32, 52, 53, 512*512*2)
    a.srd(36, 64, 65, 2048*512*2)
    a.srd(40, 62, 63, 1024)
    a("v_lshlrev_b32 v7, 7, v1")
    if OPT["dbg"]: a("s_mov_b32 s59, 0")
    dconst(a)
    a("s_lshr_b32 s78, s3, 1", "s_lshr_b32 s66, 0xfef7, s101", "s_and_b32 s66, s66, 1", "s_or_b32 s66, s66, s78", f"s_add_u32 s46, s73, {1 if OPT['fs'] else 0}")
    def sig(n):
        a(f"s_waitcnt vmcnt({n})", "s_barrier"); trace(a, "ld")
    def wb():
        nslot(); wblock()
    if OPT["fs"] == 1:
        whalf(1); wb(); sig(6)
        xunit(); xunit(); sig(4)
        wb(); wb(); sig(6)
        xunit(); wb(); sig(8)
        xunit(); wb(); xunit(); sig(10)
        wb(); xunit(); wb(); sig(16)
    elif OPT["fs"] == 2:
        whalf(1); wb(); sig(6)
        wb(); xunit(); xunit(); sig(10)
        wb(); sig(8)
        xunit(); wb(); xunit(); sig(10)
        wb(); xunit(); wb(); sig(16)
        xunit(); wb(); sig(16)
    elif OPT["fs"] in (3, 4):
        whalf(1); wb(); sig(6)
        if OPT["fs"] == 3:
            wb(); xunit(); xunit(); sig(10)
            wb(); sig(8)
        else:
            xunit(); xunit(); sig(4)
            wb(); wb(); sig(6)
        for n in range(3):
            xunit(); wb(); sig(8)
        xunit(); wb()
    else:
        xunit(); xunit(); xunit()
        sig(6)
        wb(); wb(); sig(6)
        wb(); sig(6)
        xunit(); wb(); xunit(); sig(10)
        wb(); xunit(); wb(); sig(16)
        xunit(); wb(); sig(16)
    a("s_lshl_b32 s75, s100, 5", "s_and_b32 s78, s3, 1", f"s_mul_i32 s77, s78, {KST}", "s_add_u32 s75, s75, s77",
      "s_mul_i32 s77, s78, 6144", "s_lshr_b32 s78, s3, 1", "s_mul_i32 s78, s78, 3072", "s_add_u32 s77, s77, s78",
      "s_xor_b32 s74, s74, 0x80000", "s_lshl_b32 s80, s3, 11")
    R_ = OPT["rot"]
    def gblk(m, dst): a(f"s_add_u32 s{dst}, s46, {m + 7}", f"s_and_b32 s{dst}, s{dst}, {R_ - 1}", f"s_or_b32 s{dst}, s{dst}, {m // R_ * R_}")
    def gw(m, cut=6, mid=None):
        base = P1W + [0, 2, 3][m % 3]*SLOT
        if cut == 0: mid()
        gblk(m, 73)
        a(f"s_mul_i32 s79, s73, {4*KST}", f"s_add_u32 m0, s77, {base}", "s_add_u32 s79, s79, s75")
        for e in range(2):
            for t in range(3):
                if e or t: a(f"s_add_u32 m0, s77, {base + e*12288 + t*(1024 - 64)}", f"s_add_u32 s79, s79, {2*KST}" if (e, t) == (1, 0) else "s_nop 0")
                a(f"buffer_load_dwordx4 v{vG0}, {rWG}, s79 offen offset:{t*64} lds")
                if mid and 3*e + t + 1 == cut: mid()
    def gx(m):
        a(f"s_add_u32 s76, s80, {P1W + SLOT + ((m+2) % 3)*8192}")
        gblk(m, 72)
        xunit()
    if OPT["fs"] >= 3:
        sig(8); gw(0); gx(0); sig(8)
    else:
        gw(0); sig(14); gx(0); sig(8)
    a("s_waitcnt lgkmcnt(0)", f"s_add_u32 s{sN}, s{sN}, 1")
    if OPT["sprio"]: a("s_setprio 2")
    def gate(m, part):
        p = m - 1
        if (part == 0 and p == 4) or (part == 1 and p > 4): return
        m = 2*m + part
        with Ool(a):
            a.label(f"L_gt{m}")
            if p == 0 and part:
                a("v_and_b32 v15, 31, v1", "v_lshrrev_b32 v26, 5, v1", "v_bfe_u32 v22, v1, 1, 3", "v_xor_b32 v3, v26, v22",
                  "v_lshlrev_b32 v3, 4, v3", "v_lshl_add_u32 v22, v15, 7, v3", "s_lshl_b32 s78, s3, 12", "v_add_u32 v22, s78, v22",
                  "v_xor_b32 v23, 32, v22", "v_xor_b32 v24, 64, v22", "v_xor_b32 v25, 96, v22")
            if 1 <= p <= 4 and part:
                q = p - 1
                rdx = lambda n: f"ds_read_b128 {vr(152+4*(n&3),4)}, v{22+(n&3)} offset:{(2*q + (n>>2))*8192}"
                a(*[rdx(n) for n in range(4)])
                for n in range(8):
                    a(f"s_waitcnt lgkmcnt({min(3, 7-n)})", f"{MFMA} {vr(136,16)}, {vr(72+32*(q&1)+4*n,4)}, {vr(152+4*(n&3),4)}, {'0' if (q == 0 and n == 0) else vr(136,16)}")
                    if n + 4 < 8: a(rdx(n+4))
            if p < 4 and not part:
                a("v_lshrrev_b32 v26, 5, v1", "v_lshlrev_b32 v26, 4, v26")
                for i in range(2):
                    a(f"s_add_u32 s78, s46, {2*p+i+7}", "s_and_b32 s78, s78, 7", "s_lshl_b32 s78, s78, 7")
                    for ks in range(4): a(f"buffer_load_dwordx4 {vr(72+32*(p&1)+16*i+4*ks,4)}, v26, {rGW}, s78 offen offset:{ks*32}")
            if p == 5:
                a("s_lshl1_add_u32 s78, s5, s3", "s_lshl_b32 s78, s78, 7", f"s_add_u32 s78, s78, {GT:#x}", f"s_mov_b32 s79, {fbits(-LOG2E):#x}",
                  "v_mul_f32 v136, s79, v136", "v_exp_f32 v136, v136", "s_nop 0", "v_add_f32 v136, 1.0, v136", "v_rcp_f32 v136, v136", "s_nop 0",
                  f"buffer_store_dword v136, v{vGA}, {rWS}, s78 offen sc1")
            if p == 6:
                a("s_lshl_b32 s78, s5, 5", "s_add_u32 s78, s78, s3", "s_lshl_b32 s78, s78, 7", f"s_add_u32 s78, s78, {FH + 30*128:#x}")
                flag_store(a, "s78")
            a(f"s_branch L_gtr{m}")
        a("s_cmp_eq_u32 s66, 0", f"s_cbranch_scc1 L_gt{m}")
        a.label(f"L_gtr{m}")
    for m in range(1, 8):
        cut = {1: OPT["e1"], 5: OPT["e5"]}.get(m, 6)
        gate(m, 0); gx(m)
        if cut == 6:
            gw(m); gate(m, 1); sig(8)
        else:
            gw(m, cut, lambda: sig(2 + cut)); gate(m, 1)
    a("s_lshr_b32 s76, s6, 2", "s_lshl_b32 s76, s76, 12", f"s_add_u32 s76, s76, {FQ:#x}", "s_mov_b32 exec_hi, 0",
      f"buffer_load_dword v{vPOLL}, v7, {rWS}, s76 offen sc1")
    a("s_lshl_b32 s81, s3, 10", f"s_mul_i32 s80, s3, {VST}", f"s_add_u32 s80, s80, {VB}",
      "s_lshl_b32 s79, s6, 16", "s_add_u32 s79, s79, s81", f"s_add_u32 s79, s79, {KF:#x}", "s_mov_b32 s74, 0")
    with Ool(a):
        a.label("L_g_p0r")
        gpoll(a, 7, "s76", sleep=1)
        a("s_branch L_g_p0k")
    a("s_waitcnt vmcnt(0)", f"v_cmp_ne_u32 vcc, s{sN}, v{vPOLL}", "s_cbranch_vccnz L_g_p0r")
    a.label("L_g_p0k")
    a("s_mov_b64 exec, -1", "s_barrier")
    trace(a, "ld")
    kvpair(a); kvpair(a)
    a("s_barrier")
    a.label("L_ld_done")
    a("s_setprio 3")
    stamp(a)

def kvpair(a):
    a("s_mov_b32 m0, s81", f"s_add_u32 s76, s79, {VF - KF:#x}", f"buffer_load_dwordx4 v2, {rWS}, s79 offen sc1 lds",
      "s_mov_b32 m0, s80", "s_add_u32 s77, s79, 0x8000", f"buffer_load_dwordx4 v2, {rWS}, s76 offen sc1 lds",
      "s_add_u32 m0, s81, 0x8000", "s_add_u32 s76, s76, 0x8000", f"buffer_load_dwordx4 v2, {rWS}, s77 offen sc1 lds",
      f"s_add_u32 m0, s80, {32*VST}", "s_add_u32 s79, s79, 4096", f"buffer_load_dwordx4 v2, {rWS}, s76 offen sc1 lds",
      "s_add_u32 s81, s81, 4096", f"s_add_u32 s80, s80, {4*VST}")

Kf, Qa, Qb, V1, V2, Sa, Sb, Oa, Ob = 8, 16, 20, 24, 28, 32, 48, 64, 80
IDX, vK, vV0, vV1, vHC, vGT, vTC, vL4, vON, vST, vF4, vE0, vE1, vE2, vWg, vSK = range(152, 168)
HA = 104
def gen_awave(a):
    vXa = [8, 9, 10, 11]; vWb, vWa, vXb = 12, 13, 14
    a("s_sub_u32 s3, s3, 4", f"v_lshlrev_b32 v{vTC}, 7, v1")
    a("s_cmp_lg_u32 s3, 0", "s_cbranch_scc1 L_a_nocode")
    a("s_getpc_b64 s[40:41]")
    a.label("L_pc")
    a(f"s_sub_u32 s40, s40, L_pc-{NAME}", "s_subb_u32 s41, s41, 0", f"s_mov_b32 s42, L_codeend-{NAME}", "s_mov_b32 s43, 0x20000",
      "s_lshr_b32 s76, s2, 3", "s_lshl_b32 s76, s76, 10", "s_mov_b64 exec, 0xff", f"buffer_load_dword v{vGT}, v{vTC}, s[40:43], s76 offen", "s_mov_b64 exec, -1")
    a.label("L_a_nocode")
    common(a)
    a("s_bfe_u32 s73, s3, 0x10001", "s_and_b32 s74, s3, 1", "s_lshr_b32 s75, s3, 2")
    a("v_and_b32 v15, 15, v1", "v_lshrrev_b32 v16, 4, v1", "v_bfe_u32 v7, v1, 1, 3", "v_xor_b32 v3, v16, v7",
      "v_lshlrev_b32 v3, 4, v3", "v_lshl_add_u32 v15, v15, 7, v3",
      "s_lshl_b32 s76, s73, 12", f"v_add_u32 v{vXb}, s76, v15", f"v_mov_b32 v{vXa[0]}, v{vXb}")
    a("v_bfe_u32 v3, v1, 2, 2", "v_lshlrev_b32 v15, 6, v3", "v_and_b32 v3, 3, v1", "v_lshl_add_u32 v15, v3, 3, v15",
      "v_bfe_u32 v3, v1, 4, 1",
      "v_lshl_add_u32 v7, v16, 10, v15", "v_lshl_add_u32 v7, v3, 5, v7",
      "s_lshl_b32 s76, s74, 9", f"s_add_u32 s76, s76, {P1W}", f"v_add_u32 v{vWb}, s76, v7")
    a("v_lshl_add_u32 v15, v3, 9, v15", "v_lshrrev_b32 v16, 5, v1", "v_mul_u32_u24 v7, 6144, v16", "v_add_u32 v15, v15, v7", "s_mov_b32 s47, s72", "s_xor_b32 s72, s74, s75", "v_xor_b32 v7, s72, v3",
      "v_lshl_add_u32 v15, v7, 5, v15", f"v_add_u32 v{vWg}, {P1W}, v15")
    a("s_waitcnt lgkmcnt(0)")
    epoch(a)
    a.srd(16, 68, 69, 16*MB)
    a.srd(20, 68, 69, HF_BYTES, add=HF)
    if OPT["tlb"]:
        with Ool(a):
            a.label("L_a_tlb")
            a("v_lshlrev_b32 v3, 20, v1", "s_mov_b64 exec, 0xffff", f"buffer_load_dword v{vGT}, v3, {rWS}, 0 offen", f"buffer_load_dword v{vGT}, v3, {rHF}, 0 offen",
              "s_mov_b64 exec, 3", "s_mov_b32 s27, 0x20000")
            for p, n in ((56, 512*1376*2), (58, 512*1376*2), (60, 512*1376*2), (52, 512*512*2), (64, 2048*512*2), (62, 1024)):
                a(f"s_mov_b64 s[24:25], s[{p}:{p+1}]", f"s_mov_b32 s26, {n:#x}", f"buffer_load_dword v{vGT}, v3, s[24:27], 0 offen")
            a("s_mov_b64 exec, -1", "s_branch L_a_tlbr")
        a("s_cmp_eq_u32 s3, 1", "s_cbranch_scc1 L_a_tlb")
        a.label("L_a_tlbr")
    if OPT["dbg"]: a("s_mov_b32 s59, 0")
    a("s_lshl1_add_u32 s48, s5, s73")
    a("s_and_b32 s77, s3, 3")
    a("s_lshl_b32 s76, s75, 15", f"v_add_u32 v{vK}, s76, v2")
    a("v_and_b32 v3, 15, v1", "v_lshlrev_b32 v3, 4, v3", "v_lshrrev_b32 v7, 5, v1", "v_lshl_add_u32 v3, v7, 8, v3",
      "v_and_b32 v7, 27, v1", "v_cmp_eq_u32 vcc, 16, v7", "v_mov_b32 v16, 0x18000", "v_mov_b32 v15, 1024",
      "v_cndmask_b32 v16, v16, v15, vcc",
      "v_and_b32 v7, 16, v1", "v_cmp_eq_u32 vcc, 0, v7", "v_add_u32 v15, 512, v3",
      f"s_mul_i32 s76, s75, {32*VST}", f"s_add_u32 s76, s76, {VB}",
      f"v_cndmask_b32 v{vV0}, v16, v3, vcc", f"v_cndmask_b32 v{vV1}, v16, v15, vcc",
      f"v_add_u32 v{vV0}, s76, v{vV0}", f"v_add_u32 v{vV1}, s76, v{vV1}")
    a(f"v_lshl_add_u32 v{vST}, v7, 5, v3", f"v_mov_b32 v{IDX}, 0xdddd")
    a(f"v_and_b32 v{vL4}, 31, v1", f"v_lshlrev_b32 v{vL4}, 2, v{vL4}")
    a(f"v_mul_u32_u24 v{vON}, {VST//4}, v{vL4}", "s_add_u32 s76, s76, 1024", f"v_add_u32 v{vON}, s76, v{vON}")
    a("s_lshl_b32 s76, s75, 2", f"v_add_u32 v{vHC}, s76, v{vCB}")
    a("v_and_b32 v3, 3, v1", f"v_lshl_add_u32 v{vF4}, v3, 2, v{vCB}")
    a("s_mul_i32 s79, s77, 2304", "s_lshl_b32 s80, s75, 15", "s_add_u32 s79, s79, s80", f"v_add_u32 v{vE0}, s79, v2",
      f"v_lshrrev_b32 v{vE1}, 2, v2", f"v_add_u32 v{vE1}, s79, v{vE1}", "s_lshl_b32 s80, s3, 2", f"v_add_u32 v{vE2}, s80, v{vCB}")
    a("s_lshl_b32 s88, s7, 3", "s_lshl1_add_u32 s88, s77, s88", "s_add_u32 s88, s88, s75", "s_lshl_b32 s89, s6, 16")
    a("s_lshl_b32 s90, s88, 10", "s_add_u32 s90, s90, s89", "s_xor_b32 s91, s90, 1024")
    a("s_lshl_b32 s95, s75, 5", "s_add_u32 s95, s95, s77", "s_lshl_b32 s94, s95, 10", f"s_mul_i32 s95, s95, {VST}", f"s_add_u32 s95, s95, {VB}",
      "s_add_u32 s92, s89, s94", f"s_add_u32 s92, s92, {KF:#x}", f"s_add_u32 s93, s92, {VF - KF:#x}")
    a("s_lshl_b32 s96, s4, 5", "s_add_u32 s96, s96, s5", "s_lshl_b32 s96, s96, 7", f"s_add_u32 s96, s96, {FQ:#x}")
    slicep(a)
    a("s_xor_b32 s76, s100, s72", "s_and_b32 s76, s76, 1", "s_add_u32 s98, s100, s76", "s_xor_b32 s79, s76, 1", "s_or_b32 s97, s97, s79",
      "s_and_b32 s76, s76, s100", "s_lshl_b32 s76, s76, 10", f"v_add_u32 v{vWg}, s76, v{vWg}")
    a("s_lshl_b32 s76, s75, 3", "s_xor_b32 s76, s76, s5", "s_lshl_b32 s98, s98, 16", "s_lshl1_add_u32 s79, s76, s73",
      "s_lshl_b32 s79, s79, 10", "s_add_u32 s98, s98, s79",
      "s_lshl4_add_u32 s99, s76, s101", "s_lshl2_add_u32 s99, s99, s77", "s_lshl_b32 s99, s99, 7", f"s_add_u32 s99, s99, {FP:#x}")
    a("s_lshl_b32 s49, s4, 2", "s_lshl1_add_u32 s49, s74, s49", "s_lshl_b32 s49, s49, 6", "s_add_u32 s49, s49, s48", "s_lshl_b32 s49, s49, 10")
    a("s_mov_b32 s60, 0")
    for m in range(7, -1, -1):
        a(f"s_add_u32 s76, s47, {m}", f"s_and_b32 s76, s76, {OPT['rot'] - 1}", f"s_add_u32 s76, s76, {m // OPT['rot'] * OPT['rot'] + 8}", "s_sub_u32 s76, s76, s47",
          "s_and_b32 s76, s76, 7", "s_lshl4_add_u32 s60, s60, s76")
    a("s_cmp_lg_u32 s75, 0", f"s_cmov_b32 s60, {sum((11 + (m+2) % 3) << (4*m) for m in range(8)):#x}")
    for r in range(16, 40): a(f"v_mov_b32 v{r}, 0")
    a("s_mov_b32 s79, 0", "s_mov_b32 s80, 0")
    def nslot(): a(f"s_add_u32 s80, s80, {SLOT}", f"s_cmp_eq_u32 s80, {4*SLOT}", "s_cmov_b32 s80, 0")
    def consumer(lab, steps, buf, nstage, adv, hook=None, pre=False, odd=True):
        per = 8 + 4*len(steps[0][1])
        nrd = 2 + 2*len(steps[0][1])
        tot = nrd*len(steps)
        def readlist(b):
            r = []
            for i, (xr, ws) in enumerate(steps):
                f = buf[b] + per*i
                r += [f"ds_read_b128 {vr(f,4)}, v{xr}", f"ds_read_b128 {vr(f+4,4)}, v{xr} offset:2048"]
                for n, (wa, wo, acc, sw) in enumerate(ws):
                    r += [f"ds_read_b64_tr_b16 {vr(f+8+4*n,2)}, v{wa} offset:{wo}", f"ds_read_b64_tr_b16 {vr(f+10+4*n,2)}, v{wa} offset:{wo+256}"]
            return r
        def m1(b, i, n, th):
            f = buf[b] + per*i
            wa, wo, acc, sw = steps[i][1][n]
            A, B = (vr(f+4*th,4), vr(f+8+4*n,4)) if sw else (vr(f+8+4*n,4), vr(f+4*th,4))
            a(f"{M16} {vr(acc+4*th,4)}, {A}, {B}, {vr(acc+4*th,4)}")
        def mf(b, i, n):
            m1(b, i, n, 0); m1(b, i, n, 1)
        mms = [(i, n) for i in range(len(steps)) for n in range(len(steps[i][1]))]
        def front(b):
            sv = a.lines; a.lines = []
            adv()
            fill = readlist(1-b) + [l.strip() for l in a.lines]; a.lines = sv
            ml = [(i, n, th) for i, n in mms[:-1] for th in range(2)]
            ng = min(len(ml), max(1, (len(ml) + 2)*OPT["spr"]//100))
            pos = 0
            for g, x in enumerate(ml):
                m1(b, *x)
                if g < ng:
                    e = len(fill)*(g+1)//ng
                    a(*fill[pos:e]); pos = e
        def full(b):
            done = 0
            for i, n in mms:
                done += 4 if n == 0 else 2
                a(f"s_waitcnt lgkmcnt({min(15, tot - done)})")
                mf(b, i, n)
        a("s_barrier")
        trace(a, "p1")
        a(*readlist(0))
        adv()
        if pre == 1:
            full(0)
            a("s_barrier")
            a(*readlist(1))
            adv()
            a(f"s_branch {lab}_in2")
        elif pre == 2:
            a("s_waitcnt lgkmcnt(0)", "s_barrier")
            front(0)
            mf(0, *mms[-1])
            full(1)
            a("s_barrier")
            a(*readlist(0))
            adv()
            a("s_mov_b32 s79, 2", f"s_branch {lab}_in")
        else:
            a(f"s_branch {lab}_in")
        emit_ool(a)
        a.label(lab)
        mf(1, *mms[-1])
        a.label(lab + "_in")
        a("s_waitcnt lgkmcnt(0)")
        if odd: a("s_barrier")
        trace(a, "p1")
        front(0)
        a(f"s_cmp_eq_u32 s79, {nstage - 2}", f"s_cbranch_scc1 {lab}_e")
        if hook: hook(lab, lambda: mf(0, *mms[-1]))
        else:
            mf(0, *mms[-1])
            a.label(lab + "_in2")
            a("s_waitcnt lgkmcnt(0)", "s_barrier")
        trace(a, "p1")
        a("s_add_u32 s79, s79, 2")
        front(1)
        a(f"s_branch {lab}")
        emit_ool(a)
        a.label(lab + "_e")
        mf(0, *mms[-1])
        full(1)
    vWc, vWv, vWx = vXa[2], vXa[3], 15
    a("s_lshl_b32 s76, s75, 5", f"v_xor_b32 v{vWx}, s76, v{vWb}", "s_xor_b32 s76, s75, 1", "s_lshl_b32 s76, s76, 13", f"v_add_u32 v{vWb}, s76, v{vWb}")
    def addr1():
        a(f"v_add_u32 v{vWa}, s80, v{vWb}", f"v_add_u32 v{vWv}, s80, v{vWx}", f"v_xor_b32 v{vXa[1]}, 64, v{vXa[0]}", f"v_xor_b32 v{vWc}, 32, v{vWa}")
    def swaps(r0, n):
        a("s_nop 1")
        for r in range(r0, r0 + 4*n, 4): a(f"v_permlane16_swap_b32 v{r}, v{r+2}", f"v_permlane16_swap_b32 v{r+1}, v{r+3}")
    def adv1():
        nslot()
        a(f"v_add_u32 v{vXa[0]}, 8192, v{vXa[0]}")
        addr1()
    addr1()
    a("s_waitcnt lgkmcnt(0)", f"s_add_u32 s{sN}, s{sN}, 1")
    stamp(a)
    a("s_cmp_eq_u32 s75, 0", f"s_cselect_b32 s50, 1.0, {fbits(QSCALE):#x}", f"s_cselect_b32 s52, {KF:#x}, 0", "s_add_u32 s52, s52, s49", "s_add_u32 s53, s52, 0x10000",
      "s_lshl_b32 s54, s75, 16", "s_add_u32 s54, s54, s49", f"s_add_u32 s54, s54, {VF:#x}")
    consumer("L_p1", [(vXa[kk], [(vWa, kk*4096, 16, False), (vWc, kk*4096, 24, False), (vWv, 16384 + kk*4096, 32, True)]) for kk in range(2)], [48, 96], 8, adv1, pre=OPT['pre'])
    a.nop(3)
    for r in range(0, 16, 2): a(f"v_pk_mul_f32 {vr(16+r,2)}, {vr(16+r,2)}, s[50:51] op_sel_hi:[1,0]")
    for r in range(12): a(f"v_cvt_pk_bf16_f32 v{16+r}, v{16+2*r}, v{17+2*r}")
    swaps(16, 3)
    ST = [[f"buffer_store_dwordx4 v[16:19], v2, {rWS}, s52 offen sc1"], [f"buffer_store_dwordx4 v[20:23], v2, {rWS}, s53 offen sc1"],
          [f"buffer_store_dwordx4 v[24:27], v{vST}, {rWS}, s54 offen sc1"]]
    npre = {0: 0, 1: 1, 2: 2, -1: 3}[OPT["ns"]]
    for x in ST[:npre]: a(*x)
    stamp(a)
    for r in range(4): a(f"v_mov_b32 v{36+r}, 0")
    a("s_nop 1")
    for t in range(3): a(f"{MFMA} {vr(HA+16*t,16)}, v[36:39], v[36:39], 0")
    XR = P1W + SLOT
    assert XR == 11*8192
    a("s_mov_b32 s79, 0", "s_and_b32 s76, s60, 15", "s_lshl_b32 s76, s76, 13",
      "s_mov_b32 s56, 0", f"s_mov_b32 s57, {2*SLOT}", f"s_mov_b32 s58, {3*SLOT}",
      "s_cmp_eq_u32 s3, 7", f"s_cselect_b32 s81, {OPT['nd']}, -1")
    def addr2():
        a(f"v_add_u32 v{vXa[0]}, s76, v{vXb}", f"v_add_u32 v{vWa}, s56, v{vWg}")
    par = [0]
    def adv2():
        if par[0] == 0:
            a(f"v_xor_b32 v{vXa[0]}, 64, v{vXa[0]}", f"v_add_u32 v{vWa}, 12288, v{vWa}",
              "s_lshr_b32 s60, s60, 4", "s_and_b32 s76, s60, 15", "s_lshl_b32 s76, s76, 13",
              "s_mov_b32 s80, s56", "s_mov_b32 s56, s57", "s_mov_b32 s57, s58", "s_mov_b32 s58, s80")
        else:
            addr2()
        par[0] ^= 1
    def hook(lab, last):
        ev = {2*n: x for n, x in enumerate(ST[npre:])}
        ev[12] = [f"buffer_load_dwordx4 {vr(Qa,4)}, v2, {rWS}, s90 offen sc1", f"buffer_load_dwordx4 {vr(Qb,4)}, v2, {rWS}, s91 offen sc1"]
        with Ool(a):
            a.label(lab + "_d")
            a(f"s_cmp_eq_u32 s79, {OPT['nd']}", f"s_cbranch_scc1 {lab}_f", "s_barrier")
            for n, x in ev.items():
                a(f"s_cmp_eq_u32 s79, {n}", f"s_cbranch_scc0 {lab}_s{n}")
                if OPT["sprio"]: a("s_setprio 3", *x, "s_setprio 0")
                else: a(*x)
                a(f"s_branch {lab}_r")
                a.label(f"{lab}_s{n}")
            a(f"s_branch {lab}_r")
            a.label(lab + "_f")
            trace(a, "h")
            a("s_waitcnt vmcnt(0)", "s_cmp_eq_u32 s79, s81", "s_barrier", f"s_cbranch_scc0 {lab}_r")
            flag_store(a, "s96")
            a(f"s_branch {lab}_r")
        a(f"s_bitcmp1_b32 {sum(1 << n for n in list(ev) + [OPT['nd']])}, s79")
        last()
        a("s_waitcnt lgkmcnt(0)", f"s_cbranch_scc1 {lab}_d", "s_barrier")
        a.label(lab + "_r")
    addr2()
    a("s_cmp_eq_u32 s97, 0", "s_cbranch_scc1 L_g2")
    consumer("L_g3l", [(vXa[0], [(vWa, m*3072 + t*1024, HA + 16*t + 8*m, False) for t in range(3) for m in range(2)])], [40, 72], 16, adv2, hook, odd=False)
    a("s_branch L_gdone")
    a.label("L_g2")
    par[0] = 0
    consumer("L_g2l", [(vXa[0], [(vWa, m*3072 + t*1024, HA + 16*t + 8*m, False) for t in range(2) for m in range(2)])], [40, 72], 16, adv2, hook, odd=False)
    a.label("L_gdone")
    a("s_setprio 3")
    stamp(a)
    a("s_barrier")
    stamp(a)
    for r in range(4): a(f"v_mov_b32 v{V1+r}, 0x3f803f80")
    for r in range(4): a(f"v_mov_b32 v{V2+r}, 0")
    a(f"ds_write_b128 v{vON}, {vr(V1,4)}", f"v_add_u32 v3, v{vL4}, v{vCB}", f"ds_write_b32 v3, v{V2}", f"s_mov_b32 s80, {fbits(-LOG2E):#x}")
    for r in (Sb, Oa, Ob): a(f"{MFMA} {vr(r,16)}, {vr(V2,4)}, {vr(V2,4)}, 0")
    for t in range(3):
        g = HA + 16*t
        if t == 2: a("s_cmp_eq_u32 s97, 0", "s_cbranch_scc1 L_a_e2")
        for r in range(0, 8, 2): a(f"v_pk_mul_f32 {vr(g+r,2)}, {vr(g+r,2)}, s[80:81] op_sel_hi:[1,0]")
        for r in range(8): a(f"v_exp_f32 v{g+r}, v{g+r}")
        for r in range(0, 8, 2): a(f"v_pk_add_f32 {vr(g+r,2)}, {vr(g+r,2)}, 1.0 op_sel_hi:[1,0]")
        for r in range(8): a(f"v_rcp_f32 v{g+r}, v{g+r}")
        for r in range(0, 8, 2): a(f"v_pk_mul_f32 {vr(g+r,2)}, {vr(g+r,2)}, {vr(g+8+r,2)}")
        for r in range(4): a(f"v_cvt_pk_bf16_f32 v{g+8+r}, v{g+2*r}, v{g+1+2*r}")
        swaps(g+8, 1)
    a.label("L_a_e2")
    for r in range(4): a(f"v_mov_b32 v{HA+r}, -1")
    a("s_mov_b32 s77, s88", "s_mov_b32 s78, s89", "s_mov_b32 s48, s90")
    a("s_waitcnt vmcnt(0) lgkmcnt(0)", "s_barrier")
    stamp(a)
    a(f"ds_read_b128 {vr(Kf,4)}, v{vK}", f"ds_read_b128 {vr(V1,4)}, v{vV0}", "s_waitcnt lgkmcnt(1)",
      f"{MFMA} {vr(Sa,16)}, {vr(Kf,4)}, {vr(Qb,4)}, 0", "s_mov_b32 s76, 0x5f800000",
      f"v_xor_b32 v13, 16, v{vE2}", f"v_xor_b32 v14, 0x8000, v{vE0}", f"v_xor_b32 v12, 0x8000, v{vE1}")
    a.nop(12)
    woff(a)
    def h0(): flag_wait(a, cB, vF4)
    def h1(): flag_wait(a, cALL, vF4)
    def hs():
        a("s_add_u32 s79, s98, 0x20000", "s_add_u32 s80, s98, 0x40000", "s_cmp_eq_u32 s97, 0", "s_cmov_b32 s80, 0x40000000",
          f"buffer_store_dwordx4 {vr(HA+8,4)}, v2, {rHF}, s98 offen sc1", f"buffer_store_dwordx4 {vr(HA+24,4)}, v2, {rHF}, s79 offen sc1",
          f"buffer_store_dwordx4 {vr(HA+40,4)}, v2, {rHF}, s80 offen sc1")
        a(f"s_add_u32 s79, s48, {OF:#x}", f"buffer_store_dwordx4 {vr(HA,4)}, v2, {rWS}, s79 offen sc1")
    def hf():
        a("s_waitcnt vmcnt(0)")
        flag_store(a, "s99")
    def h6(): lds_wait(a, cPASS, 4, vaddr=vHC)
    def h3(): lds_arrive(a, cPASS, vHC)
    def h5():
        a("s_lshr_b32 s79, s77, 1", "s_lshl_b32 s79, s79, 5", "s_and_b32 s80, s77, 1", "s_add_u32 s79, s79, s80", "s_lshl_b32 s79, s79, 7",
          f"s_add_u32 s79, s79, {FH + 30*128:#x}")
        gpoll(a, vTC, "s79", nl=1)
        a("s_lshl_b32 s79, s77, 7", f"s_add_u32 s79, s79, {GT:#x}", f"buffer_load_dword v{vGT}, v{vL4}, {rWS}, s79 offen sc1")
    def E(S, lo, hi):
        for i in range(lo, hi): a(f"v_exp_f32 v{S+i}, v{S+i}")
    def tile(t):
        E(Sa, 0, 2)
        a(f"{SM} {vr(Oa,16)}, {vr(V2,4)}, {vr(Sb+8,8)}, v{IDX}", f"ds_read_b128 {vr(V2,4)}, v{vV1} offset:{t*VST}")
        E(Sa, 2, 6)
        a(f"{MFMA} {vr(Sb,16)}, {vr(Kf,4)}, {vr(Qa,4)}, 0")
        if t < 31: a(f"ds_read_b128 {vr(Kf,4)}, v{vK} offset:{(t+1)*1024}")
        E(Sa, 6, 12)
        a(f"s_waitcnt lgkmcnt({2 if t < 31 else 1})", f"{SM} {vr(Ob,16)}, {vr(V1,4)}, {vr(Sa,8)}, v{IDX}")
        E(Sa, 12, 16)
        E(Sb, 0, 2)
        a("s_waitcnt lgkmcnt(0)", f"{SM} {vr(Ob,16)}, {vr(V2,4)}, {vr(Sa+8,8)}, v{IDX}")
        E(Sb, 2, 6)
        if t < 31: a(f"{MFMA} {vr(Sa,16)}, {vr(Kf,4)}, {vr(Qb,4)}, 0")
        E(Sb, 6, 12)
        a(f"{SM} {vr(Oa,16)}, {vr(V1,4)}, {vr(Sb,8)}, v{IDX}")
        if t < 31: a(f"ds_read_b128 {vr(V1,4)}, v{vV0} offset:{(t+1)*VST}")
        else:
            a(f"s_add_u32 s74, s48, {OF:#x}", f"ds_write_b128 v{vE0}, {vr(Ob,4)}", f"ds_write_b128 v{vE0}, {vr(Ob+4,4)} offset:1024",
              f"ds_write_b32 v{vE1}, v{Ob+8} offset:2048", f"ds_write_b32 v{vE2}, v{vONE} offset:{cEX}")
        E(Sb, 12, 16)
    def g1():
        a("s_lshr_b32 s79, s77, 1", "s_lshl_b32 s79, s79, 5", "s_and_b32 s80, s77, 1", "s_add_u32 s79, s79, s80", "s_lshl_b32 s79, s79, 7",
          f"s_add_u32 s79, s79, {FH + 30*128:#x}", f"buffer_load_dword v3, off, {rWS}, s79 sc1")
    def g2():
        with Ool(a):
            a.label("L_a_gr")
            gpoll(a, vTC, "s79", nl=1)
            a("s_branch L_a_gk")
        a("s_waitcnt vmcnt(0)", f"v_cmp_ne_u32 vcc, s{sN}, v3", "s_lshl_b32 s80, s77, 7", f"s_add_u32 s80, s80, {GT:#x}", "s_cbranch_vccnz L_a_gr")
        a.label("L_a_gk")
        a(f"buffer_load_dword v{vGT}, v{vL4}, {rWS}, s80 offen sc1")
    if OPT["unroll"]:
        hs_t = OPT["hs"]
        ta = {7: [h1], 12: [h3], 27: [h6], 21: [g1], 25: [g2]}
        hsl = [[f"buffer_store_dwordx4 {vr(HA+8,4)}, v2, {rHF}, s98 offen sc1"],
               ["s_add_u32 s79, s98, 0x20000", f"buffer_store_dwordx4 {vr(HA+24,4)}, v2, {rHF}, s79 offen sc1"],
               ["s_add_u32 s80, s98, 0x40000", "s_cmp_eq_u32 s97, 0", "s_cmov_b32 s80, 0x40000000", f"buffer_store_dwordx4 {vr(HA+40,4)}, v2, {rHF}, s80 offen sc1"],
               [f"s_add_u32 s79, s48, {OF:#x}", f"buffer_store_dwordx4 {vr(HA,4)}, v2, {rWS}, s79 offen sc1"]]
        for n, x in enumerate(hsl):
            ta.setdefault(hs_t + n*OPT["hd"], []).append(lambda x=x: a(*x))
        pass; ta.setdefault(OPT['hf'], []).append(hf)
        def pr(kh, p):
            def f():
                lab = a.newlabel("pr")
                with Ool(a):
                    a.label(lab); a(f"s_setprio {p}", f"s_branch {lab}_r")
                a(f"s_cmp_eq_u32 s75, {kh}", f"s_cbranch_scc1 {lab}")
                a.label(lab + "_r")
            return f
        for nm, kh, p in (("l2", 0, 2), ("h2", 1, 2), ("l1", 0, 1), ("h1", 1, 1)):
            ta.setdefault(OPT[nm], []).insert(0, pr(kh, p))
        for t in range(32):
            for f in ta.get(t, []): f()
            tile(t)
            if t % 4 == 3: trace(a, "a")
        a("s_nop 1")
    else:
        a.raw(".p2align 6")
        a.label("L_a_loop")
        for t in range(4):
            if t == 3:
                a("s_cmp_lt_u32 s76, 7", "s_cbranch_scc1 L_a_hook")
                a.label("L_a_hookret")
            tile(t)
        a(f"v_add_u32 v{vK}, 4096, v{vK}", f"v_add_u32 v{vV0}, {4*VST}, v{vV0}", f"v_add_u32 v{vV1}, {4*VST}, v{vV1}")
        trace(a, "a")
        a("s_add_u32 s76, s76, 1", "s_cmp_lt_u32 s76, 8", "s_cbranch_scc1 L_a_loop")
    won(a, "a")
    a(f"{SM} {vr(Oa,16)}, {vr(V2,4)}, {vr(Sb+8,8)}, v{IDX}", "s_setprio 3")
    stamp(a)
    lp, dn = a.newlabel("xw"), a.newlabel("xwd")
    rt = retry(a, lp, dn, 1)
    a.label(lp)
    a(f"ds_read_b32 v{vPOLL}, v13 offset:{cEX}", f"ds_read_b128 {vr(Sa,4)}, v14", f"ds_read_b128 {vr(Sa+4,4)}, v14 offset:1024", f"ds_read_b32 v{Sa+8}, v12 offset:2048",
      "s_nop 3", "s_waitcnt lgkmcnt(0)", f"v_cmp_eq_u32 vcc, 0, v{vPOLL}", f"s_cbranch_vccnz {rt}")
    a.label(dn)
    a(f"v_add_f32 v{Oa+8}, v{Oa+8}, v{Sa+8}")
    for r in range(0, 8, 2): a(f"v_pk_add_f32 {vr(Oa+r,2)}, {vr(Oa+r,2)}, {vr(Sa+r,2)}")
    O = Oa
    a(f"v_pk_add_f32 v[8:9], {vr(O,2)}, {vr(O+2,2)}", f"v_pk_add_f32 v[10:11], {vr(O+4,2)}, {vr(O+6,2)}", "v_pk_add_f32 v[8:9], v[8:9], v[10:11]",
      "v_add_f32 v8, v8, v9", f"v_fma_f32 v8, v8, 0, v{O+8}")
    a("v_cmp_nle_f32 s[80:81], 1.0, v8", "v_cmp_nge_f32 vcc, s76, v8", "s_or_b64 vcc, vcc, s[80:81]", "s_cbranch_scc1 L_a_slow")
    a.label("L_a_fin")
    trace(a, "t")
    a(f"v_rcp_f32 v8, v{O+8}", "s_waitcnt vmcnt(0)", f"v_mul_f32 v8, v8, v{vGT}")
    for r in range(0, 8, 2): a(f"v_pk_mul_f32 {vr(O+r,2)}, {vr(O+r,2)}, v[8:9] op_sel_hi:[1,0]")
    for r in range(4): a(f"v_cvt_pk_bf16_f32 v{Qb+r}, v{O+2*r}, v{O+2*r+1}")
    for r in range(4): a(f"v_min_u32 v{Qb+r}, -2, v{Qb+r}")
    a(f"buffer_store_dwordx4 {vr(Qb,4)}, v2, {rWS}, s74 offen sc1")
    trace(a, "t")
    a("s_barrier")
    stamp_end(a, 0)
    a("s_endpgm")
    if not OPT['unroll']:
        a.label("L_a_hook")
        acts = {0: [h0], 1: [h1], 3: [h3], 6: [h6]}
        acts.setdefault(OPT["hg"], []).append(h5)
        acts.setdefault(OPT["hst"], []).append(hs)
        acts.setdefault(OPT["hst"] + 1, []).append(hf)
        acts.setdefault(OPT["pr2"], []).insert(0, lambda: a("s_setprio 2"))
        acts.setdefault(OPT["pr1"], []).insert(0, lambda: a("s_setprio 1"))
        its = sorted(acts)
        for it in its:
            a(f"s_cmp_eq_u32 s76, {it}", f"s_cbranch_scc1 L_a_hk_{it}")
        a("s_branch L_a_hookret")
        for it in its:
            a.label(f"L_a_hk_{it}")
            for f in acts[it]: f()
            a("s_branch L_a_hookret")
    emit_ool(a)
    woff(a)
    a.label("L_a_slow")
    NM = 96
    a("v_mov_b32 v3, 0xff800000", f"s_add_u32 s76, s78, {KF:#x}", "s_mov_b32 s79, 0")
    a.label("L_a_max")
    a(f"buffer_load_dwordx4 {vr(V1,4)}, v2, {rWS}, s76 offen sc1", "s_waitcnt vmcnt(0)",
      f"{MFMA} {vr(Sa,16)}, {vr(V1,4)}, {vr(Qa,4)}, 0", "s_add_u32 s76, s76, 1024")
    a.nop(14)
    for r in range(0, 16, 2): a(f"v_max3_f32 v3, v{Sa+r}, v{Sa+r+1}, v3")
    a("s_add_u32 s79, s79, 1", "s_cmp_lt_u32 s79, 64", "s_cbranch_scc1 L_a_max")
    a("v_mov_b32 v12, v3", "s_nop 1", "v_permlane32_swap_b32 v12, v3", "s_nop 1", "v_max_f32 v3, v12, v3")
    for r in range(16): a(f"v_sub_f32 v{NM+r}, 0, v3")
    for r in range(16): a(f"v_mov_b32 v{Oa+r}, 0")
    a("v_and_b32 v3, 15, v1", "v_lshlrev_b32 v3, 4, v3", "v_lshrrev_b32 v12, 5, v1", "v_lshl_add_u32 v3, v12, 8, v3",
      "v_and_b32 v12, 16, v1", "v_cmp_eq_u32 vcc, 0, v12", "v_mov_b32 v12, 0x4000000", "v_mov_b32 v13, 0x3f803f80",
      "v_cndmask_b32 v3, v12, v3, vcc", "v_cndmask_b32 v13, v13, 0, vcc")
    a(f"s_add_u32 s76, s78, {KF:#x}", f"s_add_u32 s80, s78, {VF:#x}", "s_mov_b32 s79, 0")
    a.label("L_a_redo")
    a(f"buffer_load_dwordx4 {vr(Sb,4)}, v2, {rWS}, s76 offen sc1", f"buffer_load_dwordx4 {vr(V1,4)}, v3, {rWS}, s80 offen sc1",
      f"buffer_load_dwordx4 {vr(V2,4)}, v3, {rWS}, s80 offen offset:512 sc1", "s_waitcnt vmcnt(0)",
      f"{MFMA} {vr(Sa,16)}, {vr(Sb,4)}, {vr(Qa,4)}, {vr(NM,16)}", "s_add_u32 s76, s76, 1024", "s_add_u32 s80, s80, 1024")
    for r in range(8): a(f"v_or_b32 v{V1+r}, v13, v{V1+r}")
    a.nop(6)
    E(Sa, 0, 16)
    a("s_nop 1", f"{SM} {vr(Oa,16)}, {vr(V1,4)}, {vr(Sa,8)}, v{IDX}", f"{SM} {vr(Oa,16)}, {vr(V2,4)}, {vr(Sa+8,8)}, v{IDX}")
    a("s_add_u32 s79, s79, 1", "s_cmp_lt_u32 s79, 64", "s_cbranch_scc1 L_a_redo")
    a.nop(14)
    a("s_branch L_a_fin")

def gen_gwave(a):
    sF, sT = 54, 55
    a("s_getpc_b64 s[44:45]", "s_mov_b32 s46, 64", "s_mov_b32 s47, 0x20000", f"s_lshl_b32 s{sF}, s3, 2", f"s_add_u32 s{sF}, s{sF}, {CB}")
    def dflag(off):
        a(f"s_add_u32 m0, s{sF}, {off}", "s_mov_b64 exec, 1", "buffer_load_dword off, s[44:47], 0 lds", "s_mov_b64 exec, -1")
    for n in range(OPT["kvx"]): kvpair(a)
    acc = accD; vW = vWd
    a(f"s_waitcnt vmcnt({4*OPT['kvx']})", "s_barrier")
    a.label("L_g_kvl")
    kvpair(a)
    a("s_add_u32 s74, s74, 1", f"s_cmp_lt_u32 s74, {6 - OPT['kvx']}", "s_cbranch_scc1 L_g_kvl")
    dflag(cALL)
    stamp(a)
    nb = OPT["tb"]
    if nb:
        a(f"s_mov_b64 exec, {(1 << nb) - 1:#x}")
        for o in range(0, 32, nb): a(f"buffer_load_dword v62, v7, {rWO}, s58 offen", f"s_add_u32 s58, s58, {nb*128}", "s_waitcnt vmcnt(0)")
        for o in range(0, 86, nb): a(f"buffer_load_dword v62, v7, {rWD}, s57 offen", f"s_add_u32 s57, s57, {nb*128}", "s_waitcnt vmcnt(0)")
        a("s_mov_b64 exec, -1")
    a("s_and_b32 s78, s3, 1", "s_lshl_b32 s78, s78, 10", f"v_add_u32 v{vR0}, s78, v2", f"v_xor_b32 v{vR1}, 1024, v{vR0}")
    q = VQ(a)
    if OPT["drot"]:
        a("s_mul_i32 s78, s71, 11", "s_lshr_b32 s78, s78, 1", "s_lshl_b32 s48, s78, 14", f"s_add_u32 s48, s48, s{sW1}", "s_lshl_b32 s49, s78, 16", f"s_add_u32 s49, s49, s{sH0}",
          f"s_add_u32 s50, s{sW1}, {22*16384}", f"s_add_u32 s51, s{sH0}, {22*65536}")
    def wload(k, o):
        slot = k % NS
        if k < 22 and OPT["drot"]:
            a(f"s_add_u32 m0, s{sR}, {slot*2048 + o*1024}", "s_nop 0", f"buffer_load_dwordx4 v{vW}, {rWD}, s48 offen lds", "s_add_u32 s48, s48, 8192")
            if o: a("s_cmp_eq_u32 s48, s50", f"s_cmov_b32 s48, s{sW1}")
        elif k < 22:
            a(f"s_add_u32 m0, s{sR}, {slot*2048 + o*1024}", f"s_add_u32 s79, s{sW1}, {(k*16 + o*8)*1024}", f"buffer_load_dwordx4 v{vW}, {rWD}, s79 offen lds")
        else:
            a(f"s_add_u32 m0, s{sR}, {slot*2048 + o*1024}", f"s_add_u32 s79, s{sW0}, {((k-22)*16 + o*8)*1024}", f"buffer_load_dwordx4 v{vW}, {rWO}, s79 offen lds")
        q.issue(("W", k))
    def hload(k, rt):
        if OPT["drot"]:
            a(f"buffer_load_dwordx4 {vr(H[k%HD]+4*rt,4)}, v{[vR0, vR1][rt]}, {rHF}, s49 offen sc1")
            if rt: a("s_add_u32 s49, s49, 0x10000", "s_cmp_eq_u32 s49, s51", f"s_cmov_b32 s49, s{sH0}")
        else:
            if rt == 0: a(f"s_add_u32 s78, s{sH0}, {k*65536}")
            a(f"buffer_load_dwordx4 {vr(H[k%HD]+4*rt,4)}, v{[vR0, vR1][rt]}, {rHF}, s78 offen sc1")
        q.issue(("H", k))
    def wread(k):
        slot = k % NS
        dst = Wf[k & 1] if k < 22 else WF + 8*(k-22)
        for ct in range(2):
            va, d2 = (63, 256) if k < 22 else (vT2, 1024)
            a(f"ds_read_b64_tr_b16 {vr(dst+4*ct,2)}, v{va} offset:{slot*2048 + ct*512}",
              f"ds_read_b64_tr_b16 {vr(dst+4*ct+2,2)}, v{va} offset:{slot*2048 + ct*512 + d2}")
    seq = [25, 26, 27, 28, 29, 0, 1, 2]
    for k in seq[:3]:
        wload(k, 0); wload(k, 1)
    for n in range(5):
        q.wait(("W", seq[n]))
        wread(seq[n])
        a("s_waitcnt lgkmcnt(0)")
        wload(seq[n+3], 0); wload(seq[n+3], 1)
    a("s_lshl_b32 s75, s3, 19", "s_lshl_b32 s80, s6, 11", "s_add_u32 s75, s75, s80", f"s_add_u32 s75, s75, {OF:#x}")
    trace(a, "e")
    gpoll(a, vP1, "0", sleep=OPT["psl"], nl=18)
    a("s_lshl_b32 s78, s3, 2", "s_cmp_eq_u32 s3, 1", "s_cmov_b32 s78, 3", "s_cselect_b32 exec_lo, 0xffffff, 0xffff" if False else "s_cselect_b32 s76, 24, 16",
      "s_lshl4_add_u32 s78, s6, s78", "s_lshl_b32 s78, s78, 9", f"s_add_u32 s78, s78, {FP:#x}", "s_bfm_b64 exec, s76, 0")
    gpoll(a, 7, "s78", sleep=4)
    a("s_mov_b64 exec, -1")
    q.drain()
    stamp(a)
    a("s_and_b32 s79, s3, 1", "s_lshl1_add_u32 s79, s6, s79", "s_lshl_b32 s79, s79, 7", f"s_add_u32 s79, s79, {GT:#x}", "s_xor_b32 s78, s79, 128",
      f"buffer_load_dword v{vG}, v{vGA}, {rWS}, s79 offen sc1", f"buffer_load_dword v{vG+1}, v{vGA}, {rWS}, s78 offen sc1")
    q.issue("g"); q.issue("g")
    for k in range(HD-1):
        hload(k, 0); hload(k, 1)
    a("s_mul_i32 s79, s7, 0x30000", f"s_add_u32 s79, s79, s{sH0}", "s_mov_b32 exec_hi, 0xffff",
      f"buffer_load_dword v62, v{vTH}, {rHF}, s79 offen sc1", "s_mov_b64 exec, -1")
    q.issue("t")
    wread(0)
    a(f"s_setprio {OPT['dprio']}")
    if OPT["nod"]: a("s_branch L_g_dskip")
    for k in range(22):
        q.wait(("W", k+1), ("H", k))
        if k == OPT["bk"]: a("s_barrier")
        if k == OPT["otouch"]:
            a("s_lshl_b32 s79, s7, 16", "s_add_u32 s79, s79, s75", "s_mov_b64 exec, 0xffff", f"buffer_load_dword v62, v7, {rWS}, s79 offen sc1", "s_mov_b64 exec, -1")
            q.issue("t")
        trace(a, "d")
        a("s_waitcnt lgkmcnt(0)")
        if k < 21: wread(k+1)
        extra = [lambda: wload(k+3, 0), lambda: wload(k+3, 1)]
        if k + HD - 1 < 22: extra += [lambda: hload(k+HD-1, 0), lambda: hload(k+HD-1, 1)]
        for i in range(4):
            ct, rt = i >> 1, i & 1
            C = "0" if k == 0 else vr(acc[i], 16)
            a(f"{MFMA} {vr(acc[i],16)}, {vr(Wf[k&1]+4*ct,4)}, {vr(H[k%HD]+4*rt,4)}, {C}")
            if i < len(extra): extra[i]()
    a.label("L_g_dskip")
    trace(a, "e")
    a("s_setprio 3")
    a(f"v_sub_f32 v6, 1.0, v{vG}", f"v_sub_f32 v7, 1.0, v{vG+1}")
    if OPT["probe"] == 2: a("v_and_b32 v10, 7, v1", f"v_lshl_add_u32 v10, v10, 2, v{vCB}", f"ds_read_b32 v10, v10 offset:{cEX}")
    for k in range(22, 25):
        q.wait(("W", k))
        wread(k)
    stamp(a)
    QS_ = 1024 + 32; TS_ = 4*QS_; WS_ = 4*TS_
    if OPT["rowred"]:
        vq = 0 if not OPT["tr"] else 3
        a("v_lshrrev_b32 v4, 1, v1", "v_lshlrev_b32 v4, 16, v4", f"v_and_b32 v{vq}, 1, v1", f"v_lshl_add_u32 v{vq}, v{vq}, 10, v4", f"v_add_u32 v{vq}, 1020, v{vq}")
        for i in range(4):
            a(f"s_xor_b32 s79, s3, {i}", "s_lshr_b32 s80, s79, 1", "s_and_b32 s79, s79, 1", "s_lshl1_add_u32 s79, s79, s80", "s_lshl2_add_u32 s79, s3, s79", f"s_mul_i32 s{48+i}, s79, {TS_}")
        a("s_lshl_b32 s74, s6, 16", "s_lshl_b32 s80, s3, 14", "s_add_u32 s74, s74, s80", "s_lshl_b32 s80, s7, 7", "s_add_u32 s74, s74, s80")
    else:
        a("v_lshlrev_b32 v4, 4, v1", "s_lshl_b32 s79, s3, 14", "v_add_u32 v4, s79, v4")
        a("v_and_b32 v3, 31, v1", "v_lshlrev_b32 v3, 10, v3", "v_lshrrev_b32 v7, 5, v1", "v_lshl_add_u32 v3, v7, 4, v3",
          "s_and_b32 s74, s3, 1", "s_lshl1_add_u32 s74, s6, s74", "s_lshl_b32 s74, s74, 15", "s_lshl_b32 s80, s7, 7", "s_add_u32 s74, s74, s80",
          "s_lshr_b32 s80, s3, 1", "s_lshl_b32 s80, s80, 6", "s_add_u32 s74, s74, s80")
    a("s_waitcnt lgkmcnt(0)")
    if OPT["probe"] == 2: a("v_cmp_eq_u32 vcc, 0, v10", "s_nop 0", "s_cmp_lg_u64 vcc, 0", "s_cselect_b32 s72, 0xffff, 0")
    if OPT["bk"] > 21: a("s_barrier")
    trace(a, "t")
    order = [1, 3, 5, 7, 0, 2, 4, 6]
    def oload(n):
        a(f"s_add_u32 s79, s75, {order[n]*65536}")
        for rt in range(2):
            a(f"buffer_load_dwordx4 {vr(OFR+8*(n%4)+4*rt,4)}, v{[vR0, vR1][rt]}, {rWS}, s79 offen sc1")
    vPA = 0 if not OPT["tr"] else 3
    def probe_issue(): a("s_mov_b64 exec, 0xffff", f"buffer_load_dword v4, v{vPA}, {rWS}, s75 offen sc1")
    def probe_eval(): a("s_waitcnt vmcnt(0)", "v_cmp_eq_u32 vcc, -1, v4", "s_mov_b64 exec, -1", "s_mov_b32 s72, vcc_lo")
    def need(n):
        if not OPT["probe"]: return
        m = 3 << (2*order[n])
        with Ool(a):
            a.label(f"L_p_r{n}")
            a(f"s_sub_u32 s{sBUD}, s{sBUD}, 1", f"s_cbranch_scc1 L_p_x{n}")
            if OPT["prs"]: a(f"s_sleep {OPT['prs']}")
            probe_issue(); probe_eval()
            a(f"s_and_b32 s79, s72, {m}", f"s_cbranch_scc1 L_p_r{n}", f"s_branch L_p_k{n}")
            a.label(f"L_p_x{n}")
            a(f"s_mov_b32 s{sBUD}, 0", f"s_branch L_p_k{n}")
        a(f"s_and_b32 s79, s72, {m}", f"s_cbranch_scc1 L_p_r{n}")
        a.label(f"L_p_k{n}")
    def scale():
        for t in range(4):
            for r in range(0, 16, 2):
                a(f"v_pk_mul_f32 {vr(acc[t]+r,2)}, {vr(acc[t]+r,2)}, v[6:7] " + ("op_sel:[0,1] op_sel_hi:[1,1]" if t & 1 else "op_sel_hi:[1,0]"))
    if OPT["probe"] == 2:
        scale()
        for n in range(4):
            need(n); oload(n)
    elif OPT["probe"]:
        probe_issue()
        a("s_mov_b64 exec, -1")
        scale()
        a("s_mov_b64 exec, 0xffff")
        probe_eval()
        for n in range(4):
            need(n); oload(n)
    else:
        for n in range(4): oload(n)
        scale()
    for n in range(8):
        h, f = order[n], OFR + 8*(n % 4)
        last = min(n + 3, 7)
        with Ool(a):
            a.label(f"L_o_r{n}")
            chk = [f"v_max3_u32 v6, v{f}, v{f+1}, v{f+2}", f"v_max3_u32 v7, v{f+3}, v{f+4}, v{f+5}", f"v_max3_u32 v6, v6, v{f+6}, v{f+7}",
                   "v_max_u32 v6, v6, v7", "v_cmp_eq_u32 vcc, -1, v6"]
            if OPT["omode"] == 0:
                a("s_waitcnt vmcnt(0)", f"s_sub_u32 s{sBUD}, s{sBUD}, 1", f"s_cbranch_scc1 L_o_x{n}", f"s_sleep {OPT['osl']}")
                for m in range(n, last + 1): oload(m)
                a(f"s_branch L_o_w{n}")
            elif OPT["omode"] == 1:
                a(f"s_sub_u32 s{sBUD}, s{sBUD}, 1", f"s_cbranch_scc1 L_o_x{n}")
                for m in range(n, last + 1): oload(m)
                a(f"s_branch L_o_w{n}")
            else:
                a(f"s_sub_u32 s{sBUD}, s{sBUD}, 1", f"s_cbranch_scc1 L_o_x{n}")
                oload(n)
                a("s_waitcnt vmcnt(0)", *chk, f"s_cbranch_vccnz L_o_r{n}")
                for m in range(n + 1, last + 1): oload(m)
                a(f"s_branch L_o_k{n}")
            a.label(f"L_o_x{n}")
            a(f"s_mov_b32 s{sBUD}, 0", f"s_branch L_o_k{n}")
        a.label(f"L_o_w{n}")
        a(f"s_waitcnt vmcnt({2*(last - n)})", f"v_max3_u32 v6, v{f}, v{f+1}, v{f+2}", f"v_max3_u32 v7, v{f+3}, v{f+4}, v{f+5}", f"v_max3_u32 v6, v6, v{f+6}, v{f+7}",
          "v_max_u32 v6, v6, v7", "v_cmp_eq_u32 vcc, -1, v6", f"s_cbranch_vccnz L_o_r{n}")
        a.label(f"L_o_k{n}")
        for i in (1, 2, 3, 0):
            ct, rt = i >> 1, i & 1
            a(f"{MFMA} {vr(acc[i],16)}, {vr(WF+8*h+4*ct,4)}, {vr(f+4*rt,4)}, {vr(acc[i],16)}")
        if n + 4 < 8:
            need(n + 4); oload(n + 4)
        if n == 3: trace(a, "t")
    trace(a, "t")
    if OPT["rowred"]:
        fl = ['', 'sc1', 'nt', 'sc0 sc1'][OPT['ofl']]
        a("v_lshlrev_b32 v4, 4, v1", "v_lshrrev_b32 v3, 3, v1")
        for i in (1, 2, 3, 0): a(f"v_add_u32 v{8+i}, s{48+i}, v4")
        a.nop(4)
        for i in (1, 2, 3, 0):
            for qd in range(4):
                a(f"ds_write_b128 v{8+i}, {vr(acc[i]+4*qd,4)} offset:{qd*QS_}")
        a("v_and_b32 v7, 7, v1", f"v_mul_u32_u24 v6, {QS_}, v7", "v_lshl_add_u32 v6, v3, 4, v6", "s_lshr_b32 s79, s3, 1", f"s_mul_i32 s79, s79, {2*TS_}", "s_and_b32 s80, s3, 1",
          "s_lshl_b32 s80, s80, 8", "s_add_u32 s79, s79, s80", "v_add_u32 v6, s79, v6", "v_lshlrev_b32 v3, 10, v3", "v_lshl_add_u32 v3, v7, 4, v3", "s_add_u32 s75, s74, 8192")
        a("s_waitcnt lgkmcnt(0)", "s_barrier")
        trace(a, "t")
        for i in range(2):
            for w in range(4):
                for hb in range(2):
                    a(f"ds_read_b128 {vr(104+32*i+8*w+4*hb,4)}, v6 offset:{w*WS_ + hb*512 + i*128}")
        for i in range(2):
            b = 104 + 32*i
            a(f"s_waitcnt lgkmcnt({12 - 8*i})")
            for r in range(0, 8, 2): a(f"v_pk_add_f32 {vr(b+r,2)}, {vr(b+r,2)}, {vr(b+8+r,2)}")
            a(f"s_waitcnt lgkmcnt({8 - 8*i})")
            for r in range(0, 8, 2): a(f"v_pk_add_f32 {vr(b+16+r,2)}, {vr(b+16+r,2)}, {vr(b+24+r,2)}")
            for r in range(0, 8, 2): a(f"v_pk_add_f32 {vr(b+r,2)}, {vr(b+r,2)}, {vr(b+16+r,2)}")
            for r in range(4): a(f"v_cvt_pk_bf16_f32 v{16+4*i+r}, v{b+2*r}, v{b+2*r+1}")
            a(f"buffer_store_dwordx4 {vr(16+4*i,4)}, v3, {rOUT}, s{74+i} offen {fl}")
    else:
        a("v_xor_b32 v8, 0x4000, v4", "v_xor_b32 v9, 0x8000, v4", "v_xor_b32 v10, 0xc000, v4")
        a.nop(6)
        for i in (1, 2, 3):
            for qd in range(4):
                a(f"ds_write_b128 v4, {vr(acc[i]+4*qd,4)} offset:{i*4096 + qd*1024}")
        a("s_waitcnt lgkmcnt(0)", "s_barrier")
        trace(a, "t")
        for i in (1, 2, 3):
            for qd in range(4):
                a(f"ds_read_b128 {vr(acc[i]+4*qd,4)}, v{7+i} offset:{i*4096 + qd*1024}")
        for i in (1, 2, 3):
            a(f"s_waitcnt lgkmcnt({12 - 4*i})")
            for r in range(0, 16, 2): a(f"v_pk_add_f32 {vr(acc[0]+r,2)}, {vr(acc[0]+r,2)}, {vr(acc[i]+r,2)}")
        for r in range(8): a(f"v_cvt_pk_bf16_f32 v{16+r}, v{acc[0]+2*r}, v{acc[0]+2*r+1}")
        a("s_nop 1")
        for p in range(2):
            b = 16 + 4*p
            a(f"v_permlane32_swap_b32 v{b}, v{b+2}", f"v_permlane32_swap_b32 v{b+1}, v{b+3}")
        a(f"buffer_store_dwordx4 v[16:19], v3, {rOUT}, s74 offen {['', 'sc1', 'nt', 'sc0 sc1'][OPT['ofl']]}", f"buffer_store_dwordx4 v[20:23], v3, {rOUT}, s74 offen offset:32 {['', 'sc1', 'nt', 'sc0 sc1'][OPT['ofl']]}")
    trace(a, "t")
    a("s_or_b32 s79, s2, s3", "s_cmp_lg_u32 s79, 0", "s_cbranch_scc1 L_g_noep", f"s_mov_b32 s79, {EP:#x}")
    flag_store(a, "s79")
    a.label("L_g_noep")
    stamp_end(a, 1)

HEADER = open("gated_mix__mha_block__glu_gated_glu__prompt.s.ref").read().split("; Override launch")[0]
def build():
    a = Asm()
    txt = HEADER + "; @launch grid=(256,1,1) block=(768,1,1) lds=163840\n"
    txt += '.amdgcn_target "amdgcn-amd-amdhsa--gfx950"\n.text\n'
    d = gen(a)
    txt += a.text() + '.section .rodata,"a"\n' + d
    return txt
if __name__ == "__main__":
    for o in sys.argv[2:]:
        k, v = o.split("=")
        OPT[k] = set(v.split(",")) if k == "tr" else int(v)
    open(sys.argv[1], "w").write(build())
    print("wrote", sys.argv[1])
```

```python
import sys, math, struct
from asmlib import *

MB = 1 << 20
QF, KF, VF, OF, XF, GT, FL, ST, HF = 0, 2*MB, 4*MB, 6*MB, 8*MB, 12*MB, 13*MB, 14*MB, 16*MB
KST = 44032
EP = FL + 0xf0000
FQ, FX, FH, FO, FP = FL, FL + 0x8000, FL + 0x28000, FL + 0x48000, FL + 0x88000
HF_BYTES = 86 * 65536
QSCALE = 0.25 * math.log2(math.e)
LOG2E = math.log2(math.e)
def fbits(x): return struct.unpack("<I", struct.pack("<f", x))[0]
MFMA = "v_mfma_f32_32x32x16_bf16"
SM = "v_smfmac_f32_32x32x32_bf16"
M16 = "v_mfma_f32_16x16x32_bf16"
NAME = "gated_mix__mha_block__glu_gated_glu__prompt_kernel"
rX, rWQ, rWS, rHF, rWG, rWD, rWO, rOUT, rGW = [f"s[{i}:{i+3}]" for i in range(8, 44, 4)]
P1X, P1W = 0, 65536
KB, VB, VST = 0, 65536, 1040
RING = VB + 64*VST
CB = RING + 30720
cPASS, cEX, cB, cALL = 20, 32, 64, 80
vCB, vONE, vPOLL = 4, 5, 6
sN, sBUD = 70, 83
OPT = dict(spr=84, probe=0, prs=1, psl=8, bk=99, otouch=99, rowred=1, ofl=1, fs=3, tlb=0, omode=0, drot=1, hd=2, osl=3, hs=5, hf=14, dbg=0, pre=2, ramp=1, sprio=1, kvx=2, unroll=1, l2=15, h2=21, l1=28, h1=31, early=1, tb=0, hg=3, ns=1, nd=4, tr=set(), vtr=0, cyc=0, noattn=0, nod=0, pr2=2, pr1=6, warm=0, wstep=8, dprio=0, hst=1)

def trace(a, grp):
    if grp not in OPT["tr"]: return
    v = OPT["vtr"]
    a("s_memtime s[84:85]" if OPT["cyc"] else "s_memrealtime s[84:85]", "s_mov_b32 s87, m0", "s_mov_b32 m0, s86", "s_waitcnt lgkmcnt(0)", f"v_writelane_b32 v{v}, s84, m0",
      "s_add_u32 s86, s86, 1", "s_mov_b32 m0, s87", "s_nop 0")
def trace2(a, grp):
    if grp not in OPT["tr"]: return
    a("s_cselect_b32 s98, 1, 0"); trace(a, grp); a("s_cmp_eq_u32 s98, 1")
def stamp(a, i=0): trace(a, "m")
def trace_init(a):
    if OPT["tr"]: a("s_mov_b32 s86, 0", f"v_mov_b32 v{OPT['vtr']}, 0")
def dbg_end(a, kidx):
    if not OPT["dbg"]: return
    lab = a.newlabel("dg")
    a("s_cmp_eq_u32 s59, 0", f"s_cbranch_scc1 {lab}", "s_lshl_b32 s79, s2, 16", "s_lshl_b32 s78, s3, 8", "s_or_b32 s79, s79, s78", f"s_or_b32 s79, s79, {0x1000*kidx + 0x80000000:#x}",
      "s_or_b32 s79, s79, s59", "v_mov_b32 v3, s79", "s_lshl_b32 s78, s59, 2", f"s_add_u32 s78, s78, {ST:#x}", "s_mov_b64 exec, 1", f"buffer_store_dword v3, off, {rWS}, s78 sc1", "s_mov_b64 exec, -1")
    a.label(lab)
def stamp_end(a, kidx):
    dbg_end(a, kidx)
    if not OPT["tr"]: return
    a("s_waitcnt vmcnt(0)")
    OPT["tr"].add("end"); trace(a, "end")
    a("s_mul_i32 s71, s2, 12", "s_add_u32 s71, s71, s3", f"s_add_u32 s71, s71, {4 if kidx == 0 else 0}", "s_lshl_b32 s71, s71, 8", f"s_add_u32 s71, s71, {ST:#x}",
      "v_lshlrev_b32 v7, 2, v1", f"buffer_store_dword v{OPT['vtr']}, v7, {rWS}, s71 offen")

def lds_arrive(a, off, vaddr=vCB):
    a("s_mov_b64 exec, 1", f"ds_add_u32 v{vaddr}, v{vONE} offset:{off}", "s_mov_b64 exec, -1")
OOL = []
def emit_ool(a):
    while OOL:
        blk = OOL.pop(0)
        for l in blk:
            if l.startswith("@") or l.startswith("."): a.raw(l)
            elif l.endswith(":"): a.label(l[:-1])
            else: a(l)
class Ool:
    def __init__(self, a): self.a = a
    def __enter__(self): self.sv = self.a.lines; self.a.lines = []
    def __exit__(self, *e):
        OOL.append([l.strip() for l in self.a.lines]); self.a.lines = self.sv
def retry(a, lp, dn, sleep):
    rt = a.newlabel("rt")
    OOL.append([rt + ":"] + ([f"s_sleep {sleep}"] if sleep else []) +
               [f"s_sub_u32 s{sBUD}, s{sBUD}, 1", f"s_cbranch_scc0 {lp}", f"s_mov_b32 s{sBUD}, 0", f"s_branch {dn}"])
    return rt
def lds_wait(a, off, target, vaddr=vCB, sleep=0):
    lp, dn = a.newlabel("lw"), a.newlabel("lwd")
    rt = retry(a, lp, dn, sleep)
    a.label(lp)
    a(f"ds_read_b32 v{vPOLL}, v{vaddr} offset:{off}", "s_waitcnt lgkmcnt(0)", f"v_readfirstlane_b32 s82, v{vPOLL}",
      f"s_cmp_ge_u32 s82, {target}", f"s_cbranch_scc0 {rt}")
    a.label(dn)
def pre_wait(a, off, target, vaddr=vCB):
    lp, dn, rt = a.newlabel("pw"), a.newlabel("pwd"), a.newlabel("pwr")
    OOL.append([rt + ":", f"ds_read_b32 v{vPOLL}, v{vaddr} offset:{off}", f"s_sub_u32 s{sBUD}, s{sBUD}, 1", "s_waitcnt lgkmcnt(0)",
                f"s_cbranch_scc0 {lp}", f"s_mov_b32 s{sBUD}, 0", f"s_branch {dn}"])
    a.label(lp)
    a(f"v_readfirstlane_b32 s82, v{vPOLL}", f"s_cmp_ge_u32 s82, {target}", f"s_cbranch_scc0 {rt}")
    a.label(dn)
def flag_wait(a, off, vaddr, sleep=0):
    lp, dn = a.newlabel("fw"), a.newlabel("fwd")
    rt = retry(a, lp, dn, sleep)
    a.label(lp)
    a(f"ds_read_b32 v{vPOLL}, v{vaddr} offset:{off}", "s_waitcnt lgkmcnt(0)", f"v_cmp_eq_u32 vcc, 0, v{vPOLL}", f"s_cbranch_vccnz {rt}")
    a.label(dn)
def gpoll(a, vaddr, soff, sleep=2, nl=64):
    lp, dn = a.newlabel("gp"), a.newlabel("gpd")
    rt = retry(a, lp, dn, sleep)
    if nl < 64: a(f"s_mov_b64 exec, {(1 << nl) - 1:#x}")
    a.label(lp)
    a(f"buffer_load_dword v{vPOLL}, v{vaddr}, {rWS}, {soff} offen sc1", "s_waitcnt vmcnt(0)",
      f"v_cmp_ne_u32 vcc, s{sN}, v{vPOLL}", f"s_cbranch_vccnz {rt}")
    a.label(dn)
    if nl < 64: a("s_mov_b64 exec, -1")
def flag_store(a, soff):
    a(f"v_mov_b32 v3, s{sN}", "s_mov_b64 exec, 1", f"buffer_store_dword v3, off, {rWS}, {soff} sc1", "s_mov_b64 exec, -1")
def skip_ool(a):
    pass

class VQ:
    def __init__(self, a): self.a = a; self.q = []
    def issue(self, tag): self.q.append(tag)
    def wait(self, *tags):
        idx = max([i for i, t in enumerate(self.q) if t in tags], default=-1)
        if idx < 0: return
        n = len(self.q) - 1 - idx
        assert n <= 63
        self.a(f"s_waitcnt vmcnt({n})")
        self.q = self.q[idx+1:]
    def drain(self): self.q = []

def won(a, role): a.raw(f"@W+ {role}")
def woff(a): a.raw("@W-")
def warm_call(a, role, nchain, sel, extra=None):
    if not OPT["warm"]: return
    a("s_mov_b64 exec, 0")
    for c in range(nchain):
        a(f"s_cmp_eq_u32 {sel}, {c}", f"s_cbranch_scc1 L_w{role}_{c}")
    if extra: a(f"s_cmp_eq_u32 {sel}, {extra[0]}", f"s_cbranch_scc1 {extra[1]}")
    a.label(f"L_wret_{role}")
    a("s_mov_b64 exec, -1")
def insert_hops(lines, nchain):
    out = []; role = None; cnt = 0; spots = {}
    for l in lines:
        if l.startswith("@W+"): role = l.split()[1]; cnt = OPT["wstep"]; continue
        if l.startswith("@W-"): role = None; continue
        isins = l.startswith("    ") and not l.strip().startswith(";")
        if role and isins and OPT["warm"]:
            if cnt >= OPT["wstep"]:
                spots.setdefault(role, []).append(len(out)); out.append(None); cnt = 0
            cnt += 1
        out.append(l)
    for role, sp in spots.items():
        n = nchain[role]; per = -(-len(sp) // n)
        for k, pos in enumerate(sp):
            c, first, last = k // per, k % per == 0, (k % per == per-1 or k == len(sp)-1)
            lab = f"L_w{role}_{c}" if first else f"L_h{role}_{k}"
            tgt = f"L_wret_{role}" if last else f"L_h{role}_{k+1}"
            out[pos] = f"{lab}:\n    s_cbranch_execz {tgt}"
        assert -(-len(sp) // per) == n, (role, len(sp), per, n)
    return out

def gen(a):
    kernel_header(a, NAME)
    a("s_cmp_ge_u32 s2, 256", "s_cbranch_scc1 L_end")
    a("s_load_dwordx16 s[48:63], s[0:1], 0", "s_load_dwordx4 s[64:67], s[0:1], 64", "s_load_dwordx2 s[68:69], s[0:1], 80")
    a("v_lshrrev_b32 v2, 6, v0", "v_and_b32 v1, 63, v0")
    a("s_bfe_u32 s73, s2, 0x10003", "s_and_b32 s4, s2, 3", "s_lshl1_add_u32 s4, s4, s73", "s_bfe_u32 s5, s2, 0x10002")
    a("v_readfirstlane_b32 s3, v2")
    a("s_lshr_b32 s72, s2, 4", "s_lshl4_add_u32 s5, s5, s72")
    a("s_lshl2_add_u32 s72, s73, s5", "s_and_b32 s72, s72, 7")
    if OPT["tr"]:
        trace_init(a); OPT["tr"].add("start"); trace(a, "start")
    a("s_cmp_ge_u32 s3, 4", "s_cbranch_scc1 L_awave")
    gen_loader(a)
    gen_gwave(a)
    a.label("L_end")
    a("s_endpgm")
    emit_ool(a)
    a.raw(".p2align 6")
    a.label("L_awave")
    gen_awave(a)
    emit_ool(a)
    a.label("L_codeend")
    a.lines = insert_hops(a.lines, {"a": 3})
    if OPT["dbg"]:
        out = []; n = 0; last = ""
        for l in a.lines:
            if l.endswith(":"): last = l
            if l.strip() == f"s_mov_b32 s{sBUD}, 0":
                n += 1; print("wait id", n, "after", last)
                out += [f"    s_cmp_eq_u32 s59, 0", f"    s_cmov_b32 s59, {n}"]
            if l.strip() == f"s_mov_b32 s{sBUD}, 20000": out.append("    s_mov_b32 s82, 0")
            out.append(l)
        a.lines = out
    return kernel_desc(NAME, 168, 102)

def common(a):
    a("s_bfe_u32 s71, s2, 0x20003", "s_lshr_b32 s7, s2, 5", "s_and_b32 s6, s2, 7", "s_lshl2_add_u32 s6, s6, s71")
    a(f"v_mov_b32 v{vCB}, {CB}", f"v_mov_b32 v{vONE}, 1", f"s_mov_b32 s{sBUD}, 20000", "v_lshlrev_b32 v2, 4, v1")
def slicep(a):
    a("s_bfe_u32 s101, s5, 0x10003", "s_lshl1_add_u32 s101, s4, s101", "s_and_b32 s78, s2, 3",
      "s_mov_b32 s100, 0x120c0600", "s_cmp_eq_u32 s78, 1", "s_cmov_b32 s100, 0x26211c17", "s_cmp_eq_u32 s78, 2", "s_cmov_b32 s100, 0x3c36302b",
      "s_cmp_eq_u32 s78, 3", "s_cmov_b32 s100, 0x514c4742", "s_lshl_b32 s78, s101, 3", "s_lshr_b32 s100, s100, s78", "s_and_b32 s100, s100, 0xff",
      "s_lshr_b32 s97, 0xe07, s101", "s_and_b32 s97, s97, 1")
def epoch(a): a(f"s_add_u32 s44, s68, {EP:#x}", "s_addc_u32 s45, s69, 0", f"s_load_dword s{sN}, s[44:45], 0")
SLOT = 24576

vWd, vT2, vG, vTH, vP1, vGA = 8, 9, 10, 60, 61, 13
sH0, sW0, sW1, sR = 60, 62, 63, 64
Wf = [12, 20]; HD = 4; H = [28 + 8*i for i in range(HD)]
accD = [104 + 16*i for i in range(4)]
WF = 40; OFR = 8
NS = 3
vR0, vR1 = 2, 5
sT = 55
def dconst(a):
    a(f"s_lshl_b32 s{sT}, s6, 12", f"s_add_u32 s{sT}, s{sT}, {FH + 14*128:#x}", f"v_add_u32 v{vP1}, s{sT}, v7")
    a("v_bfe_u32 v3, v1, 2, 3", f"v_lshl_add_u32 v{vWd}, v3, 10, v14", "s_lshr_b32 s78, s3, 1", "s_lshl_b32 s78, s78, 6", f"v_xor_b32 v{vWd}, s78, v{vWd}")
    a("v_bfe_u32 v9, v1, 1, 2", "v_lshlrev_b32 v9, 3, v9", "v_bfe_u32 v11, v1, 3, 1", "v_lshl_add_u32 v9, v11, 6, v9",
      "s_lshr_b32 s78, s6, 2", "s_lshl_b32 s78, s78, 7", f"s_lshr_b32 s{sT}, s3, 1", f"s_lshl_b32 s{sT}, s{sT}, 10", f"s_add_u32 s78, s78, s{sT}",
      f"s_and_b32 s{sT}, s3, 1", f"s_lshl_b32 s{sT}, s{sT}, 5", f"s_add_u32 s78, s78, s{sT}", "s_add_u32 s78, s78, s71",
      f"s_lshr_b32 s{sT}, s6, 4", f"s_lshl2_add_u32 s78, s{sT}, s78", "v_add_u32 v9, s78, v9", "v_and_b32 v11, 1, v1", "v_lshlrev_b32 v11, 9, v11", "v_xor_b32 v9, v9, v11",
      "v_cmp_gt_u32 vcc, 16, v1", "v_lshlrev_b32 v9, 7, v9", f"v_add_u32 v9, {FP:#x}, v9",
      f"v_cndmask_b32 v{vP1}, v{vP1}, v9, vcc")
    a(f"s_mul_i32 s{sH0}, s3, {22*65536}", "s_lshl_b32 s78, s6, 11", f"s_add_u32 s{sH0}, s{sH0}, s78")
    a(f"s_lshl_b32 s{sW0}, s3, 17", "s_lshl_b32 s78, s7, 7", f"s_add_u32 s{sW0}, s{sW0}, s78")
    a(f"s_mul_i32 s{sW1}, s3, {22*16384}", f"s_add_u32 s{sW1}, s{sW1}, s78")
    a(f"s_mul_i32 s{sR}, s3, 7680", f"s_add_u32 s{sR}, s{sR}, {RING}")
    a("v_lshrrev_b32 v3, 5, v1", "v_lshlrev_b32 v3, 2, v3", "v_bfe_u32 v9, v1, 2, 2", "v_add_u32 v3, v3, v9", "v_lshlrev_b32 v3, 6, v3",
      "v_bfe_u32 v9, v1, 4, 1", "v_lshl_add_u32 v3, v9, 5, v3", "v_and_b32 v9, 3, v1", "v_lshl_add_u32 v3, v9, 3, v3", f"v_add_u32 v{vT2}, s{sR}, v3",
      "v_lshrrev_b32 v3, 5, v1", "v_mul_u32_u24 v3, 768, v3", f"v_add_u32 v63, v3, v{vT2}")
    a("v_lshrrev_b32 v3, 4, v1", "v_lshlrev_b32 v3, 16, v3", "v_and_b32 v11, 15, v1", f"v_lshl_add_u32 v{vTH}, v11, 7, v3",
      f"v_and_b32 v{vGA}, 31, v1", f"v_lshlrev_b32 v{vGA}, 2, v{vGA}")
    a("s_lshr_b32 s57, s2, 3", "s_lshl2_add_u32 s57, s57, s3", "s_lshl_b32 s58, s57, 12", f"s_mul_i32 s57, s57, {86*128}")


def gen_loader(a):
    vX0, vX1, vW, vW1, vG0, vG2 = 16, 17, 18, 19, 20, 21
    a("s_setprio 3")
    a("v_lshrrev_b32 v19, 3, v1", "v_lshrrev_b32 v3, 4, v1", "v_and_b32 v7, 7, v1", "v_xor_b32 v3, v3, v7",
      "v_lshlrev_b32 v3, 4, v3", f"v_lshl_add_u32 v{vX0}, v19, 10, v3",
      f"v_xor_b32 v{vX1}, 64, v{vX0}", f"v_add_u32 v{vX1}, {0x2000 - 1024}, v{vX1}")
    a("v_bfe_u32 v20, v1, 2, 3", "v_mul_u32_u24 v19, 3072, v20", "v_lshrrev_b32 v3, 5, v1", "v_and_b32 v7, 3, v1", "v_lshlrev_b32 v7, 4, v7",
      "v_lshl_add_u32 v14, v3, 6, v7", f"v_add_u32 v{vW}, v19, v14", f"v_add_u32 v{vW1}, {8*3072 - 1024}, v{vW}", f"v_xor_b32 v{vW1}, 32, v{vW1}")
    a("s_lshl_b32 s74, s5, 16", "s_lshl_b32 s78, s3, 14", "s_add_u32 s74, s74, s78")
    a("s_mul_i32 s75, s3, 49152", "s_lshl_b32 s78, s4, 7", "s_add_u32 s75, s75, s78")
    a("s_lshl_b32 s76, s3, 11", f"s_add_u32 s77, s76, {P1W}", "s_mov_b32 s73, s72")
    a("s_mov_b32 s10, 0x200000", "s_mov_b32 s11, 0x20000", "s_mov_b32 s14, 0x180000", "s_mov_b32 s15, 0x20000")
    def xunit():
        a("s_lshl_b32 s78, s72, 7", "s_mov_b32 m0, s76", "s_add_u32 s78, s78, s74",
          f"buffer_load_dwordx4 v{vX0}, {rX}, s78 offen lds", f"buffer_load_dwordx4 v{vX1}, {rX}, s78 offen offset:1024 lds",
          "s_add_u32 s76, s76, 8192", "s_add_u32 s72, s72, 1", "s_and_b32 s72, s72, 7")
    def wblock():
        a("s_mul_i32 s79, s73, 196608", "s_mov_b32 m0, s77", "s_add_u32 s79, s79, s75")
        for mat in range(3):
            if mat: a(f"s_add_u32 m0, s77, {mat*(8192 - 1024)}", "s_add_u32 s73, s73, 1" if mat == 1 else "s_and_b32 s73, s73, 7")
            a(f"buffer_load_dwordx4 v{vW}, {rWQ}, s79 offen offset:{mat*1024} lds", f"buffer_load_dwordx4 v{vW1}, {rWQ}, s79 offen offset:{mat*1024 + 1024} lds")
    def nslot(): a(f"s_add_u32 s77, s77, {SLOT}", "s_cmp_eq_u32 s77, s81", "s_cmov_b32 s77, s80")
    def whalf(second):
        a("s_bfe_u32 s78, s5, 0x10003")
        if second: a("s_xor_b32 s78, s78, 1")
        a("s_lshl_b32 s47, s78, 5", f"v_xor_b32 v27, s47, v{vW}")
        a("s_mul_i32 s79, s73, 196608", "s_add_u32 s79, s79, s75", f"s_mul_i32 s47, s78, {8*3072}", "s_add_u32 s79, s79, s47", "s_lshl_b32 s78, s78, 10", "s_add_u32 s78, s78, s77")
        for mat in range(3):
            a(f"s_add_u32 m0, s78, {mat*(8192 - 1024)}", "s_nop 0", f"buffer_load_dwordx4 v27, {rWQ}, s79 offen offset:{mat*1024} lds")
        if second: a("s_add_u32 s73, s73, 1", "s_and_b32 s73, s73, 7")
    a("s_waitcnt lgkmcnt(0)")
    a("s_mov_b64 s[8:9], s[48:49]", "s_mov_b64 s[12:13], s[50:51]")
    stamp(a)
    if OPT["fs"]:
        xunit(); whalf(0); xunit()
    else:
        xunit(); wblock()
    epoch(a); common(a)
    a("s_mov_b32 s80, s77", f"s_add_u32 s81, s77, {4*SLOT}")
    a("s_cmp_lt_u32 s3, 2", "s_cselect_b32 s24, s56, s58", "s_cselect_b32 s25, s57, s59", f"s_mov_b32 s26, {512*1376*2:#x}", "s_mov_b32 s27, 0x20000",
      "s_cselect_b32 s78, 0, 32")
    a("v_lshrrev_b32 v3, 2, v1", "v_mul_u32_u24 v3, 2752, v3", "v_add_u32 v3, v3, v7", f"v_and_b32 v{vG0}, 32, v1", f"v_xor_b32 v{vG0}, v{vG0}, v3")
    slicep(a)
    a("s_and_b32 s100, s100, -2")
    a.srd(16, 68, 69, 16*MB)
    a.srd(20, 68, 69, HF_BYTES, add=HF)
    a.srd(28, 60, 61, 1376*512*2)
    a.srd(32, 52, 53, 512*512*2)
    a.srd(36, 64, 65, 2048*512*2)
    a.srd(40, 62, 63, 1024)
    a("v_lshlrev_b32 v7, 7, v1")
    if OPT["dbg"]: a("s_mov_b32 s59, 0")
    dconst(a)
    a("s_lshr_b32 s78, s3, 1", "s_lshr_b32 s66, 0xfef7, s101", "s_and_b32 s66, s66, 1", "s_or_b32 s66, s66, s78", f"s_add_u32 s46, s73, {1 if OPT['fs'] else 0}")
    def sig(n):
        a(f"s_waitcnt vmcnt({n})", "s_barrier"); trace(a, "ld")
    def wb():
        nslot(); wblock()
    if OPT["fs"] == 1:
        whalf(1); wb(); sig(6)
        xunit(); xunit(); sig(4)
        wb(); wb(); sig(6)
        xunit(); wb(); sig(8)
        xunit(); wb(); xunit(); sig(10)
        wb(); xunit(); wb(); sig(16)
    elif OPT["fs"] == 2:
        whalf(1); wb(); sig(6)
        wb(); xunit(); xunit(); sig(10)
        wb(); sig(8)
        xunit(); wb(); xunit(); sig(10)
        wb(); xunit(); wb(); sig(16)
        xunit(); wb(); sig(16)
    elif OPT["fs"] in (3, 4):
        whalf(1); wb(); sig(6)
        if OPT["fs"] == 3:
            wb(); xunit(); xunit(); sig(10)
            wb(); sig(8)
        else:
            xunit(); xunit(); sig(4)
            wb(); wb(); sig(6)
        for n in range(3):
            xunit(); wb(); sig(8)
        xunit(); wb()
    else:
        xunit(); xunit(); xunit()
        sig(6)
        wb(); wb(); sig(6)
        wb(); sig(6)
        xunit(); wb(); xunit(); sig(10)
        wb(); xunit(); wb(); sig(16)
        xunit(); wb(); sig(16)
    a("s_lshl_b32 s75, s100, 5", "s_and_b32 s78, s3, 1", f"s_mul_i32 s77, s78, {KST}", "s_add_u32 s75, s75, s77",
      "s_mul_i32 s77, s78, 6144", "s_lshr_b32 s78, s3, 1", "s_mul_i32 s78, s78, 3072", "s_add_u32 s77, s77, s78",
      "s_xor_b32 s74, s74, 0x80000", "s_lshl_b32 s80, s3, 11")
    def gw(m):
        base = P1W + [0, 2, 3][m % 3]*SLOT
        a(f"s_mul_i32 s79, s73, {4*KST}", f"s_add_u32 m0, s77, {base}", "s_add_u32 s79, s79, s75")
        for e in range(2):
            for t in range(3):
                if e or t: a(f"s_add_u32 m0, s77, {base + e*12288 + t*(1024 - 64)}", {(0,1): "s_add_u32 s73, s73, 1", (0,2): "s_and_b32 s73, s73, 7", (1,0): f"s_add_u32 s79, s79, {2*KST}"}.get((e, t), "s_nop 0"))
                a(f"buffer_load_dwordx4 v{vG0}, {rWG}, s79 offen offset:{t*64} lds")
    def gx(m):
        a(f"s_add_u32 s76, s80, {P1W + SLOT + ((m+2) % 3)*8192}")
        xunit()
    if OPT["fs"] >= 3:
        sig(8); gw(0); gx(0); sig(8)
    else:
        gw(0); sig(14); gx(0); sig(8)
    a("s_waitcnt lgkmcnt(0)", f"s_add_u32 s{sN}, s{sN}, 1")
    if OPT["sprio"]: a("s_setprio 2")
    def gate(m, part):
        p = m - 1
        if (part == 0 and p == 4) or (part == 1 and p > 4): return
        m = 2*m + part
        with Ool(a):
            a.label(f"L_gt{m}")
            if p == 0 and part:
                a("v_and_b32 v15, 31, v1", "v_lshrrev_b32 v26, 5, v1", "v_bfe_u32 v22, v1, 1, 3", "v_xor_b32 v3, v26, v22",
                  "v_lshlrev_b32 v3, 4, v3", "v_lshl_add_u32 v22, v15, 7, v3", "s_lshl_b32 s78, s3, 12", "v_add_u32 v22, s78, v22",
                  "v_xor_b32 v23, 32, v22", "v_xor_b32 v24, 64, v22", "v_xor_b32 v25, 96, v22")
            if 1 <= p <= 4 and part:
                q = p - 1
                rdx = lambda n: f"ds_read_b128 {vr(152+4*(n&3),4)}, v{22+(n&3)} offset:{(2*q + (n>>2))*8192}"
                a(*[rdx(n) for n in range(4)])
                for n in range(8):
                    a(f"s_waitcnt lgkmcnt({min(3, 7-n)})", f"{MFMA} {vr(136,16)}, {vr(72+32*(q&1)+4*n,4)}, {vr(152+4*(n&3),4)}, {'0' if (q == 0 and n == 0) else vr(136,16)}")
                    if n + 4 < 8: a(rdx(n+4))
            if p < 4 and not part:
                a("v_lshrrev_b32 v26, 5, v1", "v_lshlrev_b32 v26, 4, v26")
                for i in range(2):
                    a(f"s_add_u32 s78, s46, {2*p+i+7}", "s_and_b32 s78, s78, 7", "s_lshl_b32 s78, s78, 7")
                    for ks in range(4): a(f"buffer_load_dwordx4 {vr(72+32*(p&1)+16*i+4*ks,4)}, v26, {rGW}, s78 offen offset:{ks*32}")
            if p == 5:
                a("s_lshl1_add_u32 s78, s5, s3", "s_lshl_b32 s78, s78, 7", f"s_add_u32 s78, s78, {GT:#x}", f"s_mov_b32 s79, {fbits(-LOG2E):#x}",
                  "v_mul_f32 v136, s79, v136", "v_exp_f32 v136, v136", "s_nop 0", "v_add_f32 v136, 1.0, v136", "v_rcp_f32 v136, v136", "s_nop 0",
                  f"buffer_store_dword v136, v{vGA}, {rWS}, s78 offen sc1")
            if p == 6:
                a("s_lshl_b32 s78, s5, 5", "s_add_u32 s78, s78, s3", "s_lshl_b32 s78, s78, 7", f"s_add_u32 s78, s78, {FH + 30*128:#x}")
                flag_store(a, "s78")
            a(f"s_branch L_gtr{m}")
        a("s_cmp_eq_u32 s66, 0", f"s_cbranch_scc1 L_gt{m}")
        a.label(f"L_gtr{m}")
    for m in range(1, 8):
        gate(m, 0); gx(m); gw(m); gate(m, 1); sig(8)
    a("s_lshr_b32 s76, s6, 2", "s_lshl_b32 s76, s76, 12", f"s_add_u32 s76, s76, {FQ:#x}", "s_mov_b32 exec_hi, 0",
      f"buffer_load_dword v{vPOLL}, v7, {rWS}, s76 offen sc1")
    a("s_lshl_b32 s81, s3, 10", f"s_mul_i32 s80, s3, {VST}", f"s_add_u32 s80, s80, {VB}",
      "s_lshl_b32 s79, s6, 16", "s_add_u32 s79, s79, s81", f"s_add_u32 s79, s79, {KF:#x}", "s_mov_b32 s74, 0")
    with Ool(a):
        a.label("L_g_p0r")
        gpoll(a, 7, "s76", sleep=1)
        a("s_branch L_g_p0k")
    a("s_waitcnt vmcnt(0)", f"v_cmp_ne_u32 vcc, s{sN}, v{vPOLL}", "s_cbranch_vccnz L_g_p0r")
    a.label("L_g_p0k")
    a("s_mov_b64 exec, -1", "s_barrier")
    trace(a, "ld")
    kvpair(a); kvpair(a)
    a("s_barrier")
    a.label("L_ld_done")
    a("s_setprio 3")
    stamp(a)

def kvpair(a):
    a("s_mov_b32 m0, s81", f"s_add_u32 s76, s79, {VF - KF:#x}", f"buffer_load_dwordx4 v2, {rWS}, s79 offen sc1 lds",
      "s_mov_b32 m0, s80", "s_add_u32 s77, s79, 0x8000", f"buffer_load_dwordx4 v2, {rWS}, s76 offen sc1 lds",
      "s_add_u32 m0, s81, 0x8000", "s_add_u32 s76, s76, 0x8000", f"buffer_load_dwordx4 v2, {rWS}, s77 offen sc1 lds",
      f"s_add_u32 m0, s80, {32*VST}", "s_add_u32 s79, s79, 4096", f"buffer_load_dwordx4 v2, {rWS}, s76 offen sc1 lds",
      "s_add_u32 s81, s81, 4096", f"s_add_u32 s80, s80, {4*VST}")

Kf, Qa, Qb, V1, V2, Sa, Sb, Oa, Ob = 8, 16, 20, 24, 28, 32, 48, 64, 80
IDX, vK, vV0, vV1, vHC, vGT, vTC, vL4, vON, vST, vF4, vE0, vE1, vE2, vWg, vSK = range(152, 168)
HA = 104
def gen_awave(a):
    vXa = [8, 9, 10, 11]; vWb, vWa, vXb = 12, 13, 14
    a("s_sub_u32 s3, s3, 4", f"v_lshlrev_b32 v{vTC}, 7, v1")
    a("s_cmp_lg_u32 s3, 0", "s_cbranch_scc1 L_a_nocode")
    a("s_getpc_b64 s[40:41]")
    a.label("L_pc")
    a(f"s_sub_u32 s40, s40, L_pc-{NAME}", "s_subb_u32 s41, s41, 0", f"s_mov_b32 s42, L_codeend-{NAME}", "s_mov_b32 s43, 0x20000",
      "s_lshr_b32 s76, s2, 3", "s_lshl_b32 s76, s76, 10", "s_mov_b64 exec, 0xff", f"buffer_load_dword v{vGT}, v{vTC}, s[40:43], s76 offen", "s_mov_b64 exec, -1")
    a.label("L_a_nocode")
    common(a)
    a("s_bfe_u32 s73, s3, 0x10001", "s_and_b32 s74, s3, 1", "s_lshr_b32 s75, s3, 2")
    a("v_and_b32 v15, 15, v1", "v_lshrrev_b32 v16, 4, v1", "v_bfe_u32 v7, v1, 1, 3", "v_xor_b32 v3, v16, v7",
      "v_lshlrev_b32 v3, 4, v3", "v_lshl_add_u32 v15, v15, 7, v3",
      "s_lshl_b32 s76, s73, 12", f"v_add_u32 v{vXb}, s76, v15", f"v_mov_b32 v{vXa[0]}, v{vXb}")
    a("v_bfe_u32 v3, v1, 2, 2", "v_lshlrev_b32 v15, 6, v3", "v_and_b32 v3, 3, v1", "v_lshl_add_u32 v15, v3, 3, v15",
      "v_bfe_u32 v3, v1, 4, 1",
      "v_lshl_add_u32 v7, v16, 10, v15", "v_lshl_add_u32 v7, v3, 5, v7",
      "s_lshl_b32 s76, s74, 9", f"s_add_u32 s76, s76, {P1W}", f"v_add_u32 v{vWb}, s76, v7")
    a("v_lshl_add_u32 v15, v3, 9, v15", "v_lshrrev_b32 v16, 5, v1", "v_mul_u32_u24 v7, 6144, v16", "v_add_u32 v15, v15, v7", "s_xor_b32 s72, s74, s75", "v_xor_b32 v7, s72, v3",
      "v_lshl_add_u32 v15, v7, 5, v15", f"v_add_u32 v{vWg}, {P1W}, v15")
    a("s_waitcnt lgkmcnt(0)")
    epoch(a)
    a.srd(16, 68, 69, 16*MB)
    a.srd(20, 68, 69, HF_BYTES, add=HF)
    if OPT["tlb"]:
        with Ool(a):
            a.label("L_a_tlb")
            a("v_lshlrev_b32 v3, 20, v1", "s_mov_b64 exec, 0xffff", f"buffer_load_dword v{vGT}, v3, {rWS}, 0 offen", f"buffer_load_dword v{vGT}, v3, {rHF}, 0 offen",
              "s_mov_b64 exec, 3", "s_mov_b32 s27, 0x20000")
            for p, n in ((56, 512*1376*2), (58, 512*1376*2), (60, 512*1376*2), (52, 512*512*2), (64, 2048*512*2), (62, 1024)):
                a(f"s_mov_b64 s[24:25], s[{p}:{p+1}]", f"s_mov_b32 s26, {n:#x}", f"buffer_load_dword v{vGT}, v3, s[24:27], 0 offen")
            a("s_mov_b64 exec, -1", "s_branch L_a_tlbr")
        a("s_cmp_eq_u32 s3, 1", "s_cbranch_scc1 L_a_tlb")
        a.label("L_a_tlbr")
    if OPT["dbg"]: a("s_mov_b32 s59, 0")
    a("s_lshl1_add_u32 s48, s5, s73")
    a("s_and_b32 s77, s3, 3")
    a("s_lshl_b32 s76, s75, 15", f"v_add_u32 v{vK}, s76, v2")
    a("v_and_b32 v3, 15, v1", "v_lshlrev_b32 v3, 4, v3", "v_lshrrev_b32 v7, 5, v1", "v_lshl_add_u32 v3, v7, 8, v3",
      "v_and_b32 v7, 27, v1", "v_cmp_eq_u32 vcc, 16, v7", "v_mov_b32 v16, 0x18000", "v_mov_b32 v15, 1024",
      "v_cndmask_b32 v16, v16, v15, vcc",
      "v_and_b32 v7, 16, v1", "v_cmp_eq_u32 vcc, 0, v7", "v_add_u32 v15, 512, v3",
      f"s_mul_i32 s76, s75, {32*VST}", f"s_add_u32 s76, s76, {VB}",
      f"v_cndmask_b32 v{vV0}, v16, v3, vcc", f"v_cndmask_b32 v{vV1}, v16, v15, vcc",
      f"v_add_u32 v{vV0}, s76, v{vV0}", f"v_add_u32 v{vV1}, s76, v{vV1}")
    a(f"v_lshl_add_u32 v{vST}, v7, 5, v3", f"v_mov_b32 v{IDX}, 0xdddd")
    a(f"v_and_b32 v{vL4}, 31, v1", f"v_lshlrev_b32 v{vL4}, 2, v{vL4}")
    a(f"v_mul_u32_u24 v{vON}, {VST//4}, v{vL4}", "s_add_u32 s76, s76, 1024", f"v_add_u32 v{vON}, s76, v{vON}")
    a("s_lshl_b32 s76, s75, 2", f"v_add_u32 v{vHC}, s76, v{vCB}")
    a("v_and_b32 v3, 3, v1", f"v_lshl_add_u32 v{vF4}, v3, 2, v{vCB}")
    a("s_mul_i32 s79, s77, 2304", "s_lshl_b32 s80, s75, 15", "s_add_u32 s79, s79, s80", f"v_add_u32 v{vE0}, s79, v2",
      f"v_lshrrev_b32 v{vE1}, 2, v2", f"v_add_u32 v{vE1}, s79, v{vE1}", "s_lshl_b32 s80, s3, 2", f"v_add_u32 v{vE2}, s80, v{vCB}")
    a("s_lshl_b32 s88, s7, 3", "s_lshl1_add_u32 s88, s77, s88", "s_add_u32 s88, s88, s75", "s_lshl_b32 s89, s6, 16")
    a("s_lshl_b32 s90, s88, 10", "s_add_u32 s90, s90, s89", "s_xor_b32 s91, s90, 1024")
    a("s_lshl_b32 s95, s75, 5", "s_add_u32 s95, s95, s77", "s_lshl_b32 s94, s95, 10", f"s_mul_i32 s95, s95, {VST}", f"s_add_u32 s95, s95, {VB}",
      "s_add_u32 s92, s89, s94", f"s_add_u32 s92, s92, {KF:#x}", f"s_add_u32 s93, s92, {VF - KF:#x}")
    a("s_lshl_b32 s96, s4, 5", "s_add_u32 s96, s96, s5", "s_lshl_b32 s96, s96, 7", f"s_add_u32 s96, s96, {FQ:#x}")
    slicep(a)
    a("s_xor_b32 s76, s100, s72", "s_and_b32 s76, s76, 1", "s_add_u32 s98, s100, s76", "s_xor_b32 s79, s76, 1", "s_or_b32 s97, s97, s79",
      "s_and_b32 s76, s76, s100", "s_lshl_b32 s76, s76, 10", f"v_add_u32 v{vWg}, s76, v{vWg}")
    a("s_lshl_b32 s76, s75, 3", "s_xor_b32 s76, s76, s5", "s_lshl_b32 s98, s98, 16", "s_lshl1_add_u32 s79, s76, s73",
      "s_lshl_b32 s79, s79, 10", "s_add_u32 s98, s98, s79",
      "s_lshl4_add_u32 s99, s76, s101", "s_lshl2_add_u32 s99, s99, s77", "s_lshl_b32 s99, s99, 7", f"s_add_u32 s99, s99, {FP:#x}")
    a("s_lshl_b32 s49, s4, 2", "s_lshl1_add_u32 s49, s74, s49", "s_lshl_b32 s49, s49, 6", "s_add_u32 s49, s49, s48", "s_lshl_b32 s49, s49, 10")
    for r in range(16, 40): a(f"v_mov_b32 v{r}, 0")
    a("s_mov_b32 s79, 0", "s_mov_b32 s80, 0")
    def nslot(): a(f"s_add_u32 s80, s80, {SLOT}", f"s_cmp_eq_u32 s80, {4*SLOT}", "s_cmov_b32 s80, 0")
    def consumer(lab, steps, buf, nstage, adv, hook=None, pre=False, odd=True):
        per = 8 + 4*len(steps[0][1])
        nrd = 2 + 2*len(steps[0][1])
        tot = nrd*len(steps)
        def readlist(b):
            r = []
            for i, (xr, ws) in enumerate(steps):
                f = buf[b] + per*i
                r += [f"ds_read_b128 {vr(f,4)}, v{xr}", f"ds_read_b128 {vr(f+4,4)}, v{xr} offset:2048"]
                for n, (wa, wo, acc, sw) in enumerate(ws):
                    r += [f"ds_read_b64_tr_b16 {vr(f+8+4*n,2)}, v{wa} offset:{wo}", f"ds_read_b64_tr_b16 {vr(f+10+4*n,2)}, v{wa} offset:{wo+256}"]
            return r
        def m1(b, i, n, th):
            f = buf[b] + per*i
            wa, wo, acc, sw = steps[i][1][n]
            A, B = (vr(f+4*th,4), vr(f+8+4*n,4)) if sw else (vr(f+8+4*n,4), vr(f+4*th,4))
            a(f"{M16} {vr(acc+4*th,4)}, {A}, {B}, {vr(acc+4*th,4)}")
        def mf(b, i, n):
            m1(b, i, n, 0); m1(b, i, n, 1)
        mms = [(i, n) for i in range(len(steps)) for n in range(len(steps[i][1]))]
        def front(b):
            sv = a.lines; a.lines = []
            adv()
            fill = readlist(1-b) + [l.strip() for l in a.lines]; a.lines = sv
            ml = [(i, n, th) for i, n in mms[:-1] for th in range(2)]
            ng = min(len(ml), max(1, (len(ml) + 2)*OPT["spr"]//100))
            pos = 0
            for g, x in enumerate(ml):
                m1(b, *x)
                if g < ng:
                    e = len(fill)*(g+1)//ng
                    a(*fill[pos:e]); pos = e
        def full(b):
            done = 0
            for i, n in mms:
                done += 4 if n == 0 else 2
                a(f"s_waitcnt lgkmcnt({min(15, tot - done)})")
                mf(b, i, n)
        a("s_barrier")
        trace(a, "p1")
        a(*readlist(0))
        adv()
        if pre == 1:
            full(0)
            a("s_barrier")
            a(*readlist(1))
            adv()
            a(f"s_branch {lab}_in2")
        elif pre == 2:
            a("s_waitcnt lgkmcnt(0)", "s_barrier")
            front(0)
            mf(0, *mms[-1])
            full(1)
            a("s_barrier")
            a(*readlist(0))
            adv()
            a("s_mov_b32 s79, 2", f"s_branch {lab}_in")
        else:
            a(f"s_branch {lab}_in")
        emit_ool(a)
        a.label(lab)
        mf(1, *mms[-1])
        a.label(lab + "_in")
        a("s_waitcnt lgkmcnt(0)")
        if odd: a("s_barrier")
        trace(a, "p1")
        front(0)
        a(f"s_cmp_eq_u32 s79, {nstage - 2}", f"s_cbranch_scc1 {lab}_e")
        if hook: hook(lab, lambda: mf(0, *mms[-1]))
        else:
            mf(0, *mms[-1])
            a.label(lab + "_in2")
            a("s_waitcnt lgkmcnt(0)", "s_barrier")
        trace(a, "p1")
        a("s_add_u32 s79, s79, 2")
        front(1)
        a(f"s_branch {lab}")
        emit_ool(a)
        a.label(lab + "_e")
        mf(0, *mms[-1])
        full(1)
    vWc, vWv, vWx = vXa[2], vXa[3], 15
    a("s_lshl_b32 s76, s75, 5", f"v_xor_b32 v{vWx}, s76, v{vWb}", "s_xor_b32 s76, s75, 1", "s_lshl_b32 s76, s76, 13", f"v_add_u32 v{vWb}, s76, v{vWb}")
    def addr1():
        a(f"v_add_u32 v{vWa}, s80, v{vWb}", f"v_add_u32 v{vWv}, s80, v{vWx}", f"v_xor_b32 v{vXa[1]}, 64, v{vXa[0]}", f"v_xor_b32 v{vWc}, 32, v{vWa}")
    def swaps(r0, n):
        a("s_nop 1")
        for r in range(r0, r0 + 4*n, 4): a(f"v_permlane16_swap_b32 v{r}, v{r+2}", f"v_permlane16_swap_b32 v{r+1}, v{r+3}")
    def adv1():
        nslot()
        a(f"v_add_u32 v{vXa[0]}, 8192, v{vXa[0]}")
        addr1()
    addr1()
    a("s_waitcnt lgkmcnt(0)", f"s_add_u32 s{sN}, s{sN}, 1")
    stamp(a)
    a("s_cmp_eq_u32 s75, 0", f"s_cselect_b32 s50, 1.0, {fbits(QSCALE):#x}", f"s_cselect_b32 s52, {KF:#x}, 0", "s_add_u32 s52, s52, s49", "s_add_u32 s53, s52, 0x10000",
      "s_lshl_b32 s54, s75, 16", "s_add_u32 s54, s54, s49", f"s_add_u32 s54, s54, {VF:#x}")
    consumer("L_p1", [(vXa[kk], [(vWa, kk*4096, 16, False), (vWc, kk*4096, 24, False), (vWv, 16384 + kk*4096, 32, True)]) for kk in range(2)], [48, 96], 8, adv1, pre=OPT['pre'])
    a.nop(3)
    for r in range(0, 16, 2): a(f"v_pk_mul_f32 {vr(16+r,2)}, {vr(16+r,2)}, s[50:51] op_sel_hi:[1,0]")
    for r in range(12): a(f"v_cvt_pk_bf16_f32 v{16+r}, v{16+2*r}, v{17+2*r}")
    swaps(16, 3)
    ST = [[f"buffer_store_dwordx4 v[16:19], v2, {rWS}, s52 offen sc1"], [f"buffer_store_dwordx4 v[20:23], v2, {rWS}, s53 offen sc1"],
          [f"buffer_store_dwordx4 v[24:27], v{vST}, {rWS}, s54 offen sc1"]]
    npre = {0: 0, 1: 1, 2: 2, -1: 3}[OPT["ns"]]
    for x in ST[:npre]: a(*x)
    stamp(a)
    for r in range(4): a(f"v_mov_b32 v{36+r}, 0")
    a("s_nop 1")
    for t in range(3): a(f"{MFMA} {vr(HA+16*t,16)}, v[36:39], v[36:39], 0")
    XR = P1W + SLOT
    a("s_mov_b32 s79, 0", "s_cmp_eq_u32 s75, 0", f"s_cselect_b32 s76, 0, {XR + 16384}", f"s_mov_b32 s77, {XR}", f"s_mov_b32 s78, {XR + 24576}",
      "s_mov_b32 s56, 0", f"s_mov_b32 s57, {2*SLOT}", f"s_mov_b32 s58, {3*SLOT}",
      "s_cmp_eq_u32 s3, 7", f"s_cselect_b32 s81, {OPT['nd']}, -1")
    def addr2():
        a(f"v_add_u32 v{vXa[0]}, s76, v{vXb}", f"v_add_u32 v{vWa}, s56, v{vWg}")
    par = [0]
    def adv2():
        if par[0] == 0:
            a(f"v_xor_b32 v{vXa[0]}, 64, v{vXa[0]}", f"v_add_u32 v{vWa}, 12288, v{vWa}",
              "s_add_u32 s76, s76, 8192", "s_cmp_eq_u32 s76, s78", "s_cmov_b32 s76, s77",
              "s_mov_b32 s80, s56", "s_mov_b32 s56, s57", "s_mov_b32 s57, s58", "s_mov_b32 s58, s80")
        else:
            addr2()
        par[0] ^= 1
    def hook(lab, last):
        ev = {2*n: x for n, x in enumerate(ST[npre:])}
        ev[12] = [f"buffer_load_dwordx4 {vr(Qa,4)}, v2, {rWS}, s90 offen sc1", f"buffer_load_dwordx4 {vr(Qb,4)}, v2, {rWS}, s91 offen sc1"]
        with Ool(a):
            a.label(lab + "_d")
            a(f"s_cmp_eq_u32 s79, {OPT['nd']}", f"s_cbranch_scc1 {lab}_f", "s_barrier")
            for n, x in ev.items():
                a(f"s_cmp_eq_u32 s79, {n}", f"s_cbranch_scc0 {lab}_s{n}")
                if OPT["sprio"]: a("s_setprio 3", *x, "s_setprio 0")
                else: a(*x)
                a(f"s_branch {lab}_r")
                a.label(f"{lab}_s{n}")
            a(f"s_branch {lab}_r")
            a.label(lab + "_f")
            trace(a, "h")
            a("s_waitcnt vmcnt(0)", "s_cmp_eq_u32 s79, s81", "s_barrier", f"s_cbranch_scc0 {lab}_r")
            flag_store(a, "s96")
            a(f"s_branch {lab}_r")
        a(f"s_bitcmp1_b32 {sum(1 << n for n in list(ev) + [OPT['nd']])}, s79")
        last()
        a("s_waitcnt lgkmcnt(0)", f"s_cbranch_scc1 {lab}_d", "s_barrier")
        a.label(lab + "_r")
    addr2()
    a("s_cmp_eq_u32 s97, 0", "s_cbranch_scc1 L_g2")
    consumer("L_g3l", [(vXa[0], [(vWa, m*3072 + t*1024, HA + 16*t + 8*m, False) for t in range(3) for m in range(2)])], [40, 72], 16, adv2, hook, odd=False)
    a("s_branch L_gdone")
    a.label("L_g2")
    par[0] = 0
    consumer("L_g2l", [(vXa[0], [(vWa, m*3072 + t*1024, HA + 16*t + 8*m, False) for t in range(2) for m in range(2)])], [40, 72], 16, adv2, hook, odd=False)
    a.label("L_gdone")
    a("s_setprio 3")
    stamp(a)
    a("s_barrier")
    stamp(a)
    for r in range(4): a(f"v_mov_b32 v{V1+r}, 0x3f803f80")
    for r in range(4): a(f"v_mov_b32 v{V2+r}, 0")
    a(f"ds_write_b128 v{vON}, {vr(V1,4)}", f"v_add_u32 v3, v{vL4}, v{vCB}", f"ds_write_b32 v3, v{V2}", f"s_mov_b32 s80, {fbits(-LOG2E):#x}")
    for r in (Sb, Oa, Ob): a(f"{MFMA} {vr(r,16)}, {vr(V2,4)}, {vr(V2,4)}, 0")
    for t in range(3):
        g = HA + 16*t
        if t == 2: a("s_cmp_eq_u32 s97, 0", "s_cbranch_scc1 L_a_e2")
        for r in range(0, 8, 2): a(f"v_pk_mul_f32 {vr(g+r,2)}, {vr(g+r,2)}, s[80:81] op_sel_hi:[1,0]")
        for r in range(8): a(f"v_exp_f32 v{g+r}, v{g+r}")
        for r in range(0, 8, 2): a(f"v_pk_add_f32 {vr(g+r,2)}, {vr(g+r,2)}, 1.0 op_sel_hi:[1,0]")
        for r in range(8): a(f"v_rcp_f32 v{g+r}, v{g+r}")
        for r in range(0, 8, 2): a(f"v_pk_mul_f32 {vr(g+r,2)}, {vr(g+r,2)}, {vr(g+8+r,2)}")
        for r in range(4): a(f"v_cvt_pk_bf16_f32 v{g+8+r}, v{g+2*r}, v{g+1+2*r}")
        swaps(g+8, 1)
    a.label("L_a_e2")
    for r in range(4): a(f"v_mov_b32 v{HA+r}, -1")
    a("s_mov_b32 s77, s88", "s_mov_b32 s78, s89", "s_mov_b32 s48, s90")
    a("s_waitcnt vmcnt(0) lgkmcnt(0)", "s_barrier")
    stamp(a)
    a(f"ds_read_b128 {vr(Kf,4)}, v{vK}", f"ds_read_b128 {vr(V1,4)}, v{vV0}", "s_waitcnt lgkmcnt(1)",
      f"{MFMA} {vr(Sa,16)}, {vr(Kf,4)}, {vr(Qb,4)}, 0", "s_mov_b32 s76, 0x5f800000",
      f"v_xor_b32 v13, 16, v{vE2}", f"v_xor_b32 v14, 0x8000, v{vE0}", f"v_xor_b32 v12, 0x8000, v{vE1}")
    a.nop(12)
    woff(a)
    def h0(): flag_wait(a, cB, vF4)
    def h1(): flag_wait(a, cALL, vF4)
    def hs():
        a("s_add_u32 s79, s98, 0x20000", "s_add_u32 s80, s98, 0x40000", "s_cmp_eq_u32 s97, 0", "s_cmov_b32 s80, 0x40000000",
          f"buffer_store_dwordx4 {vr(HA+8,4)}, v2, {rHF}, s98 offen sc1", f"buffer_store_dwordx4 {vr(HA+24,4)}, v2, {rHF}, s79 offen sc1",
          f"buffer_store_dwordx4 {vr(HA+40,4)}, v2, {rHF}, s80 offen sc1")
        a(f"s_add_u32 s79, s48, {OF:#x}", f"buffer_store_dwordx4 {vr(HA,4)}, v2, {rWS}, s79 offen sc1")
    def hf():
        a("s_waitcnt vmcnt(0)")
        flag_store(a, "s99")
    def h6(): lds_wait(a, cPASS, 4, vaddr=vHC)
    def h3(): lds_arrive(a, cPASS, vHC)
    def h5():
        a("s_lshr_b32 s79, s77, 1", "s_lshl_b32 s79, s79, 5", "s_and_b32 s80, s77, 1", "s_add_u32 s79, s79, s80", "s_lshl_b32 s79, s79, 7",
          f"s_add_u32 s79, s79, {FH + 30*128:#x}")
        gpoll(a, vTC, "s79", nl=1)
        a("s_lshl_b32 s79, s77, 7", f"s_add_u32 s79, s79, {GT:#x}", f"buffer_load_dword v{vGT}, v{vL4}, {rWS}, s79 offen sc1")
    def E(S, lo, hi):
        for i in range(lo, hi): a(f"v_exp_f32 v{S+i}, v{S+i}")
    def tile(t):
        E(Sa, 0, 2)
        a(f"{SM} {vr(Oa,16)}, {vr(V2,4)}, {vr(Sb+8,8)}, v{IDX}", f"ds_read_b128 {vr(V2,4)}, v{vV1} offset:{t*VST}")
        E(Sa, 2, 6)
        a(f"{MFMA} {vr(Sb,16)}, {vr(Kf,4)}, {vr(Qa,4)}, 0")
        if t < 31: a(f"ds_read_b128 {vr(Kf,4)}, v{vK} offset:{(t+1)*1024}")
        E(Sa, 6, 12)
        a(f"s_waitcnt lgkmcnt({2 if t < 31 else 1})", f"{SM} {vr(Ob,16)}, {vr(V1,4)}, {vr(Sa,8)}, v{IDX}")
        E(Sa, 12, 16)
        E(Sb, 0, 2)
        a("s_waitcnt lgkmcnt(0)", f"{SM} {vr(Ob,16)}, {vr(V2,4)}, {vr(Sa+8,8)}, v{IDX}")
        E(Sb, 2, 6)
        if t < 31: a(f"{MFMA} {vr(Sa,16)}, {vr(Kf,4)}, {vr(Qb,4)}, 0")
        E(Sb, 6, 12)
        a(f"{SM} {vr(Oa,16)}, {vr(V1,4)}, {vr(Sb,8)}, v{IDX}")
        if t < 31: a(f"ds_read_b128 {vr(V1,4)}, v{vV0} offset:{(t+1)*VST}")
        else:
            a(f"s_add_u32 s74, s48, {OF:#x}", f"ds_write_b128 v{vE0}, {vr(Ob,4)}", f"ds_write_b128 v{vE0}, {vr(Ob+4,4)} offset:1024",
              f"ds_write_b32 v{vE1}, v{Ob+8} offset:2048", f"ds_write_b32 v{vE2}, v{vONE} offset:{cEX}")
        E(Sb, 12, 16)
    def g1():
        a("s_lshr_b32 s79, s77, 1", "s_lshl_b32 s79, s79, 5", "s_and_b32 s80, s77, 1", "s_add_u32 s79, s79, s80", "s_lshl_b32 s79, s79, 7",
          f"s_add_u32 s79, s79, {FH + 30*128:#x}", f"buffer_load_dword v3, off, {rWS}, s79 sc1")
    def g2():
        with Ool(a):
            a.label("L_a_gr")
            gpoll(a, vTC, "s79", nl=1)
            a("s_branch L_a_gk")
        a("s_waitcnt vmcnt(0)", f"v_cmp_ne_u32 vcc, s{sN}, v3", "s_lshl_b32 s80, s77, 7", f"s_add_u32 s80, s80, {GT:#x}", "s_cbranch_vccnz L_a_gr")
        a.label("L_a_gk")
        a(f"buffer_load_dword v{vGT}, v{vL4}, {rWS}, s80 offen sc1")
    if OPT["unroll"]:
        hs_t = OPT["hs"]
        ta = {7: [h1], 12: [h3], 27: [h6], 21: [g1], 25: [g2]}
        hsl = [[f"buffer_store_dwordx4 {vr(HA+8,4)}, v2, {rHF}, s98 offen sc1"],
               ["s_add_u32 s79, s98, 0x20000", f"buffer_store_dwordx4 {vr(HA+24,4)}, v2, {rHF}, s79 offen sc1"],
               ["s_add_u32 s80, s98, 0x40000", "s_cmp_eq_u32 s97, 0", "s_cmov_b32 s80, 0x40000000", f"buffer_store_dwordx4 {vr(HA+40,4)}, v2, {rHF}, s80 offen sc1"],
               [f"s_add_u32 s79, s48, {OF:#x}", f"buffer_store_dwordx4 {vr(HA,4)}, v2, {rWS}, s79 offen sc1"]]
        for n, x in enumerate(hsl):
            ta.setdefault(hs_t + n*OPT["hd"], []).append(lambda x=x: a(*x))
        pass; ta.setdefault(OPT['hf'], []).append(hf)
        def pr(kh, p):
            def f():
                lab = a.newlabel("pr")
                with Ool(a):
                    a.label(lab); a(f"s_setprio {p}", f"s_branch {lab}_r")
                a(f"s_cmp_eq_u32 s75, {kh}", f"s_cbranch_scc1 {lab}")
                a.label(lab + "_r")
            return f
        for nm, kh, p in (("l2", 0, 2), ("h2", 1, 2), ("l1", 0, 1), ("h1", 1, 1)):
            ta.setdefault(OPT[nm], []).insert(0, pr(kh, p))
        for t in range(32):
            for f in ta.get(t, []): f()
            tile(t)
            if t % 4 == 3: trace(a, "a")
        a("s_nop 1")
    else:
        a.raw(".p2align 6")
        a.label("L_a_loop")
        for t in range(4):
            if t == 3:
                a("s_cmp_lt_u32 s76, 7", "s_cbranch_scc1 L_a_hook")
                a.label("L_a_hookret")
            tile(t)
        a(f"v_add_u32 v{vK}, 4096, v{vK}", f"v_add_u32 v{vV0}, {4*VST}, v{vV0}", f"v_add_u32 v{vV1}, {4*VST}, v{vV1}")
        trace(a, "a")
        a("s_add_u32 s76, s76, 1", "s_cmp_lt_u32 s76, 8", "s_cbranch_scc1 L_a_loop")
    won(a, "a")
    a(f"{SM} {vr(Oa,16)}, {vr(V2,4)}, {vr(Sb+8,8)}, v{IDX}", "s_setprio 3")
    stamp(a)
    lp, dn = a.newlabel("xw"), a.newlabel("xwd")
    rt = retry(a, lp, dn, 1)
    a.label(lp)
    a(f"ds_read_b32 v{vPOLL}, v13 offset:{cEX}", f"ds_read_b128 {vr(Sa,4)}, v14", f"ds_read_b128 {vr(Sa+4,4)}, v14 offset:1024", f"ds_read_b32 v{Sa+8}, v12 offset:2048",
      "s_nop 3", "s_waitcnt lgkmcnt(0)", f"v_cmp_eq_u32 vcc, 0, v{vPOLL}", f"s_cbranch_vccnz {rt}")
    a.label(dn)
    a(f"v_add_f32 v{Oa+8}, v{Oa+8}, v{Sa+8}")
    for r in range(0, 8, 2): a(f"v_pk_add_f32 {vr(Oa+r,2)}, {vr(Oa+r,2)}, {vr(Sa+r,2)}")
    O = Oa
    a(f"v_pk_add_f32 v[8:9], {vr(O,2)}, {vr(O+2,2)}", f"v_pk_add_f32 v[10:11], {vr(O+4,2)}, {vr(O+6,2)}", "v_pk_add_f32 v[8:9], v[8:9], v[10:11]",
      "v_add_f32 v8, v8, v9", f"v_fma_f32 v8, v8, 0, v{O+8}")
    a("v_cmp_nle_f32 s[80:81], 1.0, v8", "v_cmp_nge_f32 vcc, s76, v8", "s_or_b64 vcc, vcc, s[80:81]", "s_cbranch_scc1 L_a_slow")
    a.label("L_a_fin")
    trace(a, "t")
    a(f"v_rcp_f32 v8, v{O+8}", "s_waitcnt vmcnt(0)", f"v_mul_f32 v8, v8, v{vGT}")
    for r in range(0, 8, 2): a(f"v_pk_mul_f32 {vr(O+r,2)}, {vr(O+r,2)}, v[8:9] op_sel_hi:[1,0]")
    for r in range(4): a(f"v_cvt_pk_bf16_f32 v{Qb+r}, v{O+2*r}, v{O+2*r+1}")
    for r in range(4): a(f"v_min_u32 v{Qb+r}, -2, v{Qb+r}")
    a(f"buffer_store_dwordx4 {vr(Qb,4)}, v2, {rWS}, s74 offen sc1")
    trace(a, "t")
    a("s_barrier")
    stamp_end(a, 0)
    a("s_endpgm")
    if not OPT['unroll']:
        a.label("L_a_hook")
        acts = {0: [h0], 1: [h1], 3: [h3], 6: [h6]}
        acts.setdefault(OPT["hg"], []).append(h5)
        acts.setdefault(OPT["hst"], []).append(hs)
        acts.setdefault(OPT["hst"] + 1, []).append(hf)
        acts.setdefault(OPT["pr2"], []).insert(0, lambda: a("s_setprio 2"))
        acts.setdefault(OPT["pr1"], []).insert(0, lambda: a("s_setprio 1"))
        its = sorted(acts)
        for it in its:
            a(f"s_cmp_eq_u32 s76, {it}", f"s_cbranch_scc1 L_a_hk_{it}")
        a("s_branch L_a_hookret")
        for it in its:
            a.label(f"L_a_hk_{it}")
            for f in acts[it]: f()
            a("s_branch L_a_hookret")
    emit_ool(a)
    woff(a)
    a.label("L_a_slow")
    NM = 96
    a("v_mov_b32 v3, 0xff800000", f"s_add_u32 s76, s78, {KF:#x}", "s_mov_b32 s79, 0")
    a.label("L_a_max")
    a(f"buffer_load_dwordx4 {vr(V1,4)}, v2, {rWS}, s76 offen sc1", "s_waitcnt vmcnt(0)",
      f"{MFMA} {vr(Sa,16)}, {vr(V1,4)}, {vr(Qa,4)}, 0", "s_add_u32 s76, s76, 1024")
    a.nop(14)
    for r in range(0, 16, 2): a(f"v_max3_f32 v3, v{Sa+r}, v{Sa+r+1}, v3")
    a("s_add_u32 s79, s79, 1", "s_cmp_lt_u32 s79, 64", "s_cbranch_scc1 L_a_max")
    a("v_mov_b32 v12, v3", "s_nop 1", "v_permlane32_swap_b32 v12, v3", "s_nop 1", "v_max_f32 v3, v12, v3")
    for r in range(16): a(f"v_sub_f32 v{NM+r}, 0, v3")
    for r in range(16): a(f"v_mov_b32 v{Oa+r}, 0")
    a("v_and_b32 v3, 15, v1", "v_lshlrev_b32 v3, 4, v3", "v_lshrrev_b32 v12, 5, v1", "v_lshl_add_u32 v3, v12, 8, v3",
      "v_and_b32 v12, 16, v1", "v_cmp_eq_u32 vcc, 0, v12", "v_mov_b32 v12, 0x4000000", "v_mov_b32 v13, 0x3f803f80",
      "v_cndmask_b32 v3, v12, v3, vcc", "v_cndmask_b32 v13, v13, 0, vcc")
    a(f"s_add_u32 s76, s78, {KF:#x}", f"s_add_u32 s80, s78, {VF:#x}", "s_mov_b32 s79, 0")
    a.label("L_a_redo")
    a(f"buffer_load_dwordx4 {vr(Sb,4)}, v2, {rWS}, s76 offen sc1", f"buffer_load_dwordx4 {vr(V1,4)}, v3, {rWS}, s80 offen sc1",
      f"buffer_load_dwordx4 {vr(V2,4)}, v3, {rWS}, s80 offen offset:512 sc1", "s_waitcnt vmcnt(0)",
      f"{MFMA} {vr(Sa,16)}, {vr(Sb,4)}, {vr(Qa,4)}, {vr(NM,16)}", "s_add_u32 s76, s76, 1024", "s_add_u32 s80, s80, 1024")
    for r in range(8): a(f"v_or_b32 v{V1+r}, v13, v{V1+r}")
    a.nop(6)
    E(Sa, 0, 16)
    a("s_nop 1", f"{SM} {vr(Oa,16)}, {vr(V1,4)}, {vr(Sa,8)}, v{IDX}", f"{SM} {vr(Oa,16)}, {vr(V2,4)}, {vr(Sa+8,8)}, v{IDX}")
    a("s_add_u32 s79, s79, 1", "s_cmp_lt_u32 s79, 64", "s_cbranch_scc1 L_a_redo")
    a.nop(14)
    a("s_branch L_a_fin")

def gen_gwave(a):
    sF, sT = 54, 55
    a("s_getpc_b64 s[44:45]", "s_mov_b32 s46, 64", "s_mov_b32 s47, 0x20000", f"s_lshl_b32 s{sF}, s3, 2", f"s_add_u32 s{sF}, s{sF}, {CB}")
    def dflag(off):
        a(f"s_add_u32 m0, s{sF}, {off}", "s_mov_b64 exec, 1", "buffer_load_dword off, s[44:47], 0 lds", "s_mov_b64 exec, -1")
    for n in range(OPT["kvx"]): kvpair(a)
    acc = accD; vW = vWd
    a(f"s_waitcnt vmcnt({4*OPT['kvx']})", "s_barrier")
    a.label("L_g_kvl")
    kvpair(a)
    a("s_add_u32 s74, s74, 1", f"s_cmp_lt_u32 s74, {6 - OPT['kvx']}", "s_cbranch_scc1 L_g_kvl")
    dflag(cALL)
    stamp(a)
    nb = OPT["tb"]
    if nb:
        a(f"s_mov_b64 exec, {(1 << nb) - 1:#x}")
        for o in range(0, 32, nb): a(f"buffer_load_dword v62, v7, {rWO}, s58 offen", f"s_add_u32 s58, s58, {nb*128}", "s_waitcnt vmcnt(0)")
        for o in range(0, 86, nb): a(f"buffer_load_dword v62, v7, {rWD}, s57 offen", f"s_add_u32 s57, s57, {nb*128}", "s_waitcnt vmcnt(0)")
        a("s_mov_b64 exec, -1")
    a("s_and_b32 s78, s3, 1", "s_lshl_b32 s78, s78, 10", f"v_add_u32 v{vR0}, s78, v2", f"v_xor_b32 v{vR1}, 1024, v{vR0}")
    q = VQ(a)
    if OPT["drot"]:
        a("s_mul_i32 s78, s71, 11", "s_lshr_b32 s78, s78, 1", "s_lshl_b32 s48, s78, 14", f"s_add_u32 s48, s48, s{sW1}", "s_lshl_b32 s49, s78, 16", f"s_add_u32 s49, s49, s{sH0}",
          f"s_add_u32 s50, s{sW1}, {22*16384}", f"s_add_u32 s51, s{sH0}, {22*65536}")
    def wload(k, o):
        slot = k % NS
        if k < 22 and OPT["drot"]:
            a(f"s_add_u32 m0, s{sR}, {slot*2048 + o*1024}", "s_nop 0", f"buffer_load_dwordx4 v{vW}, {rWD}, s48 offen lds", "s_add_u32 s48, s48, 8192")
            if o: a("s_cmp_eq_u32 s48, s50", f"s_cmov_b32 s48, s{sW1}")
        elif k < 22:
            a(f"s_add_u32 m0, s{sR}, {slot*2048 + o*1024}", f"s_add_u32 s79, s{sW1}, {(k*16 + o*8)*1024}", f"buffer_load_dwordx4 v{vW}, {rWD}, s79 offen lds")
        else:
            a(f"s_add_u32 m0, s{sR}, {slot*2048 + o*1024}", f"s_add_u32 s79, s{sW0}, {((k-22)*16 + o*8)*1024}", f"buffer_load_dwordx4 v{vW}, {rWO}, s79 offen lds")
        q.issue(("W", k))
    def hload(k, rt):
        if OPT["drot"]:
            a(f"buffer_load_dwordx4 {vr(H[k%HD]+4*rt,4)}, v{[vR0, vR1][rt]}, {rHF}, s49 offen sc1")
            if rt: a("s_add_u32 s49, s49, 0x10000", "s_cmp_eq_u32 s49, s51", f"s_cmov_b32 s49, s{sH0}")
        else:
            if rt == 0: a(f"s_add_u32 s78, s{sH0}, {k*65536}")
            a(f"buffer_load_dwordx4 {vr(H[k%HD]+4*rt,4)}, v{[vR0, vR1][rt]}, {rHF}, s78 offen sc1")
        q.issue(("H", k))
    def wread(k):
        slot = k % NS
        dst = Wf[k & 1] if k < 22 else WF + 8*(k-22)
        for ct in range(2):
            va, d2 = (63, 256) if k < 22 else (vT2, 1024)
            a(f"ds_read_b64_tr_b16 {vr(dst+4*ct,2)}, v{va} offset:{slot*2048 + ct*512}",
              f"ds_read_b64_tr_b16 {vr(dst+4*ct+2,2)}, v{va} offset:{slot*2048 + ct*512 + d2}")
    seq = [25, 26, 27, 28, 29, 0, 1, 2]
    for k in seq[:3]:
        wload(k, 0); wload(k, 1)
    for n in range(5):
        q.wait(("W", seq[n]))
        wread(seq[n])
        a("s_waitcnt lgkmcnt(0)")
        wload(seq[n+3], 0); wload(seq[n+3], 1)
    a("s_lshl_b32 s75, s3, 19", "s_lshl_b32 s80, s6, 11", "s_add_u32 s75, s75, s80", f"s_add_u32 s75, s75, {OF:#x}")
    trace(a, "e")
    gpoll(a, vP1, "0", sleep=OPT["psl"], nl=18)
    a("s_lshl_b32 s78, s3, 2", "s_cmp_eq_u32 s3, 1", "s_cmov_b32 s78, 3", "s_cselect_b32 exec_lo, 0xffffff, 0xffff" if False else "s_cselect_b32 s76, 24, 16",
      "s_lshl4_add_u32 s78, s6, s78", "s_lshl_b32 s78, s78, 9", f"s_add_u32 s78, s78, {FP:#x}", "s_bfm_b64 exec, s76, 0")
    gpoll(a, 7, "s78", sleep=4)
    a("s_mov_b64 exec, -1")
    q.drain()
    stamp(a)
    a("s_and_b32 s79, s3, 1", "s_lshl1_add_u32 s79, s6, s79", "s_lshl_b32 s79, s79, 7", f"s_add_u32 s79, s79, {GT:#x}", "s_xor_b32 s78, s79, 128",
      f"buffer_load_dword v{vG}, v{vGA}, {rWS}, s79 offen sc1", f"buffer_load_dword v{vG+1}, v{vGA}, {rWS}, s78 offen sc1")
    q.issue("g"); q.issue("g")
    for k in range(HD-1):
        hload(k, 0); hload(k, 1)
    a("s_mul_i32 s79, s7, 0x30000", f"s_add_u32 s79, s79, s{sH0}", "s_mov_b32 exec_hi, 0xffff",
      f"buffer_load_dword v62, v{vTH}, {rHF}, s79 offen sc1", "s_mov_b64 exec, -1")
    q.issue("t")
    wread(0)
    a(f"s_setprio {OPT['dprio']}")
    if OPT["nod"]: a("s_branch L_g_dskip")
    for k in range(22):
        q.wait(("W", k+1), ("H", k))
        if k == OPT["bk"]: a("s_barrier")
        if k == OPT["otouch"]:
            a("s_lshl_b32 s79, s7, 16", "s_add_u32 s79, s79, s75", "s_mov_b64 exec, 0xffff", f"buffer_load_dword v62, v7, {rWS}, s79 offen sc1", "s_mov_b64 exec, -1")
            q.issue("t")
        trace(a, "d")
        a("s_waitcnt lgkmcnt(0)")
        if k < 21: wread(k+1)
        extra = [lambda: wload(k+3, 0), lambda: wload(k+3, 1)]
        if k + HD - 1 < 22: extra += [lambda: hload(k+HD-1, 0), lambda: hload(k+HD-1, 1)]
        for i in range(4):
            ct, rt = i >> 1, i & 1
            C = "0" if k == 0 else vr(acc[i], 16)
            a(f"{MFMA} {vr(acc[i],16)}, {vr(Wf[k&1]+4*ct,4)}, {vr(H[k%HD]+4*rt,4)}, {C}")
            if i < len(extra): extra[i]()
    a.label("L_g_dskip")
    trace(a, "e")
    a("s_setprio 3")
    a(f"v_sub_f32 v6, 1.0, v{vG}", f"v_sub_f32 v7, 1.0, v{vG+1}")
    if OPT["probe"] == 2: a("v_and_b32 v10, 7, v1", f"v_lshl_add_u32 v10, v10, 2, v{vCB}", f"ds_read_b32 v10, v10 offset:{cEX}")
    for k in range(22, 25):
        q.wait(("W", k))
        wread(k)
    stamp(a)
    QS_ = 1024 + 32; TS_ = 4*QS_; WS_ = 4*TS_
    if OPT["rowred"]:
        vq = 0 if not OPT["tr"] else 3
        a("v_lshrrev_b32 v4, 1, v1", "v_lshlrev_b32 v4, 16, v4", f"v_and_b32 v{vq}, 1, v1", f"v_lshl_add_u32 v{vq}, v{vq}, 10, v4", f"v_add_u32 v{vq}, 1020, v{vq}")
        for i in range(4):
            a(f"s_xor_b32 s79, s3, {i}", "s_lshr_b32 s80, s79, 1", "s_and_b32 s79, s79, 1", "s_lshl1_add_u32 s79, s79, s80", "s_lshl2_add_u32 s79, s3, s79", f"s_mul_i32 s{48+i}, s79, {TS_}")
        a("s_lshl_b32 s74, s6, 16", "s_lshl_b32 s80, s3, 14", "s_add_u32 s74, s74, s80", "s_lshl_b32 s80, s7, 7", "s_add_u32 s74, s74, s80")
    else:
        a("v_lshlrev_b32 v4, 4, v1", "s_lshl_b32 s79, s3, 14", "v_add_u32 v4, s79, v4")
        a("v_and_b32 v3, 31, v1", "v_lshlrev_b32 v3, 10, v3", "v_lshrrev_b32 v7, 5, v1", "v_lshl_add_u32 v3, v7, 4, v3",
          "s_and_b32 s74, s3, 1", "s_lshl1_add_u32 s74, s6, s74", "s_lshl_b32 s74, s74, 15", "s_lshl_b32 s80, s7, 7", "s_add_u32 s74, s74, s80",
          "s_lshr_b32 s80, s3, 1", "s_lshl_b32 s80, s80, 6", "s_add_u32 s74, s74, s80")
    a("s_waitcnt lgkmcnt(0)")
    if OPT["probe"] == 2: a("v_cmp_eq_u32 vcc, 0, v10", "s_nop 0", "s_cmp_lg_u64 vcc, 0", "s_cselect_b32 s72, 0xffff, 0")
    if OPT["bk"] > 21: a("s_barrier")
    trace(a, "t")
    order = [1, 3, 5, 7, 0, 2, 4, 6]
    def oload(n):
        a(f"s_add_u32 s79, s75, {order[n]*65536}")
        for rt in range(2):
            a(f"buffer_load_dwordx4 {vr(OFR+8*(n%4)+4*rt,4)}, v{[vR0, vR1][rt]}, {rWS}, s79 offen sc1")
    vPA = 0 if not OPT["tr"] else 3
    def probe_issue(): a("s_mov_b64 exec, 0xffff", f"buffer_load_dword v4, v{vPA}, {rWS}, s75 offen sc1")
    def probe_eval(): a("s_waitcnt vmcnt(0)", "v_cmp_eq_u32 vcc, -1, v4", "s_mov_b64 exec, -1", "s_mov_b32 s72, vcc_lo")
    def need(n):
        if not OPT["probe"]: return
        m = 3 << (2*order[n])
        with Ool(a):
            a.label(f"L_p_r{n}")
            a(f"s_sub_u32 s{sBUD}, s{sBUD}, 1", f"s_cbranch_scc1 L_p_x{n}")
            if OPT["prs"]: a(f"s_sleep {OPT['prs']}")
            probe_issue(); probe_eval()
            a(f"s_and_b32 s79, s72, {m}", f"s_cbranch_scc1 L_p_r{n}", f"s_branch L_p_k{n}")
            a.label(f"L_p_x{n}")
            a(f"s_mov_b32 s{sBUD}, 0", f"s_branch L_p_k{n}")
        a(f"s_and_b32 s79, s72, {m}", f"s_cbranch_scc1 L_p_r{n}")
        a.label(f"L_p_k{n}")
    def scale():
        for t in range(4):
            for r in range(0, 16, 2):
                a(f"v_pk_mul_f32 {vr(acc[t]+r,2)}, {vr(acc[t]+r,2)}, v[6:7] " + ("op_sel:[0,1] op_sel_hi:[1,1]" if t & 1 else "op_sel_hi:[1,0]"))
    if OPT["probe"] == 2:
        scale()
        for n in range(4):
            need(n); oload(n)
    elif OPT["probe"]:
        probe_issue()
        a("s_mov_b64 exec, -1")
        scale()
        a("s_mov_b64 exec, 0xffff")
        probe_eval()
        for n in range(4):
            need(n); oload(n)
    else:
        for n in range(4): oload(n)
        scale()
    for n in range(8):
        h, f = order[n], OFR + 8*(n % 4)
        last = min(n + 3, 7)
        with Ool(a):
            a.label(f"L_o_r{n}")
            chk = [f"v_max3_u32 v6, v{f}, v{f+1}, v{f+2}", f"v_max3_u32 v7, v{f+3}, v{f+4}, v{f+5}", f"v_max3_u32 v6, v6, v{f+6}, v{f+7}",
                   "v_max_u32 v6, v6, v7", "v_cmp_eq_u32 vcc, -1, v6"]
            if OPT["omode"] == 0:
                a("s_waitcnt vmcnt(0)", f"s_sub_u32 s{sBUD}, s{sBUD}, 1", f"s_cbranch_scc1 L_o_x{n}", f"s_sleep {OPT['osl']}")
                for m in range(n, last + 1): oload(m)
                a(f"s_branch L_o_w{n}")
            elif OPT["omode"] == 1:
                a(f"s_sub_u32 s{sBUD}, s{sBUD}, 1", f"s_cbranch_scc1 L_o_x{n}")
                for m in range(n, last + 1): oload(m)
                a(f"s_branch L_o_w{n}")
            else:
                a(f"s_sub_u32 s{sBUD}, s{sBUD}, 1", f"s_cbranch_scc1 L_o_x{n}")
                oload(n)
                a("s_waitcnt vmcnt(0)", *chk, f"s_cbranch_vccnz L_o_r{n}")
                for m in range(n + 1, last + 1): oload(m)
                a(f"s_branch L_o_k{n}")
            a.label(f"L_o_x{n}")
            a(f"s_mov_b32 s{sBUD}, 0", f"s_branch L_o_k{n}")
        a.label(f"L_o_w{n}")
        a(f"s_waitcnt vmcnt({2*(last - n)})", f"v_max3_u32 v6, v{f}, v{f+1}, v{f+2}", f"v_max3_u32 v7, v{f+3}, v{f+4}, v{f+5}", f"v_max3_u32 v6, v6, v{f+6}, v{f+7}",
          "v_max_u32 v6, v6, v7", "v_cmp_eq_u32 vcc, -1, v6", f"s_cbranch_vccnz L_o_r{n}")
        a.label(f"L_o_k{n}")
        for i in (1, 2, 3, 0):
            ct, rt = i >> 1, i & 1
            a(f"{MFMA} {vr(acc[i],16)}, {vr(WF+8*h+4*ct,4)}, {vr(f+4*rt,4)}, {vr(acc[i],16)}")
        if n + 4 < 8:
            need(n + 4); oload(n + 4)
        if n == 3: trace(a, "t")
    trace(a, "t")
    if OPT["rowred"]:
        fl = ['', 'sc1', 'nt', 'sc0 sc1'][OPT['ofl']]
        a("v_lshlrev_b32 v4, 4, v1", "v_lshrrev_b32 v3, 3, v1")
        for i in (1, 2, 3, 0): a(f"v_add_u32 v{8+i}, s{48+i}, v4")
        a.nop(4)
        for i in (1, 2, 3, 0):
            for qd in range(4):
                a(f"ds_write_b128 v{8+i}, {vr(acc[i]+4*qd,4)} offset:{qd*QS_}")
        a("v_and_b32 v7, 7, v1", f"v_mul_u32_u24 v6, {QS_}, v7", "v_lshl_add_u32 v6, v3, 4, v6", "s_lshr_b32 s79, s3, 1", f"s_mul_i32 s79, s79, {2*TS_}", "s_and_b32 s80, s3, 1",
          "s_lshl_b32 s80, s80, 8", "s_add_u32 s79, s79, s80", "v_add_u32 v6, s79, v6", "v_lshlrev_b32 v3, 10, v3", "v_lshl_add_u32 v3, v7, 4, v3", "s_add_u32 s75, s74, 8192")
        a("s_waitcnt lgkmcnt(0)", "s_barrier")
        trace(a, "t")
        for i in range(2):
            for w in range(4):
                for hb in range(2):
                    a(f"ds_read_b128 {vr(104+32*i+8*w+4*hb,4)}, v6 offset:{w*WS_ + hb*512 + i*128}")
        for i in range(2):
            b = 104 + 32*i
            a(f"s_waitcnt lgkmcnt({12 - 8*i})")
            for r in range(0, 8, 2): a(f"v_pk_add_f32 {vr(b+r,2)}, {vr(b+r,2)}, {vr(b+8+r,2)}")
            a(f"s_waitcnt lgkmcnt({8 - 8*i})")
            for r in range(0, 8, 2): a(f"v_pk_add_f32 {vr(b+16+r,2)}, {vr(b+16+r,2)}, {vr(b+24+r,2)}")
            for r in range(0, 8, 2): a(f"v_pk_add_f32 {vr(b+r,2)}, {vr(b+r,2)}, {vr(b+16+r,2)}")
            for r in range(4): a(f"v_cvt_pk_bf16_f32 v{16+4*i+r}, v{b+2*r}, v{b+2*r+1}")
            a(f"buffer_store_dwordx4 {vr(16+4*i,4)}, v3, {rOUT}, s{74+i} offen {fl}")
    else:
        a("v_xor_b32 v8, 0x4000, v4", "v_xor_b32 v9, 0x8000, v4", "v_xor_b32 v10, 0xc000, v4")
        a.nop(6)
        for i in (1, 2, 3):
            for qd in range(4):
                a(f"ds_write_b128 v4, {vr(acc[i]+4*qd,4)} offset:{i*4096 + qd*1024}")
        a("s_waitcnt lgkmcnt(0)", "s_barrier")
        trace(a, "t")
        for i in (1, 2, 3):
            for qd in range(4):
                a(f"ds_read_b128 {vr(acc[i]+4*qd,4)}, v{7+i} offset:{i*4096 + qd*1024}")
        for i in (1, 2, 3):
            a(f"s_waitcnt lgkmcnt({12 - 4*i})")
            for r in range(0, 16, 2): a(f"v_pk_add_f32 {vr(acc[0]+r,2)}, {vr(acc[0]+r,2)}, {vr(acc[i]+r,2)}")
        for r in range(8): a(f"v_cvt_pk_bf16_f32 v{16+r}, v{acc[0]+2*r}, v{acc[0]+2*r+1}")
        a("s_nop 1")
        for p in range(2):
            b = 16 + 4*p
            a(f"v_permlane32_swap_b32 v{b}, v{b+2}", f"v_permlane32_swap_b32 v{b+1}, v{b+3}")
        a(f"buffer_store_dwordx4 v[16:19], v3, {rOUT}, s74 offen {['', 'sc1', 'nt', 'sc0 sc1'][OPT['ofl']]}", f"buffer_store_dwordx4 v[20:23], v3, {rOUT}, s74 offen offset:32 {['', 'sc1', 'nt', 'sc0 sc1'][OPT['ofl']]}")
    trace(a, "t")
    a("s_or_b32 s79, s2, s3", "s_cmp_lg_u32 s79, 0", "s_cbranch_scc1 L_g_noep", f"s_mov_b32 s79, {EP:#x}")
    flag_store(a, "s79")
    a.label("L_g_noep")
    stamp_end(a, 1)

HEADER = open("gated_mix__mha_block__glu_gated_glu__prompt.s.ref").read().split("; Override launch")[0]
def build():
    a = Asm()
    txt = HEADER + "; @launch grid=(256,1,1) block=(768,1,1) lds=163840\n"
    txt += '.amdgcn_target "amdgcn-amd-amdhsa--gfx950"\n.text\n'
    d = gen(a)
    txt += a.text() + '.section .rodata,"a"\n' + d
    return txt
if __name__ == "__main__":
    for o in sys.argv[2:]:
        k, v = o.split("=")
        OPT[k] = set(v.split(",")) if k == "tr" else int(v)
    open(sys.argv[1], "w").write(build())
    print("wrote", sys.argv[1])
```

```python
import sys, math, struct
from asmlib import *

MB = 1 << 20
QF, KF, VF, OF, XF, GT, FL, ST, HF = 0, 2*MB, 4*MB, 6*MB, 8*MB, 12*MB, 13*MB, 14*MB, 16*MB
KST = 44032
EP = FL + 0xf0000
FQ, FX, FH, FO, FP = FL, FL + 0x8000, FL + 0x28000, FL + 0x48000, FL + 0x88000
HF_BYTES = 86 * 65536
QSCALE = 0.25 * math.log2(math.e)
LOG2E = math.log2(math.e)
def fbits(x): return struct.unpack("<I", struct.pack("<f", x))[0]
MFMA = "v_mfma_f32_32x32x16_bf16"
SM = "v_smfmac_f32_32x32x32_bf16"
M16 = "v_mfma_f32_16x16x32_bf16"
NAME = "gated_mix__mha_block__glu_gated_glu__prompt_kernel"
rX, rWQ, rWS, rHF, rWG, rWD, rWO, rOUT, rGW = [f"s[{i}:{i+3}]" for i in range(8, 44, 4)]
P1X, P1W = 0, 65536
KB, VB, VST = 0, 65536, 1040
RING = VB + 64*VST
CB = RING + 30720
cPASS, cEX, cB, cALL = 20, 32, 64, 80
vCB, vONE, vPOLL = 4, 5, 6
sN, sBUD = 70, 83
OPT = dict(lset=1, e1=6, e5=6, rot=4, spr=84, probe=0, prs=1, psl=8, bk=99, otouch=99, rowred=1, ofl=1, fs=5, tlb=0, omode=0, drot=1, hd=2, osl=3, hs=5, hf=14, dbg=0, pre=2, ramp=1, sprio=1, kvx=2, unroll=1, l2=15, h2=21, l1=28, h1=31, early=1, tb=0, hg=3, ns=2, nd=2, tr=set(), vtr=0, cyc=0, noattn=0, nod=0, pr2=2, pr1=6, warm=0, wstep=8, dprio=0, hst=1)

def trace(a, grp):
    if grp not in OPT["tr"]: return
    v = OPT["vtr"]
    a("s_memtime s[84:85]" if OPT["cyc"] else "s_memrealtime s[84:85]", "s_mov_b32 s87, m0", "s_mov_b32 m0, s86", "s_waitcnt lgkmcnt(0)", f"v_writelane_b32 v{v}, s84, m0",
      "s_add_u32 s86, s86, 1", "s_mov_b32 m0, s87", "s_nop 0")
def trace2(a, grp):
    if grp not in OPT["tr"]: return
    a("s_cselect_b32 s98, 1, 0"); trace(a, grp); a("s_cmp_eq_u32 s98, 1")
def stamp(a, i=0): trace(a, "m")
def trace_init(a):
    if OPT["tr"]: a("s_mov_b32 s86, 0", f"v_mov_b32 v{OPT['vtr']}, 0")
def dbg_end(a, kidx):
    if not OPT["dbg"]: return
    lab = a.newlabel("dg")
    a("s_cmp_eq_u32 s59, 0", f"s_cbranch_scc1 {lab}", "s_lshl_b32 s79, s2, 16", "s_lshl_b32 s78, s3, 8", "s_or_b32 s79, s79, s78", f"s_or_b32 s79, s79, {0x1000*kidx + 0x80000000:#x}",
      "s_or_b32 s79, s79, s59", "v_mov_b32 v3, s79", "s_lshl_b32 s78, s59, 2", f"s_add_u32 s78, s78, {ST:#x}", "s_mov_b64 exec, 1", f"buffer_store_dword v3, off, {rWS}, s78 sc1", "s_mov_b64 exec, -1")
    a.label(lab)
def stamp_end(a, kidx):
    dbg_end(a, kidx)
    if not OPT["tr"]: return
    a("s_waitcnt vmcnt(0)")
    OPT["tr"].add("end"); trace(a, "end")
    a("s_mul_i32 s71, s2, 12", "s_add_u32 s71, s71, s3", f"s_add_u32 s71, s71, {4 if kidx == 0 else 0}", "s_lshl_b32 s71, s71, 8", f"s_add_u32 s71, s71, {ST:#x}",
      "v_lshlrev_b32 v7, 2, v1", f"buffer_store_dword v{OPT['vtr']}, v7, {rWS}, s71 offen")

def lds_arrive(a, off, vaddr=vCB):
    a("s_mov_b64 exec, 1", f"ds_add_u32 v{vaddr}, v{vONE} offset:{off}", "s_mov_b64 exec, -1")
OOL = []
def emit_ool(a):
    while OOL:
        blk = OOL.pop(0)
        for l in blk:
            if l.startswith("@") or l.startswith("."): a.raw(l)
            elif l.endswith(":"): a.label(l[:-1])
            else: a(l)
class Ool:
    def __init__(self, a): self.a = a
    def __enter__(self): self.sv = self.a.lines; self.a.lines = []
    def __exit__(self, *e):
        OOL.append([l.strip() for l in self.a.lines]); self.a.lines = self.sv
def retry(a, lp, dn, sleep):
    rt = a.newlabel("rt")
    OOL.append([rt + ":"] + ([f"s_sleep {sleep}"] if sleep else []) +
               [f"s_sub_u32 s{sBUD}, s{sBUD}, 1", f"s_cbranch_scc0 {lp}", f"s_mov_b32 s{sBUD}, 0", f"s_branch {dn}"])
    return rt
def lds_wait(a, off, target, vaddr=vCB, sleep=0):
    lp, dn = a.newlabel("lw"), a.newlabel("lwd")
    rt = retry(a, lp, dn, sleep)
    a.label(lp)
    a(f"ds_read_b32 v{vPOLL}, v{vaddr} offset:{off}", "s_waitcnt lgkmcnt(0)", f"v_readfirstlane_b32 s82, v{vPOLL}",
      f"s_cmp_ge_u32 s82, {target}", f"s_cbranch_scc0 {rt}")
    a.label(dn)
def pre_wait(a, off, target, vaddr=vCB):
    lp, dn, rt = a.newlabel("pw"), a.newlabel("pwd"), a.newlabel("pwr")
    OOL.append([rt + ":", f"ds_read_b32 v{vPOLL}, v{vaddr} offset:{off}", f"s_sub_u32 s{sBUD}, s{sBUD}, 1", "s_waitcnt lgkmcnt(0)",
                f"s_cbranch_scc0 {lp}", f"s_mov_b32 s{sBUD}, 0", f"s_branch {dn}"])
    a.label(lp)
    a(f"v_readfirstlane_b32 s82, v{vPOLL}", f"s_cmp_ge_u32 s82, {target}", f"s_cbranch_scc0 {rt}")
    a.label(dn)
def flag_wait(a, off, vaddr, sleep=0):
    lp, dn = a.newlabel("fw"), a.newlabel("fwd")
    rt = retry(a, lp, dn, sleep)
    a.label(lp)
    a(f"ds_read_b32 v{vPOLL}, v{vaddr} offset:{off}", "s_waitcnt lgkmcnt(0)", f"v_cmp_eq_u32 vcc, 0, v{vPOLL}", f"s_cbranch_vccnz {rt}")
    a.label(dn)
def gpoll(a, vaddr, soff, sleep=2, nl=64):
    lp, dn = a.newlabel("gp"), a.newlabel("gpd")
    rt = retry(a, lp, dn, sleep)
    if nl < 64: a(f"s_mov_b64 exec, {(1 << nl) - 1:#x}")
    a.label(lp)
    a(f"buffer_load_dword v{vPOLL}, v{vaddr}, {rWS}, {soff} offen sc1", "s_waitcnt vmcnt(0)",
      f"v_cmp_ne_u32 vcc, s{sN}, v{vPOLL}", f"s_cbranch_vccnz {rt}")
    a.label(dn)
    if nl < 64: a("s_mov_b64 exec, -1")
def flag_store(a, soff):
    a(f"v_mov_b32 v3, s{sN}", "s_mov_b64 exec, 1", f"buffer_store_dword v3, off, {rWS}, {soff} sc1", "s_mov_b64 exec, -1")
def skip_ool(a):
    pass

class VQ:
    def __init__(self, a): self.a = a; self.q = []
    def issue(self, tag): self.q.append(tag)
    def wait(self, *tags):
        idx = max([i for i, t in enumerate(self.q) if t in tags], default=-1)
        if idx < 0: return
        n = len(self.q) - 1 - idx
        assert n <= 63
        self.a(f"s_waitcnt vmcnt({n})")
        self.q = self.q[idx+1:]
    def drain(self): self.q = []

def won(a, role): a.raw(f"@W+ {role}")
def woff(a): a.raw("@W-")
def warm_call(a, role, nchain, sel, extra=None):
    if not OPT["warm"]: return
    a("s_mov_b64 exec, 0")
    for c in range(nchain):
        a(f"s_cmp_eq_u32 {sel}, {c}", f"s_cbranch_scc1 L_w{role}_{c}")
    if extra: a(f"s_cmp_eq_u32 {sel}, {extra[0]}", f"s_cbranch_scc1 {extra[1]}")
    a.label(f"L_wret_{role}")
    a("s_mov_b64 exec, -1")
def insert_hops(lines, nchain):
    out = []; role = None; cnt = 0; spots = {}
    for l in lines:
        if l.startswith("@W+"): role = l.split()[1]; cnt = OPT["wstep"]; continue
        if l.startswith("@W-"): role = None; continue
        isins = l.startswith("    ") and not l.strip().startswith(";")
        if role and isins and OPT["warm"]:
            if cnt >= OPT["wstep"]:
                spots.setdefault(role, []).append(len(out)); out.append(None); cnt = 0
            cnt += 1
        out.append(l)
    for role, sp in spots.items():
        n = nchain[role]; per = -(-len(sp) // n)
        for k, pos in enumerate(sp):
            c, first, last = k // per, k % per == 0, (k % per == per-1 or k == len(sp)-1)
            lab = f"L_w{role}_{c}" if first else f"L_h{role}_{k}"
            tgt = f"L_wret_{role}" if last else f"L_h{role}_{k+1}"
            out[pos] = f"{lab}:\n    s_cbranch_execz {tgt}"
        assert -(-len(sp) // per) == n, (role, len(sp), per, n)
    return out

def gen(a):
    kernel_header(a, NAME)
    a("s_cmp_ge_u32 s2, 256", "s_cbranch_scc1 L_end")
    a("s_load_dwordx16 s[48:63], s[0:1], 0", "s_load_dwordx4 s[64:67], s[0:1], 64", "s_load_dwordx2 s[68:69], s[0:1], 80")
    a("v_lshrrev_b32 v2, 6, v0", "v_and_b32 v1, 63, v0")
    a("s_bfe_u32 s73, s2, 0x10003", "s_and_b32 s4, s2, 3", "s_lshl1_add_u32 s4, s4, s73", "s_bfe_u32 s5, s2, 0x10002")
    a("v_readfirstlane_b32 s3, v2")
    a("s_lshr_b32 s72, s2, 4", "s_lshl4_add_u32 s5, s5, s72")
    a("s_lshl2_add_u32 s72, s73, s5", "s_and_b32 s72, s72, 7")
    if OPT["tr"]:
        trace_init(a); OPT["tr"].add("start"); trace(a, "start")
    a("s_cmp_ge_u32 s3, 4", "s_cbranch_scc1 L_awave")
    gen_loader(a)
    gen_gwave(a)
    a.label("L_end")
    a("s_endpgm")
    emit_ool(a)
    a.raw(".p2align 6")
    a.label("L_awave")
    gen_awave(a)
    emit_ool(a)
    a.label("L_codeend")
    a.lines = insert_hops(a.lines, {"a": 3})
    if OPT["dbg"]:
        out = []; n = 0; last = ""
        for l in a.lines:
            if l.endswith(":"): last = l
            if l.strip() == f"s_mov_b32 s{sBUD}, 0":
                n += 1; print("wait id", n, "after", last)
                out += [f"    s_cmp_eq_u32 s59, 0", f"    s_cmov_b32 s59, {n}"]
            if l.strip() == f"s_mov_b32 s{sBUD}, 200000": out.append("    s_mov_b32 s82, 0")
            out.append(l)
        a.lines = out
    return kernel_desc(NAME, 168, 102)

def common(a):
    a("s_bfe_u32 s71, s2, 0x20003", "s_lshr_b32 s7, s2, 5", "s_and_b32 s6, s2, 7", "s_lshl2_add_u32 s6, s6, s71")
    a(f"v_mov_b32 v{vCB}, {CB}", f"v_mov_b32 v{vONE}, 1", f"s_mov_b32 s{sBUD}, 200000", "v_lshlrev_b32 v2, 4, v1")
def slicep(a):
    a("s_bfe_u32 s101, s5, 0x10003", "s_lshl1_add_u32 s101, s4, s101", "s_and_b32 s78, s2, 3",
      "s_mov_b32 s100, 0x120c0600", "s_cmp_eq_u32 s78, 1", "s_cmov_b32 s100, 0x26211c17", "s_cmp_eq_u32 s78, 2", "s_cmov_b32 s100, 0x3c36302b",
      "s_cmp_eq_u32 s78, 3", "s_cmov_b32 s100, 0x514c4742", "s_lshl_b32 s78, s101, 3", "s_lshr_b32 s100, s100, s78", "s_and_b32 s100, s100, 0xff",
      "s_lshr_b32 s97, 0xe07, s101", "s_and_b32 s97, s97, 1")
def epoch(a): a(f"s_add_u32 s44, s68, {EP:#x}", "s_addc_u32 s45, s69, 0", f"s_load_dword s{sN}, s[44:45], 0")
SLOT = 24576

vWd, vT2, vG, vTH, vP1, vGA = 8, 9, 10, 60, 61, 13
sH0, sW0, sW1, sR = 60, 62, 63, 64
Wf = [12, 20]; HD = 4; H = [28 + 8*i for i in range(HD)]
accD = [104 + 16*i for i in range(4)]
WF = 40; OFR = 8
NS = 3
vR0, vR1 = 2, 5
sT = 55
def dconst(a):
    a(f"s_lshl_b32 s{sT}, s6, 12", f"s_add_u32 s{sT}, s{sT}, {FH + 14*128:#x}", f"v_add_u32 v{vP1}, s{sT}, v7")
    a("v_bfe_u32 v3, v1, 2, 3", f"v_lshl_add_u32 v{vWd}, v3, 10, v14", "s_lshr_b32 s78, s3, 1", "s_lshl_b32 s78, s78, 6", f"v_xor_b32 v{vWd}, s78, v{vWd}")
    a("v_bfe_u32 v9, v1, 1, 2", "v_lshlrev_b32 v9, 3, v9", "v_bfe_u32 v11, v1, 3, 1", "v_lshl_add_u32 v9, v11, 6, v9",
      "s_lshr_b32 s78, s6, 2", "s_lshl_b32 s78, s78, 7", f"s_lshr_b32 s{sT}, s3, 1", f"s_lshl_b32 s{sT}, s{sT}, 10", f"s_add_u32 s78, s78, s{sT}",
      f"s_and_b32 s{sT}, s3, 1", f"s_lshl_b32 s{sT}, s{sT}, 5", f"s_add_u32 s78, s78, s{sT}", "s_add_u32 s78, s78, s71",
      f"s_lshr_b32 s{sT}, s6, 4", f"s_lshl2_add_u32 s78, s{sT}, s78", "v_add_u32 v9, s78, v9", "v_and_b32 v11, 1, v1", "v_lshlrev_b32 v11, 9, v11", "v_xor_b32 v9, v9, v11",
      "v_cmp_gt_u32 vcc, 16, v1", "v_lshlrev_b32 v9, 7, v9", f"v_add_u32 v9, {FP:#x}, v9",
      f"v_cndmask_b32 v{vP1}, v{vP1}, v9, vcc")
    a(f"s_mul_i32 s{sH0}, s3, {22*65536}", "s_lshl_b32 s78, s6, 11", f"s_add_u32 s{sH0}, s{sH0}, s78")
    a(f"s_lshl_b32 s{sW0}, s3, 17", "s_lshl_b32 s78, s7, 7", f"s_add_u32 s{sW0}, s{sW0}, s78")
    a(f"s_mul_i32 s{sW1}, s3, {22*16384}", f"s_add_u32 s{sW1}, s{sW1}, s78")
    a(f"s_mul_i32 s{sR}, s3, 7680", f"s_add_u32 s{sR}, s{sR}, {RING}")
    a("v_lshrrev_b32 v3, 5, v1", "v_lshlrev_b32 v3, 2, v3", "v_bfe_u32 v9, v1, 2, 2", "v_add_u32 v3, v3, v9", "v_lshlrev_b32 v3, 6, v3",
      "v_bfe_u32 v9, v1, 4, 1", "v_lshl_add_u32 v3, v9, 5, v3", "v_and_b32 v9, 3, v1", "v_lshl_add_u32 v3, v9, 3, v3", f"v_add_u32 v{vT2}, s{sR}, v3",
      "v_lshrrev_b32 v3, 5, v1", "v_mul_u32_u24 v3, 768, v3", f"v_add_u32 v63, v3, v{vT2}")
    a("v_lshrrev_b32 v3, 4, v1", "v_lshlrev_b32 v3, 16, v3", "v_and_b32 v11, 15, v1", f"v_lshl_add_u32 v{vTH}, v11, 7, v3",
      f"v_and_b32 v{vGA}, 31, v1", f"v_lshlrev_b32 v{vGA}, 2, v{vGA}")
    a("s_lshr_b32 s57, s2, 3", "s_lshl2_add_u32 s57, s57, s3", "s_lshl_b32 s58, s57, 12", f"s_mul_i32 s57, s57, {86*128}")


def gen_loader(a):
    vX0, vX1, vW, vW1, vG0, vG2 = 16, 17, 18, 19, 20, 21
    a("s_setprio 3")
    a("v_lshrrev_b32 v19, 3, v1", "v_lshrrev_b32 v3, 4, v1", "v_and_b32 v7, 7, v1", "v_xor_b32 v3, v3, v7",
      "v_lshlrev_b32 v3, 4, v3", f"v_lshl_add_u32 v{vX0}, v19, 10, v3",
      f"v_xor_b32 v{vX1}, 64, v{vX0}", f"v_add_u32 v{vX1}, {0x2000 - 1024}, v{vX1}")
    a("v_bfe_u32 v20, v1, 2, 3", "v_mul_u32_u24 v19, 3072, v20", "v_lshrrev_b32 v3, 5, v1", "v_and_b32 v7, 3, v1", "v_lshlrev_b32 v7, 4, v7",
      "v_lshl_add_u32 v14, v3, 6, v7", f"v_add_u32 v{vW}, v19, v14", f"v_add_u32 v{vW1}, {8*3072 - 1024}, v{vW}", f"v_xor_b32 v{vW1}, 32, v{vW1}")
    a("s_lshl_b32 s74, s5, 16", "s_lshl_b32 s78, s3, 14", "s_add_u32 s74, s74, s78")
    a("s_mul_i32 s75, s3, 49152", "s_lshl_b32 s78, s4, 7", "s_add_u32 s75, s75, s78")
    a("s_lshl_b32 s76, s3, 11", f"s_add_u32 s77, s76, {P1W}", "s_mov_b32 s73, s72")
    a("s_mov_b32 s10, 0x200000", "s_mov_b32 s11, 0x20000", "s_mov_b32 s14, 0x180000", "s_mov_b32 s15, 0x20000")
    def xunit():
        a("s_lshl_b32 s78, s72, 7", "s_mov_b32 m0, s76", "s_add_u32 s78, s78, s74",
          f"buffer_load_dwordx4 v{vX0}, {rX}, s78 offen lds", f"buffer_load_dwordx4 v{vX1}, {rX}, s78 offen offset:1024 lds",
          "s_add_u32 s76, s76, 8192", "s_add_u32 s72, s72, 1", "s_and_b32 s72, s72, 7")
    def wblock():
        a("s_mul_i32 s79, s73, 196608", "s_mov_b32 m0, s77", "s_add_u32 s79, s79, s75")
        for mat in range(3):
            if mat: a(f"s_add_u32 m0, s77, {mat*(8192 - 1024)}", "s_add_u32 s73, s73, 1" if mat == 1 else "s_and_b32 s73, s73, 7")
            a(f"buffer_load_dwordx4 v{vW}, {rWQ}, s79 offen offset:{mat*1024} lds", f"buffer_load_dwordx4 v{vW1}, {rWQ}, s79 offen offset:{mat*1024 + 1024} lds")
    def nslot(): a(f"s_add_u32 s77, s77, {SLOT}", "s_cmp_eq_u32 s77, s81", "s_cmov_b32 s77, s80")
    def whalf(second):
        a("s_bfe_u32 s78, s5, 0x10003")
        if second: a("s_xor_b32 s78, s78, 1")
        a("s_lshl_b32 s47, s78, 5", f"v_xor_b32 v27, s47, v{vW}")
        a("s_mul_i32 s79, s73, 196608", "s_add_u32 s79, s79, s75", f"s_mul_i32 s47, s78, {8*3072}", "s_add_u32 s79, s79, s47", "s_lshl_b32 s78, s78, 10", "s_add_u32 s78, s78, s77")
        for mat in range(3):
            a(f"s_add_u32 m0, s78, {mat*(8192 - 1024)}", "s_nop 0", f"buffer_load_dwordx4 v27, {rWQ}, s79 offen offset:{mat*1024} lds")
        if second: a("s_add_u32 s73, s73, 1", "s_and_b32 s73, s73, 7")
    a("s_waitcnt lgkmcnt(0)")
    a("s_mov_b64 s[8:9], s[48:49]", "s_mov_b64 s[12:13], s[50:51]")
    stamp(a)
    if OPT["fs"]:
        xunit(); whalf(0); xunit()
    else:
        xunit(); wblock()
    epoch(a); common(a)
    a("s_mov_b32 s80, s77", f"s_add_u32 s81, s77, {4*SLOT}")
    a(f"s_add_u32 s46, s73, {1 if OPT['fs'] else 0}")
    def setup():
        a("s_cmp_lt_u32 s3, 2", "s_cselect_b32 s24, s56, s58", "s_cselect_b32 s25, s57, s59", f"s_mov_b32 s26, {512*1376*2:#x}", "s_mov_b32 s27, 0x20000",
          "s_cselect_b32 s78, 0, 32")
        a("v_lshrrev_b32 v3, 2, v1", "v_mul_u32_u24 v3, 2752, v3", "v_add_u32 v3, v3, v7", f"v_and_b32 v{vG0}, 32, v1", f"v_xor_b32 v{vG0}, v{vG0}, v3")
        slicep(a)
        a("s_and_b32 s100, s100, -2")
        a.srd(16, 68, 69, 16*MB)
        a.srd(20, 68, 69, HF_BYTES, add=HF)
        a.srd(28, 60, 61, 1376*512*2)
        a.srd(32, 52, 53, 512*512*2)
        a.srd(36, 64, 65, 2048*512*2)
        a.srd(40, 62, 63, 1024)
        a("v_lshlrev_b32 v7, 7, v1")
        if OPT["dbg"]: a("s_mov_b32 s59, 0")
        dconst(a)
        a("s_lshr_b32 s78, s3, 1", "s_lshr_b32 s66, 0xfef7, s101", "s_and_b32 s66, s66, 1", "s_or_b32 s66, s66, s78", "s_nop 0")
    if not OPT["lset"]: setup()
    trace(a, "ld")
    def sig(n):
        a(f"s_waitcnt vmcnt({n})", "s_barrier"); trace(a, "ld")
    def wb():
        nslot(); wblock()
    if OPT["fs"] == 1:
        whalf(1); wb(); sig(6)
        xunit(); xunit(); sig(4)
        wb(); wb(); sig(6)
        xunit(); wb(); sig(8)
        xunit(); wb(); xunit(); sig(10)
        wb(); xunit(); wb(); sig(16)
    elif OPT["fs"] == 2:
        whalf(1); wb(); sig(6)
        wb(); xunit(); xunit(); sig(10)
        wb(); sig(8)
        xunit(); wb(); xunit(); sig(10)
        wb(); xunit(); wb(); sig(16)
        xunit(); wb(); sig(16)
    elif OPT["fs"] in (3, 4, 5, 6):
        whalf(1); wb()
        if OPT["fs"] == 5:
            wb(); xunit(); xunit(); sig(16); sig(10)
            if OPT["lset"]: setup()
            wb(); sig(8)
        elif OPT["fs"] == 6:
            xunit(); xunit(); sig(10); sig(4)
            if OPT["lset"]: setup()
            wb(); wb(); sig(6)
        else: sig(6)
        if OPT["fs"] >= 5: pass
        elif OPT["fs"] == 3:
            wb(); xunit(); xunit(); sig(10)
            if OPT["lset"]: setup()
            trace(a, "ld")
            wb(); sig(8)
        else:
            xunit(); xunit(); sig(4)
            wb(); wb(); sig(6)
        for n in range(3):
            xunit(); wb(); sig(8)
        xunit(); wb()
    else:
        xunit(); xunit(); xunit()
        sig(6)
        wb(); wb(); sig(6)
        wb(); sig(6)
        xunit(); wb(); xunit(); sig(10)
        wb(); xunit(); wb(); sig(16)
        xunit(); wb(); sig(16)
    a("s_lshl_b32 s75, s100, 5", "s_and_b32 s78, s3, 1", f"s_mul_i32 s77, s78, {KST}", "s_add_u32 s75, s75, s77",
      "s_mul_i32 s77, s78, 6144", "s_lshr_b32 s78, s3, 1", "s_mul_i32 s78, s78, 3072", "s_add_u32 s77, s77, s78",
      "s_xor_b32 s74, s74, 0x80000", "s_lshl_b32 s80, s3, 11")
    R_ = OPT["rot"]
    def gblk(m, dst): a(f"s_add_u32 s{dst}, s46, {m + 7}", f"s_and_b32 s{dst}, s{dst}, {R_ - 1}", f"s_or_b32 s{dst}, s{dst}, {m // R_ * R_}")
    def gw(m, cut=6, mid=None):
        base = P1W + [0, 2, 3][m % 3]*SLOT
        if cut == 0: mid()
        gblk(m, 73)
        a(f"s_mul_i32 s79, s73, {4*KST}", f"s_add_u32 m0, s77, {base}", "s_add_u32 s79, s79, s75")
        for e in range(2):
            for t in range(3):
                if e or t: a(f"s_add_u32 m0, s77, {base + e*12288 + t*(1024 - 64)}", f"s_add_u32 s79, s79, {2*KST}" if (e, t) == (1, 0) else "s_nop 0")
                a(f"buffer_load_dwordx4 v{vG0}, {rWG}, s79 offen offset:{t*64} lds")
                if mid and 3*e + t + 1 == cut: mid()
    def gx(m):
        a(f"s_add_u32 s76, s80, {P1W + SLOT + ((m+2) % 3)*8192}")
        gblk(m, 72)
        xunit()
    if OPT["fs"] >= 3:
        sig(8); gw(0); gx(0); sig(8)
    else:
        gw(0); sig(14); gx(0); sig(8)
    a("s_waitcnt lgkmcnt(0)", f"s_add_u32 s{sN}, s{sN}, 1")
    if OPT["sprio"]: a("s_setprio 2")
    def gate(m, part):
        p = m - 1
        if (part == 0 and p == 4) or (part == 1 and p > 4): return
        m = 2*m + part
        with Ool(a):
            a.label(f"L_gt{m}")
            if p == 0 and part:
                a("v_and_b32 v15, 31, v1", "v_lshrrev_b32 v26, 5, v1", "v_bfe_u32 v22, v1, 1, 3", "v_xor_b32 v3, v26, v22",
                  "v_lshlrev_b32 v3, 4, v3", "v_lshl_add_u32 v22, v15, 7, v3", "s_lshl_b32 s78, s3, 12", "v_add_u32 v22, s78, v22",
                  "v_xor_b32 v23, 32, v22", "v_xor_b32 v24, 64, v22", "v_xor_b32 v25, 96, v22")
            if 1 <= p <= 4 and part:
                q = p - 1
                rdx = lambda n: f"ds_read_b128 {vr(152+4*(n&3),4)}, v{22+(n&3)} offset:{(2*q + (n>>2))*8192}"
                a(*[rdx(n) for n in range(4)])
                for n in range(8):
                    a(f"s_waitcnt lgkmcnt({min(3, 7-n)})", f"{MFMA} {vr(136,16)}, {vr(72+32*(q&1)+4*n,4)}, {vr(152+4*(n&3),4)}, {'0' if (q == 0 and n == 0) else vr(136,16)}")
                    if n + 4 < 8: a(rdx(n+4))
            if p < 4 and not part:
                a("v_lshrrev_b32 v26, 5, v1", "v_lshlrev_b32 v26, 4, v26")
                for i in range(2):
                    a(f"s_add_u32 s78, s46, {2*p+i+7}", "s_and_b32 s78, s78, 7", "s_lshl_b32 s78, s78, 7")
                    for ks in range(4): a(f"buffer_load_dwordx4 {vr(72+32*(p&1)+16*i+4*ks,4)}, v26, {rGW}, s78 offen offset:{ks*32}")
            if p == 5:
                a("s_lshl1_add_u32 s78, s5, s3", "s_lshl_b32 s78, s78, 7", f"s_add_u32 s78, s78, {GT:#x}", f"s_mov_b32 s79, {fbits(-LOG2E):#x}", "s_nop 3",
                  "v_mul_f32 v136, s79, v136", "v_exp_f32 v136, v136", "s_nop 0", "v_add_f32 v136, 1.0, v136", "v_rcp_f32 v136, v136", "s_nop 0",
                  f"buffer_store_dword v136, v{vGA}, {rWS}, s78 offen sc1")
            if p == 6:
                a("s_lshl_b32 s78, s5, 5", "s_add_u32 s78, s78, s3", "s_lshl_b32 s78, s78, 7", f"s_add_u32 s78, s78, {FH + 30*128:#x}")
                flag_store(a, "s78")
            a(f"s_branch L_gtr{m}")
        a("s_cmp_eq_u32 s66, 0", f"s_cbranch_scc1 L_gt{m}")
        a.label(f"L_gtr{m}")
    for m in range(1, 8):
        cut = {1: OPT["e1"], 5: OPT["e5"]}.get(m, 6)
        gate(m, 0); gx(m)
        if cut == 6:
            gw(m); gate(m, 1); sig(8)
        else:
            gw(m, cut, lambda: sig(2 + cut)); gate(m, 1)
    a("s_lshr_b32 s76, s6, 2", "s_lshl_b32 s76, s76, 12", f"s_add_u32 s76, s76, {FQ:#x}", "s_mov_b32 exec_hi, 0",
      f"buffer_load_dword v{vPOLL}, v7, {rWS}, s76 offen sc1")
    a("s_lshl_b32 s81, s3, 10", f"s_mul_i32 s80, s3, {VST}", f"s_add_u32 s80, s80, {VB}",
      "s_lshl_b32 s79, s6, 16", "s_add_u32 s79, s79, s81", f"s_add_u32 s79, s79, {KF:#x}", "s_mov_b32 s74, 0")
    with Ool(a):
        a.label("L_g_p0r")
        gpoll(a, 7, "s76", sleep=1)
        a("s_branch L_g_p0k")
    a("s_waitcnt vmcnt(0)", f"v_cmp_ne_u32 vcc, s{sN}, v{vPOLL}", "s_cbranch_vccnz L_g_p0r")
    a.label("L_g_p0k")
    a("s_mov_b64 exec, -1", "s_barrier")
    trace(a, "ld")
    kvpair(a); kvpair(a)
    a("s_barrier")
    a.label("L_ld_done")
    a("s_setprio 3")
    stamp(a)

def kvpair(a):
    a("s_mov_b32 m0, s81", f"s_add_u32 s76, s79, {VF - KF:#x}", f"buffer_load_dwordx4 v2, {rWS}, s79 offen sc1 lds",
      "s_mov_b32 m0, s80", "s_add_u32 s77, s79, 0x8000", f"buffer_load_dwordx4 v2, {rWS}, s76 offen sc1 lds",
      "s_add_u32 m0, s81, 0x8000", "s_add_u32 s76, s76, 0x8000", f"buffer_load_dwordx4 v2, {rWS}, s77 offen sc1 lds",
      f"s_add_u32 m0, s80, {32*VST}", "s_add_u32 s79, s79, 4096", f"buffer_load_dwordx4 v2, {rWS}, s76 offen sc1 lds",
      "s_add_u32 s81, s81, 4096", f"s_add_u32 s80, s80, {4*VST}")

Kf, Qa, Qb, V1, V2, Sa, Sb, Oa, Ob = 8, 16, 20, 24, 28, 32, 48, 64, 80
IDX, vK, vV0, vV1, vHC, vGT, vTC, vL4, vON, vST, vF4, vE0, vE1, vE2, vWg, vSK = range(152, 168)
HA = 104
def gen_awave(a):
    vXa = [8, 9, 10, 11]; vWb, vWa, vXb = 12, 13, 14
    a("s_sub_u32 s3, s3, 4", f"v_lshlrev_b32 v{vTC}, 7, v1")
    a("s_cmp_lg_u32 s3, 0", "s_cbranch_scc1 L_a_nocode")
    a("s_getpc_b64 s[40:41]")
    a.label("L_pc")
    a(f"s_sub_u32 s40, s40, L_pc-{NAME}", "s_subb_u32 s41, s41, 0", f"s_mov_b32 s42, L_codeend-{NAME}", "s_mov_b32 s43, 0x20000",
      "s_lshr_b32 s76, s2, 3", "s_lshl_b32 s76, s76, 10", "s_mov_b64 exec, 0xff", f"buffer_load_dword v{vGT}, v{vTC}, s[40:43], s76 offen", "s_mov_b64 exec, -1")
    a.label("L_a_nocode")
    common(a)
    a("s_bfe_u32 s73, s3, 0x10001", "s_and_b32 s74, s3, 1", "s_lshr_b32 s75, s3, 2")
    a("v_and_b32 v15, 15, v1", "v_lshrrev_b32 v16, 4, v1", "v_bfe_u32 v7, v1, 1, 3", "v_xor_b32 v3, v16, v7",
      "v_lshlrev_b32 v3, 4, v3", "v_lshl_add_u32 v15, v15, 7, v3",
      "s_lshl_b32 s76, s73, 12", f"v_add_u32 v{vXb}, s76, v15", f"v_mov_b32 v{vXa[0]}, v{vXb}")
    a("v_bfe_u32 v3, v1, 2, 2", "v_lshlrev_b32 v15, 6, v3", "v_and_b32 v3, 3, v1", "v_lshl_add_u32 v15, v3, 3, v15",
      "v_bfe_u32 v3, v1, 4, 1",
      "v_lshl_add_u32 v7, v16, 10, v15", "v_lshl_add_u32 v7, v3, 5, v7",
      "s_lshl_b32 s76, s74, 9", f"s_add_u32 s76, s76, {P1W}", f"v_add_u32 v{vWb}, s76, v7")
    a("v_lshl_add_u32 v15, v3, 9, v15", "v_lshrrev_b32 v16, 5, v1", "v_mul_u32_u24 v7, 6144, v16", "v_add_u32 v15, v15, v7", "s_mov_b32 s47, s72", "s_xor_b32 s72, s74, s75", "v_xor_b32 v7, s72, v3",
      "v_lshl_add_u32 v15, v7, 5, v15", f"v_add_u32 v{vWg}, {P1W}, v15")
    a("s_waitcnt lgkmcnt(0)")
    epoch(a)
    a.srd(16, 68, 69, 16*MB)
    a.srd(20, 68, 69, HF_BYTES, add=HF)
    if OPT["tlb"]:
        with Ool(a):
            a.label("L_a_tlb")
            a("v_lshlrev_b32 v3, 20, v1", "s_mov_b64 exec, 0xffff", f"buffer_load_dword v{vGT}, v3, {rWS}, 0 offen", f"buffer_load_dword v{vGT}, v3, {rHF}, 0 offen",
              "s_mov_b64 exec, 3", "s_mov_b32 s27, 0x20000")
            for p, n in ((56, 512*1376*2), (58, 512*1376*2), (60, 512*1376*2), (52, 512*512*2), (64, 2048*512*2), (62, 1024)):
                a(f"s_mov_b64 s[24:25], s[{p}:{p+1}]", f"s_mov_b32 s26, {n:#x}", f"buffer_load_dword v{vGT}, v3, s[24:27], 0 offen")
            a("s_mov_b64 exec, -1", "s_branch L_a_tlbr")
        a("s_cmp_eq_u32 s3, 1", "s_cbranch_scc1 L_a_tlb")
        a.label("L_a_tlbr")
    if OPT["dbg"]: a("s_mov_b32 s59, 0")
    a("s_lshl1_add_u32 s48, s5, s73")
    a("s_and_b32 s77, s3, 3")
    a("s_lshl_b32 s76, s75, 15", f"v_add_u32 v{vK}, s76, v2")
    a("v_and_b32 v3, 15, v1", "v_lshlrev_b32 v3, 4, v3", "v_lshrrev_b32 v7, 5, v1", "v_lshl_add_u32 v3, v7, 8, v3",
      "v_and_b32 v7, 27, v1", "v_cmp_eq_u32 vcc, 16, v7", "v_mov_b32 v16, 0x18000", "v_mov_b32 v15, 1024",
      "v_cndmask_b32 v16, v16, v15, vcc",
      "v_and_b32 v7, 16, v1", "v_cmp_eq_u32 vcc, 0, v7", "v_add_u32 v15, 512, v3",
      f"s_mul_i32 s76, s75, {32*VST}", f"s_add_u32 s76, s76, {VB}",
      f"v_cndmask_b32 v{vV0}, v16, v3, vcc", f"v_cndmask_b32 v{vV1}, v16, v15, vcc",
      f"v_add_u32 v{vV0}, s76, v{vV0}", f"v_add_u32 v{vV1}, s76, v{vV1}")
    a(f"v_lshl_add_u32 v{vST}, v7, 5, v3", f"v_mov_b32 v{IDX}, 0xdddd")
    a(f"v_and_b32 v{vL4}, 31, v1", f"v_lshlrev_b32 v{vL4}, 2, v{vL4}")
    a(f"v_mul_u32_u24 v{vON}, {VST//4}, v{vL4}", "s_add_u32 s76, s76, 1024", f"v_add_u32 v{vON}, s76, v{vON}")
    a("s_lshl_b32 s76, s75, 2", f"v_add_u32 v{vHC}, s76, v{vCB}")
    a("v_and_b32 v3, 3, v1", f"v_lshl_add_u32 v{vF4}, v3, 2, v{vCB}")
    a("s_mul_i32 s79, s77, 2304", "s_lshl_b32 s80, s75, 15", "s_add_u32 s79, s79, s80", f"v_add_u32 v{vE0}, s79, v2",
      f"v_lshrrev_b32 v{vE1}, 2, v2", f"v_add_u32 v{vE1}, s79, v{vE1}", "s_lshl_b32 s80, s3, 2", f"v_add_u32 v{vE2}, s80, v{vCB}")
    a("s_lshl_b32 s88, s7, 3", "s_lshl1_add_u32 s88, s77, s88", "s_add_u32 s88, s88, s75", "s_lshl_b32 s89, s6, 16")
    a("s_lshl_b32 s90, s88, 10", "s_add_u32 s90, s90, s89", "s_xor_b32 s91, s90, 1024")
    a("s_lshl_b32 s95, s75, 5", "s_add_u32 s95, s95, s77", "s_lshl_b32 s94, s95, 10", f"s_mul_i32 s95, s95, {VST}", f"s_add_u32 s95, s95, {VB}",
      "s_add_u32 s92, s89, s94", f"s_add_u32 s92, s92, {KF:#x}", f"s_add_u32 s93, s92, {VF - KF:#x}")
    a("s_lshl_b32 s96, s4, 5", "s_add_u32 s96, s96, s5", "s_lshl_b32 s96, s96, 7", f"s_add_u32 s96, s96, {FQ:#x}")
    slicep(a)
    a("s_xor_b32 s76, s100, s72", "s_and_b32 s76, s76, 1", "s_add_u32 s98, s100, s76", "s_xor_b32 s79, s76, 1", "s_or_b32 s97, s97, s79",
      "s_and_b32 s76, s76, s100", "s_lshl_b32 s76, s76, 10", f"v_add_u32 v{vWg}, s76, v{vWg}")
    a("s_lshl_b32 s76, s75, 3", "s_xor_b32 s76, s76, s5", "s_lshl_b32 s98, s98, 16", "s_lshl1_add_u32 s79, s76, s73",
      "s_lshl_b32 s79, s79, 10", "s_add_u32 s98, s98, s79",
      "s_lshl4_add_u32 s99, s76, s101", "s_lshl2_add_u32 s99, s99, s77", "s_lshl_b32 s99, s99, 7", f"s_add_u32 s99, s99, {FP:#x}")
    a("s_lshl_b32 s49, s4, 2", "s_lshl1_add_u32 s49, s74, s49", "s_lshl_b32 s49, s49, 6", "s_add_u32 s49, s49, s48", "s_lshl_b32 s49, s49, 10")
    a("s_mov_b32 s60, 0")
    for m in range(7, -1, -1):
        a(f"s_add_u32 s76, s47, {m}", f"s_and_b32 s76, s76, {OPT['rot'] - 1}", f"s_add_u32 s76, s76, {m // OPT['rot'] * OPT['rot'] + 8}", "s_sub_u32 s76, s76, s47",
          "s_and_b32 s76, s76, 7", "s_lshl4_add_u32 s60, s60, s76")
    a("s_cmp_lg_u32 s75, 0", f"s_cmov_b32 s60, {sum((11 + (m+2) % 3) << (4*m) for m in range(8)):#x}")
    for r in range(16, 40): a(f"v_mov_b32 v{r}, 0")
    a("s_mov_b32 s79, 0", "s_mov_b32 s80, 0")
    def nslot(): a(f"s_add_u32 s80, s80, {SLOT}", f"s_cmp_eq_u32 s80, {4*SLOT}", "s_cmov_b32 s80, 0")
    def consumer(lab, steps, buf, nstage, adv, hook=None, pre=False, odd=True):
        per = 8 + 4*len(steps[0][1])
        nrd = 2 + 2*len(steps[0][1])
        tot = nrd*len(steps)
        def readlist(b):
            r = []
            for i, (xr, ws) in enumerate(steps):
                f = buf[b] + per*i
                r += [f"ds_read_b128 {vr(f,4)}, v{xr}", f"ds_read_b128 {vr(f+4,4)}, v{xr} offset:2048"]
                for n, (wa, wo, acc, sw) in enumerate(ws):
                    r += [f"ds_read_b64_tr_b16 {vr(f+8+4*n,2)}, v{wa} offset:{wo}", f"ds_read_b64_tr_b16 {vr(f+10+4*n,2)}, v{wa} offset:{wo+256}"]
            return r
        def m1(b, i, n, th):
            f = buf[b] + per*i
            wa, wo, acc, sw = steps[i][1][n]
            A, B = (vr(f+4*th,4), vr(f+8+4*n,4)) if sw else (vr(f+8+4*n,4), vr(f+4*th,4))
            a(f"{M16} {vr(acc+4*th,4)}, {A}, {B}, {vr(acc+4*th,4)}")
        def mf(b, i, n):
            m1(b, i, n, 0); m1(b, i, n, 1)
        mms = [(i, n) for i in range(len(steps)) for n in range(len(steps[i][1]))]
        def front(b):
            sv = a.lines; a.lines = []
            adv()
            fill = readlist(1-b) + [l.strip() for l in a.lines]; a.lines = sv
            ml = [(i, n, th) for i, n in mms[:-1] for th in range(2)]
            ng = min(len(ml), max(1, (len(ml) + 2)*OPT["spr"]//100))
            pos = 0
            for g, x in enumerate(ml):
                m1(b, *x)
                if g < ng:
                    e = len(fill)*(g+1)//ng
                    a(*fill[pos:e]); pos = e
        def full(b):
            done = 0
            for i, n in mms:
                done += 4 if n == 0 else 2
                a(f"s_waitcnt lgkmcnt({min(15, tot - done)})")
                mf(b, i, n)
        a("s_barrier")
        trace(a, "p1")
        a(*readlist(0))
        adv()
        if pre == 1:
            full(0)
            a("s_barrier")
            a(*readlist(1))
            adv()
            a(f"s_branch {lab}_in2")
        elif pre == 2:
            a("s_waitcnt lgkmcnt(0)", "s_barrier")
            front(0)
            mf(0, *mms[-1])
            full(1)
            a("s_barrier")
            a(*readlist(0))
            adv()
            a("s_mov_b32 s79, 2", f"s_branch {lab}_in")
        else:
            a(f"s_branch {lab}_in")
        emit_ool(a)
        a.label(lab)
        mf(1, *mms[-1])
        a.label(lab + "_in")
        a("s_waitcnt lgkmcnt(0)")
        if odd: a("s_barrier")
        trace(a, "p1")
        front(0)
        a(f"s_cmp_eq_u32 s79, {nstage - 2}", f"s_cbranch_scc1 {lab}_e")
        if hook: hook(lab, lambda: mf(0, *mms[-1]))
        else:
            mf(0, *mms[-1])
            a.label(lab + "_in2")
            a("s_waitcnt lgkmcnt(0)", "s_barrier")
        trace(a, "p1")
        a("s_add_u32 s79, s79, 2")
        front(1)
        a(f"s_branch {lab}")
        emit_ool(a)
        a.label(lab + "_e")
        mf(0, *mms[-1])
        full(1)
    vWc, vWv, vWx = vXa[2], vXa[3], 15
    a("s_lshl_b32 s76, s75, 5", f"v_xor_b32 v{vWx}, s76, v{vWb}", "s_xor_b32 s76, s75, 1", "s_lshl_b32 s76, s76, 13", f"v_add_u32 v{vWb}, s76, v{vWb}")
    def addr1():
        a(f"v_add_u32 v{vWa}, s80, v{vWb}", f"v_add_u32 v{vWv}, s80, v{vWx}", f"v_xor_b32 v{vXa[1]}, 64, v{vXa[0]}", f"v_xor_b32 v{vWc}, 32, v{vWa}")
    def swaps(r0, n):
        a("s_nop 1")
        for r in range(r0, r0 + 4*n, 4): a(f"v_permlane16_swap_b32 v{r}, v{r+2}", f"v_permlane16_swap_b32 v{r+1}, v{r+3}")
    def adv1():
        nslot()
        a(f"v_add_u32 v{vXa[0]}, 8192, v{vXa[0]}")
        addr1()
    addr1()
    assert OPT["pre"] == 2
    stamp(a)
    a("s_cmp_eq_u32 s75, 0", f"s_cselect_b32 s50, 1.0, {fbits(QSCALE):#x}", f"s_cselect_b32 s52, {KF:#x}, 0", "s_add_u32 s52, s52, s49", "s_add_u32 s53, s52, 0x10000",
      "s_lshl_b32 s54, s75, 16", "s_add_u32 s54, s54, s49", f"s_add_u32 s54, s54, {VF:#x}")
    consumer("L_p1", [(vXa[kk], [(vWa, kk*4096, 16, False), (vWc, kk*4096, 24, False), (vWv, 16384 + kk*4096, 32, True)]) for kk in range(2)], [48, 96], 8, adv1, pre=OPT['pre'])
    a(f"s_add_u32 s{sN}, s{sN}, 1")
    a.nop(2)
    for r in range(0, 16, 2): a(f"v_pk_mul_f32 {vr(16+r,2)}, {vr(16+r,2)}, s[50:51] op_sel_hi:[1,0]")
    for r in range(12): a(f"v_cvt_pk_bf16_f32 v{16+r}, v{16+2*r}, v{17+2*r}")
    swaps(16, 3)
    ST = [[f"buffer_store_dwordx4 v[16:19], v2, {rWS}, s52 offen sc1"], [f"buffer_store_dwordx4 v[20:23], v2, {rWS}, s53 offen sc1"],
          [f"buffer_store_dwordx4 v[24:27], v{vST}, {rWS}, s54 offen sc1"]]
    npre = {0: 0, 1: 1, 2: 2, -1: 3}[OPT["ns"]]
    for x in ST[:npre]: a(*x)
    stamp(a)
    for r in range(4): a(f"v_mov_b32 v{36+r}, 0")
    a("s_nop 1")
    for t in range(3): a(f"{MFMA} {vr(HA+16*t,16)}, v[36:39], v[36:39], 0")
    XR = P1W + SLOT
    assert XR == 11*8192
    a("s_mov_b32 s79, 0", "s_and_b32 s76, s60, 15", "s_lshl_b32 s76, s76, 13",
      "s_mov_b32 s56, 0", f"s_mov_b32 s57, {2*SLOT}", f"s_mov_b32 s58, {3*SLOT}",
      "s_cmp_eq_u32 s3, 7", f"s_cselect_b32 s81, {OPT['nd']}, -1")
    def addr2():
        a(f"v_add_u32 v{vXa[0]}, s76, v{vXb}", f"v_add_u32 v{vWa}, s56, v{vWg}")
    par = [0]
    def adv2():
        if par[0] == 0:
            a(f"v_xor_b32 v{vXa[0]}, 64, v{vXa[0]}", f"v_add_u32 v{vWa}, 12288, v{vWa}",
              "s_lshr_b32 s60, s60, 4", "s_and_b32 s76, s60, 15", "s_lshl_b32 s76, s76, 13",
              "s_mov_b32 s80, s56", "s_mov_b32 s56, s57", "s_mov_b32 s57, s58", "s_mov_b32 s58, s80")
        else:
            addr2()
        par[0] ^= 1
    def hook(lab, last):
        ev = {2*n: x for n, x in enumerate(ST[npre:])}
        ev[12] = [f"buffer_load_dwordx4 {vr(Qa,4)}, v2, {rWS}, s90 offen sc1", f"buffer_load_dwordx4 {vr(Qb,4)}, v2, {rWS}, s91 offen sc1"]
        with Ool(a):
            a.label(lab + "_d")
            a(f"s_cmp_eq_u32 s79, {OPT['nd']}", f"s_cbranch_scc1 {lab}_f", "s_barrier")
            for n, x in ev.items():
                a(f"s_cmp_eq_u32 s79, {n}", f"s_cbranch_scc0 {lab}_s{n}")
                if OPT["sprio"]: a("s_setprio 3", *x, "s_setprio 0")
                else: a(*x)
                a(f"s_branch {lab}_r")
                a.label(f"{lab}_s{n}")
            a(f"s_branch {lab}_r")
            a.label(lab + "_f")
            trace(a, "h")
            a("s_waitcnt vmcnt(0)", "s_cmp_eq_u32 s79, s81", "s_barrier", f"s_cbranch_scc0 {lab}_r")
            flag_store(a, "s96")
            a(f"s_branch {lab}_r")
        a(f"s_bitcmp1_b32 {sum(1 << n for n in list(ev) + [OPT['nd']])}, s79")
        last()
        a("s_waitcnt lgkmcnt(0)", f"s_cbranch_scc1 {lab}_d", "s_barrier")
        a.label(lab + "_r")
    addr2()
    a("s_cmp_eq_u32 s97, 0", "s_cbranch_scc1 L_g2")
    consumer("L_g3l", [(vXa[0], [(vWa, m*3072 + t*1024, HA + 16*t + 8*m, False) for t in range(3) for m in range(2)])], [40, 72], 16, adv2, hook, odd=False)
    a("s_branch L_gdone")
    a.label("L_g2")
    par[0] = 0
    consumer("L_g2l", [(vXa[0], [(vWa, m*3072 + t*1024, HA + 16*t + 8*m, False) for t in range(2) for m in range(2)])], [40, 72], 16, adv2, hook, odd=False)
    a.label("L_gdone")
    a("s_setprio 3")
    stamp(a)
    a("s_barrier")
    stamp(a)
    for r in range(4): a(f"v_mov_b32 v{V1+r}, 0x3f803f80")
    for r in range(4): a(f"v_mov_b32 v{V2+r}, 0")
    a(f"ds_write_b128 v{vON}, {vr(V1,4)}", f"v_add_u32 v3, v{vL4}, v{vCB}", f"ds_write_b32 v3, v{V2}", f"s_mov_b32 s80, {fbits(-LOG2E):#x}")
    for r in (Sb, Oa, Ob): a(f"{MFMA} {vr(r,16)}, {vr(V2,4)}, {vr(V2,4)}, 0")
    for t in range(3):
        g = HA + 16*t
        if t == 2: a("s_cmp_eq_u32 s97, 0", "s_cbranch_scc1 L_a_e2")
        for r in range(0, 8, 2): a(f"v_pk_mul_f32 {vr(g+r,2)}, {vr(g+r,2)}, s[80:81] op_sel_hi:[1,0]")
        for r in range(8): a(f"v_exp_f32 v{g+r}, v{g+r}")
        for r in range(0, 8, 2): a(f"v_pk_add_f32 {vr(g+r,2)}, {vr(g+r,2)}, 1.0 op_sel_hi:[1,0]")
        for r in range(8): a(f"v_rcp_f32 v{g+r}, v{g+r}")
        for r in range(0, 8, 2): a(f"v_pk_mul_f32 {vr(g+r,2)}, {vr(g+r,2)}, {vr(g+8+r,2)}")
        for r in range(4): a(f"v_cvt_pk_bf16_f32 v{g+8+r}, v{g+2*r}, v{g+1+2*r}")
        swaps(g+8, 1)
    a.label("L_a_e2")
    for r in range(4): a(f"v_mov_b32 v{HA+r}, -1")
    a("s_mov_b32 s77, s88", "s_mov_b32 s78, s89", "s_mov_b32 s48, s90")
    a("s_waitcnt vmcnt(0) lgkmcnt(0)", "s_barrier")
    stamp(a)
    a(f"ds_read_b128 {vr(Kf,4)}, v{vK}", f"ds_read_b128 {vr(V1,4)}, v{vV0}", "s_waitcnt lgkmcnt(1)",
      f"{MFMA} {vr(Sa,16)}, {vr(Kf,4)}, {vr(Qb,4)}, 0", "s_mov_b32 s76, 0x5f800000",
      f"v_xor_b32 v13, 16, v{vE2}", f"v_xor_b32 v14, 0x8000, v{vE0}", f"v_xor_b32 v12, 0x8000, v{vE1}")
    a.nop(12)
    woff(a)
    def h0(): flag_wait(a, cB, vF4)
    def h1(): flag_wait(a, cALL, vF4)
    def hs():
        a("s_add_u32 s79, s98, 0x20000", "s_add_u32 s80, s98, 0x40000", "s_cmp_eq_u32 s97, 0", "s_cmov_b32 s80, 0x40000000",
          f"buffer_store_dwordx4 {vr(HA+8,4)}, v2, {rHF}, s98 offen sc1", f"buffer_store_dwordx4 {vr(HA+24,4)}, v2, {rHF}, s79 offen sc1",
          f"buffer_store_dwordx4 {vr(HA+40,4)}, v2, {rHF}, s80 offen sc1")
        a(f"s_add_u32 s79, s48, {OF:#x}", f"buffer_store_dwordx4 {vr(HA,4)}, v2, {rWS}, s79 offen sc1")
    def hf():
        a("s_waitcnt vmcnt(0)")
        flag_store(a, "s99")
    def h6(): lds_wait(a, cPASS, 4, vaddr=vHC)
    def h3(): lds_arrive(a, cPASS, vHC)
    def h5():
        a("s_lshr_b32 s79, s77, 1", "s_lshl_b32 s79, s79, 5", "s_and_b32 s80, s77, 1", "s_add_u32 s79, s79, s80", "s_lshl_b32 s79, s79, 7",
          f"s_add_u32 s79, s79, {FH + 30*128:#x}")
        gpoll(a, vTC, "s79", nl=1)
        a("s_lshl_b32 s79, s77, 7", f"s_add_u32 s79, s79, {GT:#x}", f"buffer_load_dword v{vGT}, v{vL4}, {rWS}, s79 offen sc1")
    def E(S, lo, hi):
        for i in range(lo, hi): a(f"v_exp_f32 v{S+i}, v{S+i}")
    def tile(t):
        E(Sa, 0, 2)
        a(f"{SM} {vr(Oa,16)}, {vr(V2,4)}, {vr(Sb+8,8)}, v{IDX}", f"ds_read_b128 {vr(V2,4)}, v{vV1} offset:{t*VST}")
        E(Sa, 2, 6)
        a(f"{MFMA} {vr(Sb,16)}, {vr(Kf,4)}, {vr(Qa,4)}, 0")
        if t < 31: a(f"ds_read_b128 {vr(Kf,4)}, v{vK} offset:{(t+1)*1024}")
        E(Sa, 6, 12)
        a(f"s_waitcnt lgkmcnt({2 if t < 31 else 1})", f"{SM} {vr(Ob,16)}, {vr(V1,4)}, {vr(Sa,8)}, v{IDX}")
        E(Sa, 12, 16)
        E(Sb, 0, 2)
        a("s_waitcnt lgkmcnt(0)", f"{SM} {vr(Ob,16)}, {vr(V2,4)}, {vr(Sa+8,8)}, v{IDX}")
        E(Sb, 2, 6)
        if t < 31: a(f"{MFMA} {vr(Sa,16)}, {vr(Kf,4)}, {vr(Qb,4)}, 0")
        E(Sb, 6, 12)
        a(f"{SM} {vr(Oa,16)}, {vr(V1,4)}, {vr(Sb,8)}, v{IDX}")
        if t < 31: a(f"ds_read_b128 {vr(V1,4)}, v{vV0} offset:{(t+1)*VST}")
        else:
            a(f"s_add_u32 s74, s48, {OF:#x}", f"ds_write_b128 v{vE0}, {vr(Ob,4)}", f"ds_write_b128 v{vE0}, {vr(Ob+4,4)} offset:1024",
              f"ds_write_b32 v{vE1}, v{Ob+8} offset:2048", f"ds_write_b32 v{vE2}, v{vONE} offset:{cEX}")
        E(Sb, 12, 16)
    def g1():
        a("s_lshr_b32 s79, s77, 1", "s_lshl_b32 s79, s79, 5", "s_and_b32 s80, s77, 1", "s_add_u32 s79, s79, s80", "s_lshl_b32 s79, s79, 7",
          f"s_add_u32 s79, s79, {FH + 30*128:#x}", f"buffer_load_dword v3, off, {rWS}, s79 sc1")
    def g2():
        with Ool(a):
            a.label("L_a_gr")
            gpoll(a, vTC, "s79", nl=1)
            a("s_branch L_a_gk")
        a("s_waitcnt vmcnt(0)", f"v_cmp_ne_u32 vcc, s{sN}, v3", "s_lshl_b32 s80, s77, 7", f"s_add_u32 s80, s80, {GT:#x}", "s_cbranch_vccnz L_a_gr")
        a.label("L_a_gk")
        a(f"buffer_load_dword v{vGT}, v{vL4}, {rWS}, s80 offen sc1")
    if OPT["unroll"]:
        hs_t = OPT["hs"]
        ta = {7: [h1], 12: [h3], 27: [h6], 21: [g1], 25: [g2]}
        hsl = [[f"buffer_store_dwordx4 {vr(HA+8,4)}, v2, {rHF}, s98 offen sc1"],
               ["s_add_u32 s79, s98, 0x20000", f"buffer_store_dwordx4 {vr(HA+24,4)}, v2, {rHF}, s79 offen sc1"],
               ["s_add_u32 s80, s98, 0x40000", "s_cmp_eq_u32 s97, 0", "s_cmov_b32 s80, 0x40000000", f"buffer_store_dwordx4 {vr(HA+40,4)}, v2, {rHF}, s80 offen sc1"],
               [f"s_add_u32 s79, s48, {OF:#x}", f"buffer_store_dwordx4 {vr(HA,4)}, v2, {rWS}, s79 offen sc1"]]
        for n, x in enumerate(hsl):
            ta.setdefault(hs_t + n*OPT["hd"], []).append(lambda x=x: a(*x))
        pass; ta.setdefault(OPT['hf'], []).append(hf)
        def pr(kh, p):
            def f():
                lab = a.newlabel("pr")
                with Ool(a):
                    a.label(lab); a(f"s_setprio {p}", f"s_branch {lab}_r")
                a(f"s_cmp_eq_u32 s75, {kh}", f"s_cbranch_scc1 {lab}")
                a.label(lab + "_r")
            return f
        for nm, kh, p in (("l2", 0, 2), ("h2", 1, 2), ("l1", 0, 1), ("h1", 1, 1)):
            ta.setdefault(OPT[nm], []).insert(0, pr(kh, p))
        for t in range(32):
            for f in ta.get(t, []): f()
            tile(t)
            if t % 4 == 3: trace(a, "a")
        a("s_nop 1")
    else:
        a.raw(".p2align 6")
        a.label("L_a_loop")
        for t in range(4):
            if t == 3:
                a("s_cmp_lt_u32 s76, 7", "s_cbranch_scc1 L_a_hook")
                a.label("L_a_hookret")
            tile(t)
        a(f"v_add_u32 v{vK}, 4096, v{vK}", f"v_add_u32 v{vV0}, {4*VST}, v{vV0}", f"v_add_u32 v{vV1}, {4*VST}, v{vV1}")
        trace(a, "a")
        a("s_add_u32 s76, s76, 1", "s_cmp_lt_u32 s76, 8", "s_cbranch_scc1 L_a_loop")
    won(a, "a")
    a(f"{SM} {vr(Oa,16)}, {vr(V2,4)}, {vr(Sb+8,8)}, v{IDX}", "s_setprio 3")
    stamp(a)
    lp, dn = a.newlabel("xw"), a.newlabel("xwd")
    rt = retry(a, lp, dn, 1)
    a.label(lp)
    a(f"ds_read_b32 v{vPOLL}, v13 offset:{cEX}", f"ds_read_b128 {vr(Sa,4)}, v14", f"ds_read_b128 {vr(Sa+4,4)}, v14 offset:1024", f"ds_read_b32 v{Sa+8}, v12 offset:2048",
      "s_nop 3", "s_waitcnt lgkmcnt(0)", f"v_cmp_eq_u32 vcc, 0, v{vPOLL}", f"s_cbranch_vccnz {rt}")
    a.label(dn)
    a(f"v_add_f32 v{Oa+8}, v{Oa+8}, v{Sa+8}")
    for r in range(0, 8, 2): a(f"v_pk_add_f32 {vr(Oa+r,2)}, {vr(Oa+r,2)}, {vr(Sa+r,2)}")
    O = Oa
    a(f"v_pk_add_f32 v[8:9], {vr(O,2)}, {vr(O+2,2)}", f"v_pk_add_f32 v[10:11], {vr(O+4,2)}, {vr(O+6,2)}", "v_pk_add_f32 v[8:9], v[8:9], v[10:11]",
      "v_add_f32 v8, v8, v9", f"v_fma_f32 v8, v8, 0, v{O+8}")
    a("v_cmp_nle_f32 s[80:81], 1.0, v8", "v_cmp_nge_f32 vcc, s76, v8", "s_or_b64 vcc, vcc, s[80:81]", "s_cbranch_scc1 L_a_slow")
    a.label("L_a_fin")
    trace(a, "t")
    a(f"v_rcp_f32 v8, v{O+8}", "s_waitcnt vmcnt(0)", f"v_mul_f32 v8, v8, v{vGT}")
    for r in range(0, 8, 2): a(f"v_pk_mul_f32 {vr(O+r,2)}, {vr(O+r,2)}, v[8:9] op_sel_hi:[1,0]")
    for r in range(4): a(f"v_cvt_pk_bf16_f32 v{Qb+r}, v{O+2*r}, v{O+2*r+1}")
    for r in range(4): a(f"v_min_u32 v{Qb+r}, -2, v{Qb+r}")
    a(f"buffer_store_dwordx4 {vr(Qb,4)}, v2, {rWS}, s74 offen sc1")
    trace(a, "t")
    a("s_barrier")
    stamp_end(a, 0)
    a("s_endpgm")
    if not OPT['unroll']:
        a.label("L_a_hook")
        acts = {0: [h0], 1: [h1], 3: [h3], 6: [h6]}
        acts.setdefault(OPT["hg"], []).append(h5)
        acts.setdefault(OPT["hst"], []).append(hs)
        acts.setdefault(OPT["hst"] + 1, []).append(hf)
        acts.setdefault(OPT["pr2"], []).insert(0, lambda: a("s_setprio 2"))
        acts.setdefault(OPT["pr1"], []).insert(0, lambda: a("s_setprio 1"))
        its = sorted(acts)
        for it in its:
            a(f"s_cmp_eq_u32 s76, {it}", f"s_cbranch_scc1 L_a_hk_{it}")
        a("s_branch L_a_hookret")
        for it in its:
            a.label(f"L_a_hk_{it}")
            for f in acts[it]: f()
            a("s_branch L_a_hookret")
    emit_ool(a)
    woff(a)
    a.label("L_a_slow")
    NM = 96
    a("v_mov_b32 v3, 0xff800000", f"s_add_u32 s76, s78, {KF:#x}", "s_mov_b32 s79, 0")
    a.label("L_a_max")
    a(f"buffer_load_dwordx4 {vr(V1,4)}, v2, {rWS}, s76 offen sc1", "s_waitcnt vmcnt(0)",
      f"{MFMA} {vr(Sa,16)}, {vr(V1,4)}, {vr(Qa,4)}, 0", "s_add_u32 s76, s76, 1024")
    a.nop(14)
    for r in range(0, 16, 2): a(f"v_max3_f32 v3, v{Sa+r}, v{Sa+r+1}, v3")
    a("s_add_u32 s79, s79, 1", "s_cmp_lt_u32 s79, 64", "s_cbranch_scc1 L_a_max")
    a("v_mov_b32 v12, v3", "s_nop 1", "v_permlane32_swap_b32 v12, v3", "s_nop 1", "v_max_f32 v3, v12, v3")
    for r in range(16): a(f"v_sub_f32 v{NM+r}, 0, v3")
    for r in range(16): a(f"v_mov_b32 v{Oa+r}, 0")
    a("v_and_b32 v3, 15, v1", "v_lshlrev_b32 v3, 4, v3", "v_lshrrev_b32 v12, 5, v1", "v_lshl_add_u32 v3, v12, 8, v3",
      "v_and_b32 v12, 16, v1", "v_cmp_eq_u32 vcc, 0, v12", "v_mov_b32 v12, 0x4000000", "v_mov_b32 v13, 0x3f803f80",
      "v_cndmask_b32 v3, v12, v3, vcc", "v_cndmask_b32 v13, v13, 0, vcc")
    a(f"s_add_u32 s76, s78, {KF:#x}", f"s_add_u32 s80, s78, {VF:#x}", "s_mov_b32 s79, 0")
    a.label("L_a_redo")
    a(f"buffer_load_dwordx4 {vr(Sb,4)}, v2, {rWS}, s76 offen sc1", f"buffer_load_dwordx4 {vr(V1,4)}, v3, {rWS}, s80 offen sc1",
      f"buffer_load_dwordx4 {vr(V2,4)}, v3, {rWS}, s80 offen offset:512 sc1", "s_waitcnt vmcnt(0)",
      f"{MFMA} {vr(Sa,16)}, {vr(Sb,4)}, {vr(Qa,4)}, {vr(NM,16)}", "s_add_u32 s76, s76, 1024", "s_add_u32 s80, s80, 1024")
    for r in range(8): a(f"v_or_b32 v{V1+r}, v13, v{V1+r}")
    a.nop(6)
    E(Sa, 0, 16)
    a("s_nop 1", f"{SM} {vr(Oa,16)}, {vr(V1,4)}, {vr(Sa,8)}, v{IDX}", f"{SM} {vr(Oa,16)}, {vr(V2,4)}, {vr(Sa+8,8)}, v{IDX}")
    a("s_add_u32 s79, s79, 1", "s_cmp_lt_u32 s79, 64", "s_cbranch_scc1 L_a_redo")
    a.nop(14)
    a("s_branch L_a_fin")

def gen_gwave(a):
    sF, sT = 54, 55
    a("s_getpc_b64 s[44:45]", "s_mov_b32 s46, 64", "s_mov_b32 s47, 0x20000", f"s_lshl_b32 s{sF}, s3, 2", f"s_add_u32 s{sF}, s{sF}, {CB}")
    def dflag(off):
        a(f"s_add_u32 m0, s{sF}, {off}", "s_mov_b64 exec, 1", "buffer_load_dword off, s[44:47], 0 lds", "s_mov_b64 exec, -1")
    for n in range(OPT["kvx"]): kvpair(a)
    acc = accD; vW = vWd
    a(f"s_waitcnt vmcnt({4*OPT['kvx']})", "s_barrier")
    a.label("L_g_kvl")
    kvpair(a)
    a("s_add_u32 s74, s74, 1", f"s_cmp_lt_u32 s74, {6 - OPT['kvx']}", "s_cbranch_scc1 L_g_kvl")
    dflag(cALL)
    stamp(a)
    nb = OPT["tb"]
    if nb:
        a(f"s_mov_b64 exec, {(1 << nb) - 1:#x}")
        for o in range(0, 32, nb): a(f"buffer_load_dword v62, v7, {rWO}, s58 offen", f"s_add_u32 s58, s58, {nb*128}", "s_waitcnt vmcnt(0)")
        for o in range(0, 86, nb): a(f"buffer_load_dword v62, v7, {rWD}, s57 offen", f"s_add_u32 s57, s57, {nb*128}", "s_waitcnt vmcnt(0)")
        a("s_mov_b64 exec, -1")
    a("s_and_b32 s78, s3, 1", "s_lshl_b32 s78, s78, 10", f"v_add_u32 v{vR0}, s78, v2", f"v_xor_b32 v{vR1}, 1024, v{vR0}")
    q = VQ(a)
    if OPT["drot"]:
        a("s_mul_i32 s78, s71, 11", "s_lshr_b32 s78, s78, 1", "s_lshl_b32 s48, s78, 14", f"s_add_u32 s48, s48, s{sW1}", "s_lshl_b32 s49, s78, 16", f"s_add_u32 s49, s49, s{sH0}",
          f"s_add_u32 s50, s{sW1}, {22*16384}", f"s_add_u32 s51, s{sH0}, {22*65536}")
    def wload(k, o):
        slot = k % NS
        if k < 22 and OPT["drot"]:
            a(f"s_add_u32 m0, s{sR}, {slot*2048 + o*1024}", "s_nop 0", f"buffer_load_dwordx4 v{vW}, {rWD}, s48 offen lds", "s_add_u32 s48, s48, 8192")
            if o: a("s_cmp_eq_u32 s48, s50", f"s_cmov_b32 s48, s{sW1}")
        elif k < 22:
            a(f"s_add_u32 m0, s{sR}, {slot*2048 + o*1024}", f"s_add_u32 s79, s{sW1}, {(k*16 + o*8)*1024}", f"buffer_load_dwordx4 v{vW}, {rWD}, s79 offen lds")
        else:
            a(f"s_add_u32 m0, s{sR}, {slot*2048 + o*1024}", f"s_add_u32 s79, s{sW0}, {((k-22)*16 + o*8)*1024}", f"buffer_load_dwordx4 v{vW}, {rWO}, s79 offen lds")
        q.issue(("W", k))
    def hload(k, rt):
        if OPT["drot"]:
            a(f"buffer_load_dwordx4 {vr(H[k%HD]+4*rt,4)}, v{[vR0, vR1][rt]}, {rHF}, s49 offen sc1")
            if rt: a("s_add_u32 s49, s49, 0x10000", "s_cmp_eq_u32 s49, s51", f"s_cmov_b32 s49, s{sH0}")
        else:
            if rt == 0: a(f"s_add_u32 s78, s{sH0}, {k*65536}")
            a(f"buffer_load_dwordx4 {vr(H[k%HD]+4*rt,4)}, v{[vR0, vR1][rt]}, {rHF}, s78 offen sc1")
        q.issue(("H", k))
    def wread(k):
        slot = k % NS
        dst = Wf[k & 1] if k < 22 else WF + 8*(k-22)
        for ct in range(2):
            va, d2 = (63, 256) if k < 22 else (vT2, 1024)
            a(f"ds_read_b64_tr_b16 {vr(dst+4*ct,2)}, v{va} offset:{slot*2048 + ct*512}",
              f"ds_read_b64_tr_b16 {vr(dst+4*ct+2,2)}, v{va} offset:{slot*2048 + ct*512 + d2}")
    seq = [25, 26, 27, 28, 29, 0, 1, 2]
    for k in seq[:3]:
        wload(k, 0); wload(k, 1)
    for n in range(5):
        q.wait(("W", seq[n]))
        wread(seq[n])
        a("s_waitcnt lgkmcnt(0)")
        wload(seq[n+3], 0); wload(seq[n+3], 1)
    a("s_lshl_b32 s75, s3, 19", "s_lshl_b32 s80, s6, 11", "s_add_u32 s75, s75, s80", f"s_add_u32 s75, s75, {OF:#x}")
    trace(a, "e")
    gpoll(a, vP1, "0", sleep=OPT["psl"], nl=18)
    a("s_lshl_b32 s78, s3, 2", "s_cmp_eq_u32 s3, 1", "s_cmov_b32 s78, 3", "s_cselect_b32 exec_lo, 0xffffff, 0xffff" if False else "s_cselect_b32 s76, 24, 16",
      "s_lshl4_add_u32 s78, s6, s78", "s_lshl_b32 s78, s78, 9", f"s_add_u32 s78, s78, {FP:#x}", "s_bfm_b64 exec, s76, 0")
    gpoll(a, 7, "s78", sleep=4)
    a("s_mov_b64 exec, -1")
    q.drain()
    stamp(a)
    a("s_and_b32 s79, s3, 1", "s_lshl1_add_u32 s79, s6, s79", "s_lshl_b32 s79, s79, 7", f"s_add_u32 s79, s79, {GT:#x}", "s_xor_b32 s78, s79, 128",
      f"buffer_load_dword v{vG}, v{vGA}, {rWS}, s79 offen sc1", f"buffer_load_dword v{vG+1}, v{vGA}, {rWS}, s78 offen sc1")
    q.issue("g"); q.issue("g")
    for k in range(HD-1):
        hload(k, 0); hload(k, 1)
    a("s_mul_i32 s79, s7, 0x30000", f"s_add_u32 s79, s79, s{sH0}", "s_mov_b32 exec_hi, 0xffff",
      f"buffer_load_dword v62, v{vTH}, {rHF}, s79 offen sc1", "s_mov_b64 exec, -1")
    q.issue("t")
    wread(0)
    a(f"s_setprio {OPT['dprio']}")
    if OPT["nod"]: a("s_branch L_g_dskip")
    for k in range(22):
        q.wait(("W", k+1), ("H", k))
        if k == OPT["bk"]: a("s_barrier")
        if k == OPT["otouch"]:
            a("s_lshl_b32 s79, s7, 16", "s_add_u32 s79, s79, s75", "s_mov_b64 exec, 0xffff", f"buffer_load_dword v62, v7, {rWS}, s79 offen sc1", "s_mov_b64 exec, -1")
            q.issue("t")
        trace(a, "d")
        a("s_waitcnt lgkmcnt(0)")
        if k < 21: wread(k+1)
        extra = [lambda: wload(k+3, 0), lambda: wload(k+3, 1)]
        if k + HD - 1 < 22: extra += [lambda: hload(k+HD-1, 0), lambda: hload(k+HD-1, 1)]
        for i in range(4):
            ct, rt = i >> 1, i & 1
            C = "0" if k == 0 else vr(acc[i], 16)
            a(f"{MFMA} {vr(acc[i],16)}, {vr(Wf[k&1]+4*ct,4)}, {vr(H[k%HD]+4*rt,4)}, {C}")
            if i < len(extra): extra[i]()
    a.label("L_g_dskip")
    trace(a, "e")
    a("s_setprio 3")
    a(f"v_sub_f32 v6, 1.0, v{vG}", f"v_sub_f32 v7, 1.0, v{vG+1}")
    if OPT["probe"] == 2: a("v_and_b32 v10, 7, v1", f"v_lshl_add_u32 v10, v10, 2, v{vCB}", f"ds_read_b32 v10, v10 offset:{cEX}")
    for k in range(22, 25):
        q.wait(("W", k))
        wread(k)
    stamp(a)
    QS_ = 1024 + 32; TS_ = 4*QS_; WS_ = 4*TS_
    if OPT["rowred"]:
        vq = 0 if not OPT["tr"] else 3
        a("v_lshrrev_b32 v4, 1, v1", "v_lshlrev_b32 v4, 16, v4", f"v_and_b32 v{vq}, 1, v1", f"v_lshl_add_u32 v{vq}, v{vq}, 10, v4", f"v_add_u32 v{vq}, 1020, v{vq}")
        for i in range(4):
            a(f"s_xor_b32 s79, s3, {i}", "s_lshr_b32 s80, s79, 1", "s_and_b32 s79, s79, 1", "s_lshl1_add_u32 s79, s79, s80", "s_lshl2_add_u32 s79, s3, s79", f"s_mul_i32 s{48+i}, s79, {TS_}")
        a("s_lshl_b32 s74, s6, 16", "s_lshl_b32 s80, s3, 14", "s_add_u32 s74, s74, s80", "s_lshl_b32 s80, s7, 7", "s_add_u32 s74, s74, s80")
    else:
        a("v_lshlrev_b32 v4, 4, v1", "s_lshl_b32 s79, s3, 14", "v_add_u32 v4, s79, v4")
        a("v_and_b32 v3, 31, v1", "v_lshlrev_b32 v3, 10, v3", "v_lshrrev_b32 v7, 5, v1", "v_lshl_add_u32 v3, v7, 4, v3",
          "s_and_b32 s74, s3, 1", "s_lshl1_add_u32 s74, s6, s74", "s_lshl_b32 s74, s74, 15", "s_lshl_b32 s80, s7, 7", "s_add_u32 s74, s74, s80",
          "s_lshr_b32 s80, s3, 1", "s_lshl_b32 s80, s80, 6", "s_add_u32 s74, s74, s80")
    a("s_waitcnt lgkmcnt(0)")
    if OPT["probe"] == 2: a("v_cmp_eq_u32 vcc, 0, v10", "s_nop 0", "s_cmp_lg_u64 vcc, 0", "s_cselect_b32 s72, 0xffff, 0")
    if OPT["bk"] > 21: a("s_barrier")
    trace(a, "t")
    order = [1, 3, 5, 7, 0, 2, 4, 6]
    def oload(n):
        a(f"s_add_u32 s79, s75, {order[n]*65536}")
        for rt in range(2):
            a(f"buffer_load_dwordx4 {vr(OFR+8*(n%4)+4*rt,4)}, v{[vR0, vR1][rt]}, {rWS}, s79 offen sc1")
    vPA = 0 if not OPT["tr"] else 3
    def probe_issue(): a("s_mov_b64 exec, 0xffff", f"buffer_load_dword v4, v{vPA}, {rWS}, s75 offen sc1")
    def probe_eval(): a("s_waitcnt vmcnt(0)", "v_cmp_eq_u32 vcc, -1, v4", "s_mov_b64 exec, -1", "s_mov_b32 s72, vcc_lo")
    def need(n):
        if not OPT["probe"]: return
        m = 3 << (2*order[n])
        with Ool(a):
            a.label(f"L_p_r{n}")
            a(f"s_sub_u32 s{sBUD}, s{sBUD}, 1", f"s_cbranch_scc1 L_p_x{n}")
            if OPT["prs"]: a(f"s_sleep {OPT['prs']}")
            probe_issue(); probe_eval()
            a(f"s_and_b32 s79, s72, {m}", f"s_cbranch_scc1 L_p_r{n}", f"s_branch L_p_k{n}")
            a.label(f"L_p_x{n}")
            a(f"s_mov_b32 s{sBUD}, 0", f"s_branch L_p_k{n}")
        a(f"s_and_b32 s79, s72, {m}", f"s_cbranch_scc1 L_p_r{n}")
        a.label(f"L_p_k{n}")
    def scale():
        for t in range(4):
            for r in range(0, 16, 2):
                a(f"v_pk_mul_f32 {vr(acc[t]+r,2)}, {vr(acc[t]+r,2)}, v[6:7] " + ("op_sel:[0,1] op_sel_hi:[1,1]" if t & 1 else "op_sel_hi:[1,0]"))
    if OPT["probe"] == 2:
        scale()
        for n in range(4):
            need(n); oload(n)
    elif OPT["probe"]:
        probe_issue()
        a("s_mov_b64 exec, -1")
        scale()
        a("s_mov_b64 exec, 0xffff")
        probe_eval()
        for n in range(4):
            need(n); oload(n)
    else:
        for n in range(4): oload(n)
        scale()
    for n in range(8):
        h, f = order[n], OFR + 8*(n % 4)
        last = min(n + 3, 7)
        with Ool(a):
            a.label(f"L_o_r{n}")
            chk = [f"v_max3_u32 v6, v{f}, v{f+1}, v{f+2}", f"v_max3_u32 v7, v{f+3}, v{f+4}, v{f+5}", f"v_max3_u32 v6, v6, v{f+6}, v{f+7}",
                   "v_max_u32 v6, v6, v7", "v_cmp_eq_u32 vcc, -1, v6"]
            if OPT["omode"] == 0:
                a("s_waitcnt vmcnt(0)", f"s_sub_u32 s{sBUD}, s{sBUD}, 1", f"s_cbranch_scc1 L_o_x{n}", f"s_sleep {OPT['osl']}")
                for m in range(n, last + 1): oload(m)
                a(f"s_branch L_o_w{n}")
            elif OPT["omode"] == 1:
                a(f"s_sub_u32 s{sBUD}, s{sBUD}, 1", f"s_cbranch_scc1 L_o_x{n}")
                for m in range(n, last + 1): oload(m)
                a(f"s_branch L_o_w{n}")
            else:
                a(f"s_sub_u32 s{sBUD}, s{sBUD}, 1", f"s_cbranch_scc1 L_o_x{n}")
                oload(n)
                a("s_waitcnt vmcnt(0)", *chk, f"s_cbranch_vccnz L_o_r{n}")
                for m in range(n + 1, last + 1): oload(m)
                a(f"s_branch L_o_k{n}")
            a.label(f"L_o_x{n}")
            a(f"s_mov_b32 s{sBUD}, 0", f"s_branch L_o_k{n}")
        a.label(f"L_o_w{n}")
        a(f"s_waitcnt vmcnt({2*(last - n)})", f"v_max3_u32 v6, v{f}, v{f+1}, v{f+2}", f"v_max3_u32 v7, v{f+3}, v{f+4}, v{f+5}", f"v_max3_u32 v6, v6, v{f+6}, v{f+7}",
          "v_max_u32 v6, v6, v7", "v_cmp_eq_u32 vcc, -1, v6", f"s_cbranch_vccnz L_o_r{n}")
        a.label(f"L_o_k{n}")
        for i in (1, 2, 3, 0):
            ct, rt = i >> 1, i & 1
            a(f"{MFMA} {vr(acc[i],16)}, {vr(WF+8*h+4*ct,4)}, {vr(f+4*rt,4)}, {vr(acc[i],16)}")
        if n + 4 < 8:
            need(n + 4); oload(n + 4)
        if n == 3: trace(a, "t")
    trace(a, "t")
    if OPT["rowred"]:
        fl = ['', 'sc1', 'nt', 'sc0 sc1'][OPT['ofl']]
        a("v_lshlrev_b32 v4, 4, v1", "v_lshrrev_b32 v3, 3, v1")
        for i in (1, 2, 3, 0): a(f"v_add_u32 v{8+i}, s{48+i}, v4")
        a.nop(4)
        for i in (1, 2, 3, 0):
            for qd in range(4):
                a(f"ds_write_b128 v{8+i}, {vr(acc[i]+4*qd,4)} offset:{qd*QS_}")
        a("v_and_b32 v7, 7, v1", f"v_mul_u32_u24 v6, {QS_}, v7", "v_lshl_add_u32 v6, v3, 4, v6", "s_lshr_b32 s79, s3, 1", f"s_mul_i32 s79, s79, {2*TS_}", "s_and_b32 s80, s3, 1",
          "s_lshl_b32 s80, s80, 8", "s_add_u32 s79, s79, s80", "v_add_u32 v6, s79, v6", "v_lshlrev_b32 v3, 10, v3", "v_lshl_add_u32 v3, v7, 4, v3", "s_add_u32 s75, s74, 8192")
        a("s_waitcnt lgkmcnt(0)", "s_barrier")
        trace(a, "t")
        for i in range(2):
            for w in range(4):
                for hb in range(2):
                    a(f"ds_read_b128 {vr(104+32*i+8*w+4*hb,4)}, v6 offset:{w*WS_ + hb*512 + i*128}")
        for i in range(2):
            b = 104 + 32*i
            a(f"s_waitcnt lgkmcnt({12 - 8*i})")
            for r in range(0, 8, 2): a(f"v_pk_add_f32 {vr(b+r,2)}, {vr(b+r,2)}, {vr(b+8+r,2)}")
            a(f"s_waitcnt lgkmcnt({8 - 8*i})")
            for r in range(0, 8, 2): a(f"v_pk_add_f32 {vr(b+16+r,2)}, {vr(b+16+r,2)}, {vr(b+24+r,2)}")
            for r in range(0, 8, 2): a(f"v_pk_add_f32 {vr(b+r,2)}, {vr(b+r,2)}, {vr(b+16+r,2)}")
            for r in range(4): a(f"v_cvt_pk_bf16_f32 v{16+4*i+r}, v{b+2*r}, v{b+2*r+1}")
            a(f"buffer_store_dwordx4 {vr(16+4*i,4)}, v3, {rOUT}, s{74+i} offen {fl}")
    else:
        a("v_xor_b32 v8, 0x4000, v4", "v_xor_b32 v9, 0x8000, v4", "v_xor_b32 v10, 0xc000, v4")
        a.nop(6)
        for i in (1, 2, 3):
            for qd in range(4):
                a(f"ds_write_b128 v4, {vr(acc[i]+4*qd,4)} offset:{i*4096 + qd*1024}")
        a("s_waitcnt lgkmcnt(0)", "s_barrier")
        trace(a, "t")
        for i in (1, 2, 3):
            for qd in range(4):
                a(f"ds_read_b128 {vr(acc[i]+4*qd,4)}, v{7+i} offset:{i*4096 + qd*1024}")
        for i in (1, 2, 3):
            a(f"s_waitcnt lgkmcnt({12 - 4*i})")
            for r in range(0, 16, 2): a(f"v_pk_add_f32 {vr(acc[0]+r,2)}, {vr(acc[0]+r,2)}, {vr(acc[i]+r,2)}")
        for r in range(8): a(f"v_cvt_pk_bf16_f32 v{16+r}, v{acc[0]+2*r}, v{acc[0]+2*r+1}")
        a("s_nop 1")
        for p in range(2):
            b = 16 + 4*p
            a(f"v_permlane32_swap_b32 v{b}, v{b+2}", f"v_permlane32_swap_b32 v{b+1}, v{b+3}")
        a(f"buffer_store_dwordx4 v[16:19], v3, {rOUT}, s74 offen {['', 'sc1', 'nt', 'sc0 sc1'][OPT['ofl']]}", f"buffer_store_dwordx4 v[20:23], v3, {rOUT}, s74 offen offset:32 {['', 'sc1', 'nt', 'sc0 sc1'][OPT['ofl']]}")
    trace(a, "t")
    a("s_or_b32 s79, s2, s3", "s_cmp_lg_u32 s79, 0", "s_cbranch_scc1 L_g_noep", f"s_mov_b32 s79, {EP:#x}")
    flag_store(a, "s79")
    a.label("L_g_noep")
    stamp_end(a, 1)

HEADER = open("gated_mix__mha_block__glu_gated_glu__prompt.s.ref").read().split("; Override launch")[0]
def build():
    a = Asm()
    txt = HEADER + "; @launch grid=(256,1,1) block=(768,1,1) lds=163840\n"
    txt += '.amdgcn_target "amdgcn-amd-amdhsa--gfx950"\n.text\n'
    d = gen(a)
    txt += a.text() + '.section .rodata,"a"\n' + d
    return txt
if __name__ == "__main__":
    for o in sys.argv[2:]:
        k, v = o.split("=")
        OPT[k] = set(v.split(",")) if k == "tr" else int(v)
    open(sys.argv[1], "w").write(build())
    print("wrote", sys.argv[1])
```
